```python
import torch

def _softmax(x, axis=-1):
    return torch.softmax(x, dim=axis)
def _gelu(x):
    return torch.nn.functional.gelu(x, approximate="tanh")
def _silu(x):
    return torch.nn.functional.silu(x)
def _sigmoid(x):
    return torch.sigmoid(x)
def _layernorm(x, axis=-1, eps=1e-5):
    m = x.mean(dim=axis, keepdim=True)
    v = x.var(dim=axis, keepdim=True, unbiased=False)
    return (x - m) / torch.sqrt(v + eps)
def _scatter_add(tgt, idx, src, axis=0):
    return tgt.clone().index_add_(axis, idx, src)
def _segment_sum(src, seg, n):
    out = torch.zeros((n,) + src.shape[1:], dtype=src.dtype)
    return out.index_add_(0, seg, src)
def _pad(x, pw):
    flat = tuple(v for pair in reversed(pw) for v in pair)
    return torch.nn.functional.pad(x, flat)

kernel_name = 'parallel_sum__mha_block_cached__geglu_ffn__decode'

def setup_inputs():

    _w = (lambda a: (lambda t: t.to(torch.bfloat16) if t.is_floating_point() else t)(torch.as_tensor(a)))
    def _A_setup():
        B, Sq, D = 1, 1, 448
        H, Sk, Dh = 16, 32768, 256
        return {
            "x": _w((lambda *s: torch.randn(*s, dtype=torch.bfloat16) * 0.05)(B, Sq, D)),
            "k_cache": _w((lambda *s: torch.randn(*s, dtype=torch.bfloat16) * 3.2)(B, H, Sk, Dh)),
            "v_cache": _w((lambda *s: torch.randn(*s, dtype=torch.bfloat16) * 1.6)(B, H, Sk, Dh)),
            "wq": _w((lambda *s: torch.randn(*s, dtype=torch.bfloat16) * 3.2)(D, H * Dh) * (D ** -0.5)),
            "wo": _w((lambda *s: torch.randn(*s, dtype=torch.bfloat16) * 1.6)(H * Dh, D) * ((H * Dh) ** -0.5)),
        }
    _A_in = _A_setup()

    def _B_setup():
        B, S, D, F = 1, 1, 448, 1792
        return {
            "x": _w((lambda *s: torch.randn(*s, dtype=torch.bfloat16) * 0.05)(B, S, D)),
            "w_gate": _w((lambda *s: torch.randn(*s, dtype=torch.bfloat16) * 0.05)(D, F)),
            "w_up": _w((lambda *s: torch.randn(*s, dtype=torch.bfloat16) * 0.05)(D, F)),
            "w_down": _w((lambda *s: torch.randn(*s, dtype=torch.bfloat16) * 0.05)(F, D)),
        }
    _B_in = _B_setup()

    return {
        "A_x": _A_in["x"],
        "A_k_cache": _A_in["k_cache"],
        "A_v_cache": _A_in["v_cache"],
        "A_wq": _A_in["wq"],
        "A_wo": _A_in["wo"],
        "B_x": _B_in["x"],
        "B_w_gate": _B_in["w_gate"],
        "B_w_up": _B_in["w_up"],
        "B_w_down": _B_in["w_down"],
    }

def reference(A_x, A_k_cache, A_v_cache, A_wq, A_wo, B_x, B_w_gate, B_w_up, B_w_down):
    def _A_ref(x, k_cache, v_cache, wq, wo):
        B, Sq, D = x.shape
        H, Dh = 16, 256
        q = (lambda x, *d: x.permute(*d))((x @ wq).reshape(B, Sq, H, Dh), 0, 2, 1, 3)
        scores = torch.einsum("bhqd,bhkd->bhqk", q, k_cache) * (Dh ** -0.5)
        p = _softmax(scores, axis=-1)
        o = torch.einsum("bhqk,bhkd->bhqd", p, v_cache)
        return (lambda x, *d: x.permute(*d))(o, 0, 2, 1, 3).reshape(B, Sq, H * Dh) @ wo

    def _B_ref(x, w_gate, w_up, w_down):
        return (_gelu(x @ w_gate) * (x @ w_up)) @ w_down

    x = A_x
    xn = _layernorm(x, axis=-1)
    return x + _A_ref(xn, A_k_cache, A_v_cache, A_wq, A_wo) + _B_ref(xn, B_w_gate, B_w_up, B_w_down)
```

```python
import re

TRANS = ("v_exp_f32","v_log_f32","v_rcp_f32","v_rsq_f32","v_sqrt_f32","v_sin_f32","v_cos_f32","v_rcp_iflag_f32")
REG_RE = re.compile(r"^(-|abs\()?([vsa])(\d+)\)?$")
RNG_RE = re.compile(r"^(-)?([vsa])\[(\d+):(\d+)\]$")

def regs_of(tok):
    tok = tok.strip()
    if tok == "vcc": return ["vcc"]
    if tok in ("vcc_lo","vcc_hi"): return ["vcc"]
    if tok == "exec": return ["exec"]
    if tok == "m0": return ["m0"]
    m = REG_RE.match(tok)
    if m: return [m.group(2)+m.group(3)]
    m = RNG_RE.match(tok)
    if m: return [m.group(2)+str(i) for i in range(int(m.group(3)), int(m.group(4))+1)]
    return []

class Ins:
    def __init__(self, text):
        self.text = text
        t = text.split(";")[0].strip()
        self.label = None; self.op = None
        self.defs = []; self.uses = []; self.kind = "other"
        self.srcA = []; self.srcB = []; self.srcC = []
        if not t or t.startswith("."):
            self.kind = "dir"; return
        if t.endswith(":"):
            self.label = t[:-1]; self.kind = "label"; return
        p = t.split(None, 1)
        self.op = p[0]
        rest = p[1] if len(p) > 1 else ""
        ops = []; cur = ""; d = 0
        for ch in rest:
            if ch in "[(": d += 1
            if ch in "])": d -= 1
            if ch == "," and d == 0: ops.append(cur.strip()); cur = ""
            else: cur += ch
        if cur.strip(): ops.append(cur.strip())
        mods = ""
        if ops:
            last = ops[-1].split(None, 1)
            ops[-1] = last[0]
            mods = last[1] if len(last) > 1 else ""
        self.ops = ops; self.mods = mods
        op = self.op
        base = re.sub(r"_(e32|e64|dpp|sdwa)$", "", op)
        self.base = base
        self.dpp = op.endswith("_dpp") or "row_" in mods or "quad_perm" in mods
        self.sdwa = op.endswith("_sdwa")
        R = [regs_of(o) for o in ops]
        if op.startswith("v_mfma"):
            self.kind = "mfma"
            self.defs = R[0]; self.srcA = R[1]; self.srcB = R[2]; self.srcC = R[3]
            self.uses = R[1]+R[2]+R[3]
            self.passes = 4 if "16x16x32" in op else (8 if ("32x32x16" in op or "16x16x4" in op) else 16)
        elif op.startswith("v_"):
            self.kind = "valu"
            if base.startswith("v_permlane") and "swap" in base:
                self.defs = R[0]+R[1]; self.uses = R[0]+R[1]
            elif base in ("v_add_co_u32","v_sub_co_u32","v_addc_co_u32","v_subb_co_u32"):
                self.defs = R[0]+R[1]; self.uses = sum(R[2:], [])
            elif base == "v_nop":
                pass
            else:
                self.defs = R[0]; self.uses = sum(R[1:], [])
                if base in ("v_dot2c_f32_bf16","v_fmac_f32","v_writelane_b32") : self.uses += R[0]
            if base.startswith("v_dot2"):
                self.dot = True
                self.srcA = R[1]; self.srcB = R[2]; self.srcC = R[3] if len(R) > 3 else R[0]
        elif op.startswith("buffer_") or op.startswith("global_"):
            self.kind = "vmem"
            if "load" in op and "lds" not in mods.split() and not op.startswith("global_load_lds"):
                self.ldst = R[0]; self.uses = sum(R[1:], [])
            elif "atomic" in op and "sc0" in mods.split() and op.startswith("global_"):
                self.ldst = R[0]; self.uses = sum(R[1:], [])
            else:
                self.uses = sum(R, [])
            if "store" in op and (op.endswith("x4") or op.endswith("x3")):
                self.wide = R[0] if op.startswith("buffer_") else R[1]
        elif op.startswith("ds_"):
            self.kind = "ds"
            if op.startswith("ds_read") or "permute" in op or "swizzle" in op:
                self.ldst = R[0]; self.uses = sum(R[1:], [])
            else:
                self.uses = sum(R, [])
        elif op.startswith("s_"):
            self.kind = "salu"
            if op.startswith("s_cbranch") or op == "s_branch":
                self.kind = "branch"; self.target = ops[0]
            elif op == "s_nop":
                self.kind = "nop"; self.n = int(ops[0], 0)+1
            elif op.startswith("s_cmp") or op in ("s_waitcnt","s_barrier","s_sleep","s_endpgm","s_setprio","s_bitcmp1_b32","s_bitcmp0_b32"):
                self.uses = sum(R, [])
            else:
                self.defs = R[0] if R else []; self.uses = sum(R[1:], [])
    def states(self):
        if self.kind in ("dir","label"): return 0
        if self.kind == "nop": return self.n
        return 1

def inter(a, b):
    return bool(set(a) & set(b))

def required(p, c):
    need = 0
    if p.kind == "valu":
        vd = [r for r in p.defs if r[0] in "va" and r != "vcc"]
        sd = [r for r in p.defs if r[0] == "s" or r == "vcc"]
        isdot = hasattr(p, "dot")
        if c.kind == "valu":
            if c.dpp and inter(vd, c.uses): need = max(need, 2)
            if c.base.startswith("v_permlane") and inter(vd, c.uses): need = max(need, 2)
            if c.base in ("v_readlane_b32","v_readfirstlane_b32") and inter(vd, c.uses): need = max(need, 1)
            if p.base in TRANS and inter(vd, c.uses): need = max(need, 1)
            if p.sdwa and (inter(vd, c.uses) or inter(vd, c.defs)): need = max(need, 1)
            if sd and inter(sd, c.uses):
                need = max(need, 4 if c.base in ("v_readlane_b32","v_writelane_b32") else 2)
            if sd and "vcc" in sd and c.base in ("v_cndmask_b32","v_addc_co_u32","v_subb_co_u32","v_div_fmas_f32") and "vcc" in c.uses:
                need = max(need, 4 if c.base == "v_div_fmas_f32" else 2)
            if isdot:
                if hasattr(c, "dot") and c.base == p.base:
                    if inter(vd, c.srcA) or inter(vd, c.srcB): need = max(need, 3)
                elif inter(vd, c.uses) or inter(vd, c.defs): need = max(need, 3)
        elif c.kind == "mfma":
            if inter(vd, c.uses): need = max(need, 3 if isdot else 2)
        elif c.kind in ("vmem","ds"):
            if sd and inter(sd, c.uses): need = max(need, 5)
            if isdot and (inter(vd, c.uses) or inter(vd, getattr(c, "ldst", []))): need = max(need, 3)
        elif c.kind in ("salu","branch"):
            if sd and inter(sd, c.uses): need = max(need, 1)
    elif p.kind == "mfma":
        n = p.passes
        tab_over = {2:4,4:6,8:10,16:18}[n]; tab_ab = {2:5,4:8,8:12,16:20}[n]; tab_war = {2:1,4:3,8:7,16:15}[n]
        if c.kind == "mfma":
            if inter(p.defs, c.srcC) and not (p.defs == c.srcC and c.passes == n): need = max(need, tab_over)
            if inter(p.defs, c.srcA) or inter(p.defs, c.srcB): need = max(need, tab_ab)
            if inter(p.defs, c.defs) and not inter(p.defs, c.srcC): need = max(need, tab_over)
        elif c.kind == "valu":
            if inter(p.defs, c.uses) or inter(p.defs, c.defs): need = max(need, tab_ab)
            if inter(p.srcC, c.defs): need = max(need, tab_war)
        elif c.kind in ("vmem","ds"):
            if inter(p.defs, c.uses) or inter(p.defs, getattr(c, "ldst", [])): need = max(need, tab_ab)
    elif p.kind == "vmem":
        if hasattr(p, "wide"):
            if c.kind == "valu" and inter(p.wide, c.defs): need = max(need, 2)
            elif c.kind == "mfma" and inter(p.wide, c.defs): need = max(need, 2)
            elif inter(p.wide, getattr(c, "ldst", [])): need = max(need, 1)
    elif p.kind == "salu":
        if "m0" in p.defs and c.kind in ("vmem","ds"): need = max(need, 1)
    return need

WINDOW = 22

def need_before(prev, c):
    dist = 0; add = 0
    for p in reversed(prev):
        if dist >= WINDOW: break
        r = required(p, c)
        if r > dist: add = max(add, r - dist)
        dist += p.states()
    return add

def nop(n):
    out = []
    while n > 0:
        k = min(n, 16); out.append(Ins(f"s_nop {k-1}")); n -= k
    return out

def fix_hazards(lines):
    ins = [Ins(l) for l in lines]
    out = []
    for c in ins:
        if c.kind not in ("dir","label"):
            prev = []
            for p in reversed(out):
                if p.op in ("s_branch","s_endpgm"): break
                prev.append(p)
                if len(prev) > 3*WINDOW: break
            prev.reverse()
            out += nop(need_before(prev, c))
        out.append(c)
    changed = True
    while changed:
        changed = False
        lab = {x.label: i for i, x in enumerate(out) if x.kind == "label"}
        for i, b in enumerate(out):
            if b.kind != "branch" or b.target not in lab: continue
            prev = []
            for p in reversed(out[:i]):
                if p.op in ("s_branch","s_endpgm"): break
                prev.append(p)
                if len(prev) > 3*WINDOW: break
            prev.reverse(); prev.append(b)
            add = 0; seq = list(prev); d = 0
            for c in out[lab[b.target]:]:
                if d >= WINDOW: break
                if c.kind not in ("dir","label"):
                    add = max(add, need_before(seq, c))
                seq.append(c); d += c.states()
                if c.op in ("s_branch","s_endpgm"): break
            if add:
                out[i:i] = nop(add); changed = True; break
    return [x.text for x in out]

class Asm:
    def __init__(self): self.lines = []
    def __call__(self, s):
        for l in s.split("\n"):
            l = l.strip()
            if l: self.lines.append(l)
    def text(self):
        return "\n".join(fix_hazards(self.lines)) + "\n"
```

```python
from asmlib import Asm
NAME = "parallel_sum__mha_block_cached__geglu_ffn__decode"
SC   = 0x000000
OIN  = 0x200000
ML   = 0x240000
YA   = 0x250000
YB   = 0x2C0000
QP   = 0x330000
VOTE = 0x340000
WSSZ = 0x350000
OOB  = 0x80000000
FULL = "row_mask:0xf bank_mask:0xf"
import struct
def f2u(x): return struct.unpack("<I", struct.pack("<f", x))[0]
def fl(x): return hex(f2u(x))
LOG2E = 1.4426950408889634
CEXP = LOG2E/16.0

HEADER = """; Kernarg layout for this problem (96 bytes, ptrs only, base s[0:1]):
"""

def kd(name, vgpr, sgpr):
    acc = min(256, (vgpr+3)//4*4)
    return f""".section .rodata,"a"
.p2align 6
.amdhsa_kernel {name}
  .amdhsa_next_free_vgpr {vgpr}
  .amdhsa_next_free_sgpr {sgpr}
  .amdhsa_accum_offset {acc}
  .amdhsa_group_segment_fixed_size 0
  .amdhsa_kernarg_size 96
  .amdhsa_user_sgpr_count 2
  .amdhsa_user_sgpr_kernarg_segment_ptr 1
  .amdhsa_system_sgpr_workgroup_id_x 1
  .amdhsa_float_denorm_mode_32 3
.end_amdhsa_kernel
"""

def srd(a, d, p, size):
    a(f"s_mov_b32 s{d}, s{p}\ns_mov_b32 s{d+1}, s{p+1}\ns_mov_b32 s{d+2}, {hex(size)}\ns_mov_b32 s{d+3}, 0x20000")

def T32(a, x, y, op="v_add_f32"):
    a(f"v_permlane32_swap_b32 v{x}, v{y}\n{op} v{x}, v{x}, v{y}")
def T16(a, x, y, op="v_add_f32"):
    a(f"v_permlane16_swap_b32 v{x}, v{y}\n{op} v{x}, v{x}, v{y}")
def multiT(a, swap, pairs, op="v_add_f32"):
    for x, y in pairs: a(f"{swap} v{x}, v{y}")
    for x, y in pairs: a(f"{op} v{x}, v{x}, v{y}")
def T8(a, x, y):
    a(f"v_add_f32_dpp v{x}, v{x}, v{x} row_ror:8 row_mask:0xf bank_mask:0x3")
    a(f"v_add_f32_dpp v{x}, v{y}, v{y} row_ror:8 row_mask:0xf bank_mask:0xc")
def T4(a, d, x, y):
    a(f"v_add_f32_dpp v{d}, v{x}, v{x} row_shl:4 row_mask:0xf bank_mask:0x5")
    a(f"v_add_f32_dpp v{d}, v{y}, v{y} row_shr:4 row_mask:0xf bank_mask:0xa")
def B32(a, x, t, op="v_add_f32"):
    a(f"v_mov_b32 v{t}, v{x}"); T32(a, x, t, op)
def B16(a, x, t, op="v_add_f32"):
    a(f"v_mov_b32 v{t}, v{x}"); T16(a, x, t, op)
def rowall(a, regs, op="v_add_f32"):
    for r in (8, 4, 2, 1):
        for x in regs: a(f"{op}_dpp v{x}, v{x}, v{x} row_ror:{r} {FULL}")
def waveall(a, x, t, op="v_add_f32"):
    rowall(a, [x], op); B16(a, x, t, op); B32(a, x, t, op)
def rnd(a, d, s):
    a(f"v_cvt_pk_bf16_f32 v{d}, v{s}, v{s}\nv_and_b32 v{d}, 0xffff0000, v{d}")
def fdiv(a, d, n, den, rc, t):
    a(f"v_mul_f32 v{t}, v{n}, v{rc}")
    a(f"v_fma_f32 v{d}, -v{t}, v{den}, v{n}")
    a(f"v_fma_f32 v{d}, v{d}, v{rc}, v{t}")

def layernorm_stats(a, X, U, vM, vS, vR, t0, t1):
    for i in range(4):
        a(f"v_lshlrev_b32 v{U+2*i}, 16, v{X+i}\nv_and_b32 v{U+2*i+1}, 0xffff0000, v{X+i}")
    a(f"v_add_f32 v{t0}, v{U}, v{U+1}\nv_add_f32 v{t1}, v{U+2}, v{U+3}\nv_add_f32 v{vM}, v{U+4}, v{U+5}\nv_add_f32 v{vS}, v{U+6}, v{U+7}")
    a(f"v_add_f32 v{t0}, v{t0}, v{t1}\nv_add_f32 v{vM}, v{vM}, v{vS}\nv_add_f32 v{t0}, v{t0}, v{vM}")
    waveall(a, t0, t1)
    a(f"v_mov_b32 v{vS}, {fl(448.0)}\nv_mov_b32 v{vR}, {fl(1/448.0)}")
    fdiv(a, vM, t0, vS, vR, t1)
    a(f"v_mov_b32 v{t0}, 0")
    a("s_mov_b32 exec_hi, 0x00ffffff")
    for i in range(8):
        a(f"v_sub_f32 v{U+i}, v{U+i}, v{vM}")
    for i in range(8):
        a(f"v_fmac_f32 v{t0}, v{U+i}, v{U+i}")
    a("s_mov_b32 exec_hi, -1")
    waveall(a, t0, t1)
    fdiv(a, U, t0, vS, vR, t1)
    rnd(a, vM, vM)
    rnd(a, U, U)
    a(f"v_add_f32 v{U}, {fl(1e-5)}, v{U}")
    rnd(a, U, U)
    a(f"v_sqrt_f32 v{t0}, v{U}")
    a(f"v_rcp_f32 v{t1}, v{t0}")
    a(f"v_fma_f32 v{U+1}, -v{t0}, v{t0}, v{U}")
    a(f"v_mul_f32 v{t1}, 0.5, v{t1}")
    a(f"v_fma_f32 v{t0}, v{U+1}, v{t1}, v{t0}")
    rnd(a, vS, t0)
    a(f"v_rcp_f32 v{vR}, v{vS}")

def normalize(a, x, lo, hi, vM, vS, vR, t0, t1):
    a(f"v_lshlrev_b32 v{t0}, 16, v{x}\nv_sub_f32 v{t0}, v{t0}, v{vM}")
    rnd(a, t0, t0)
    fdiv(a, t0, t0, vS, vR, t1)
    a(f"v_cvt_pk_bf16_f32 v{t0}, v{t0}, v{t0}")
    a(f"v_and_b32 v{lo}, 0xffff, v{t0}\nv_and_b32 v{hi}, 0xffff0000, v{t0}")

def gemv8(a, acc, W, lo, hi, first):
    for r in range(4):
        if first:
            a(f"v_dot2_f32_bf16 v{acc+2*r}, v{W+r}, v{lo}, 0\nv_dot2_f32_bf16 v{acc+2*r+1}, v{W+r}, v{hi}, 0")
        else:
            a(f"v_dot2_f32_bf16 v{acc+2*r}, v{W+r}, v{lo}, v{acc+2*r}\nv_dot2_f32_bf16 v{acc+2*r+1}, v{W+r}, v{hi}, v{acc+2*r+1}")

def red8(a, A):
    multiT(a, "v_permlane32_swap_b32", [(A+i, A+4+i) for i in range(4)])
    multiT(a, "v_permlane16_swap_b32", [(A, A+2), (A+1, A+3)])
    T8(a, A, A+1)

def mask2(a, M, vL, t0, t1):
    a(f"v_and_b32 v{t0}, 15, v{vL}")
    a(f"v_and_b32 v{t1}, 1, v{vL}\nv_lshlrev_b32 v{t1}, 4, v{t1}\nv_mov_b32 v{M}, 0xffff\nv_lshlrev_b32 v{t1}, v{t1}, v{M}")
    a(f"v_lshrrev_b32 v{t0}, 1, v{t0}")
    for r in range(4):
        a(f"v_cmp_eq_u32 vcc, {r}, v{t0}\nv_cndmask_b32 v{M+r}, 0, v{t1}, vcc")

def mask1(a, M, vL, t0, t1):
    a(f"v_lshrrev_b32 v{t0}, 1, v{vL}\nv_xor_b32 v{t0}, v{t0}, v{vL}\nv_and_b32 v{t0}, 8, v{t0}")
    a(f"v_bfe_u32 v{t1}, v{vL}, 1, 2\nv_or_b32 v{t0}, v{t0}, v{t1}")
    a(f"v_and_b32 v{t1}, 1, v{vL}\nv_lshlrev_b32 v{t1}, 4, v{t1}\nv_mov_b32 v{M}, 0xffff\nv_lshlrev_b32 v{t1}, v{t1}, v{M}")
    for r in range(4):
        a(f"v_cmp_eq_u32 vcc, {r}, v{t0}\nv_cndmask_b32 v{M+r}, 0, v{t1}, vcc")

def yaddr(a, d, d3, vL, t0, t1):
    a(f"v_and_b32 v{t0}, 15, v{vL}\nv_lshlrev_b32 v{t0}, 13, v{t0}\nv_lshrrev_b32 v{t1}, 4, v{vL}\nv_lshlrev_b32 v{t1}, 12, v{t1}\nv_add_u32 v{t0}, v{t0}, v{t1}")
    a(f"v_mov_b32 v{t1}, {hex(OOB)}")
    a(f"v_cmp_gt_u32 vcc, 32, v{vL}\nv_cndmask_b32 v{d}, v{t1}, v{t0}, vcc")
    a(f"v_and_b32 v{t0}, 8, v{vL}\nv_cmp_eq_u32 vcc, 0, v{t0}\nv_cndmask_b32 v{d3}, v{t1}, v{d}, vcc")
```

```python
import sys
from common import *

SPIN = 20000

def load_args(a):
    a("s_load_dwordx16 s[16:31], s[0:1], 0\ns_load_dwordx8 s[32:39], s[0:1], 64")

def ids(a):
    a("v_lshrrev_b32 v1, 6, v0\nv_readfirstlane_b32 s3, v1\nv_and_b32 v1, 63, v0")

def pre_kernel():
    a = Asm(); K = "pre_kernel"
    a(f".globl {K}\n.p2align 8\n.type {K},@function\n{K}:")
    a("s_cmp_ge_u32 s2, 256\ns_cbranch_scc1 pre_done")
    load_args(a); ids(a)
    a("s_getreg_b32 s4, hwreg(HW_REG_XCC_ID)\ns_bfe_u32 s4, s4, 0x10002")
    a("s_lshr_b32 s5, s2, 4\ns_bfe_u32 s6, s2, 0x20002\ns_and_b32 s7, s2, 3")
    a("v_lshlrev_b32 v2, 4, v1")
    a("v_lshrrev_b32 v3, 1, v1\nv_lshlrev_b32 v4, 13, v3\nv_and_b32 v5, 1, v1\nv_lshlrev_b32 v5, 4, v5\nv_add_u32 v4, v4, v5")
    a(f"v_mov_b32 v5, {hex(OOB)}\nv_cmp_gt_u32 vcc, 32, v1\nv_cndmask_b32 v5, v5, v4, vcc")
    a("v_lshlrev_b32 v3, 1, v3")
    a("s_mul_i32 s8, s6, 112\ns_lshl_b32 s9, s8, 1")
    a("s_lshl_b32 s8, s8, 13\ns_lshl_b32 s10, s5, 9\ns_add_u32 s8, s8, s10\ns_lshl_b32 s10, s7, 7\ns_add_u32 s8, s8, s10\ns_lshl_b32 s10, s3, 5\ns_add_u32 s8, s8, s10")
    a("s_waitcnt lgkmcnt(0)")
    srd(a, 52, 16, 896); srd(a, 56, 22, 448*8192); srd(a, 48, 38, WSSZ)
    a("buffer_load_dwordx4 v[8:11], v2, s[52:55], 0 offen")
    for n in range(4):
        a(f"buffer_load_ushort v{12+n}, v3, s[52:55], s9 offen offset:{64*n}")
    for n in range(4):
        a(f"buffer_load_dwordx4 v[{16+4*n}:{19+4*n}], v{4 if n<3 else 5}, s[56:59], s8 offen nt")
        if n < 3: a(f"s_add_u32 s8, s8, {32*8192}")
    a("s_lshr_b32 s11, s2, 3\ns_cmp_lt_u32 s11, 28\ns_cselect_b32 s12, 1, 0\ns_cmp_eq_u32 s3, 3\ns_cselect_b32 s12, s12, 0")
    a("s_and_b32 s13, s2, 7\ns_mul_i32 s13, s13, 28\ns_add_u32 s13, s13, s11")
    srd(a, 60, 28, 448*3584); srd(a, 64, 30, 448*3584); srd(a, 68, 32, 1792*896)
    a("v_lshlrev_b32 v6, 1, v1\nv_mul_u32_u24 v7, 3584, v1")
    a("v_lshrrev_b32 v40, 4, v1\nv_mul_u32_u24 v40, 1792, v40\nv_and_b32 v41, 15, v1\nv_lshlrev_b32 v41, 4, v41\nv_add_u32 v40, v40, v41")
    a("s_cmp_eq_u32 s12, 0\ns_cbranch_scc1 pre_noffn1")
    a("s_lshl_b32 s14, s13, 4")
    for n in range(7):
        a(f"buffer_load_ushort v{48+n}, v6, s[52:55], 0 offen offset:{128*n}")
    for n in range(7):
        a(f"buffer_load_dwordx4 v[{64+4*n}:{67+4*n}], v7, s[60:63], s14 offen")
        a(f"buffer_load_dwordx4 v[{96+4*n}:{99+4*n}], v7, s[64:67], s14 offen")
        if n < 6: a(f"s_add_u32 s14, s14, {64*3584}")
    a(f"s_mul_i32 s14, s13, {8*896}")
    for n in range(2):
        for blk in range(4):
            i = n*4+blk
            a(f"buffer_load_dwordx4 v[{128+4*i}:{131+4*i}], v40, s[68:71], s14 offen offset:{n*896+blk*256} nt")
    a("pre_noffn1:")
    a("v_mov_b32 v32, -1\nv_mov_b32 v33, -1\nv_mov_b32 v34, -1\nv_mov_b32 v35, -1")
    a("s_mul_i32 s15, s2, 11264\ns_lshl_b32 s10, s3, 10\ns_add_u32 s15, s15, s10")
    a("buffer_store_dwordx4 v[32:35], v2, s[48:51], s15 offen")
    a("s_add_u32 s15, s15, 4096\nbuffer_store_dwordx4 v[32:35], v2, s[48:51], s15 offen")
    a("s_cmp_eq_u32 s3, 3\ns_cbranch_scc1 pre_noclr")
    a("s_add_u32 s15, s15, 4096\nbuffer_store_dwordx4 v[32:35], v2, s[48:51], s15 offen")
    a("pre_noclr:")
    a("s_sub_u32 s10, s3, 1\ns_cmp_gt_u32 s10, 1\ns_cbranch_scc1 pre_noprobe")
    a("s_cmp_eq_u32 s3, 1\ns_cselect_b32 s40, s18, s20\ns_cselect_b32 s41, s19, s21")
    a("s_lshl_b32 s42, s11, 23\ns_and_b32 s43, s2, 1\ns_lshl_b32 s43, s43, 22\ns_or_b32 s42, s42, s43")
    a("s_bfe_u32 s44, s2, 0x10001\ns_lshl_b32 s43, s44, 21\ns_or_b32 s42, s42, s43")
    a("s_bfe_u32 s43, s2, 0x10002\ns_lshl_b32 s43, s43, 11\ns_or_b32 s42, s42, s43\ns_or_b32 s42, s42, 0x1e0000")
    a("s_xor_b32 s44, s44, s4")
    a("s_add_u32 s43, s42, 0x8400\ns_load_dword s45, s[40:41], s43\ns_waitcnt lgkmcnt(0)")
    offs = [0x0000, 0x2000, 0x7000, 0x5000]
    for i, o in enumerate(offs):
        a(f"s_add_u32 s43, s42, {o}")
        a(f"s_memtime s[72:73]\ns_waitcnt lgkmcnt(0)\ns_load_dword s45, s[40:41], s43\ns_waitcnt lgkmcnt(0)\ns_memtime s[74:75]\ns_waitcnt lgkmcnt(0)")
        a(f"s_sub_u32 s{76+i}, s74, s72")
    a("s_cmp_lt_u32 s77, s76\ns_cselect_b32 s72, 1, 0\ns_cmp_lt_u32 s78, s79\ns_cselect_b32 s73, 1, 0")
    a("s_xor_b32 s72, s72, s44\ns_xor_b32 s73, s73, s44\ns_lshl_b32 s73, s73, 1\ns_or_b32 s72, s72, s73\ns_lshl_b32 s73, s4, 7\ns_or_b32 s72, s72, s73")
    a(f"s_lshl_b32 s73, s5, 5\ns_lshl_b32 s74, s10, 4\ns_add_u32 s73, s73, s74\ns_and_b32 s74, s2, 15\ns_add_u32 s73, s73, s74\ns_add_u32 s73, s73, {VOTE}")
    a(f"v_mov_b32 v36, s72\nv_mov_b32 v37, {hex(OOB)}\nv_cmp_eq_u32 vcc, 0, v1\nv_cndmask_b32 v37, v37, v1, vcc")
    a("buffer_store_byte v36, v37, s[48:51], s73 offen")
    a("pre_noprobe:")
    a("s_waitcnt vmcnt(0)")
    vM, vS, vR = 42, 43, 44
    layernorm_stats(a, 8, 32, vM, vS, vR, 45, 46)
    for n in range(4):
        normalize(a, 12+n, 45, 46, vM, vS, vR, 8, 9)
        gemv8(a, 32, 16+4*n, 45, 46, n == 0)
    red8(a, 32)
    T4(a, 33, 32, 32)
    a(f"v_add_f32_dpp v33, v33, v33 quad_perm:[2,3,0,1] {FULL}")
    a("v_and_b32 v8, 1, v1\nv_lshlrev_b32 v8, 3, v8\nv_lshrrev_b32 v9, 3, v1\nv_add_u32 v8, v8, v9\nv_lshlrev_b32 v8, 2, v8")
    a(f"v_mov_b32 v9, {hex(OOB)}\nv_and_b32 v10, 6, v1\nv_cmp_eq_u32 vcc, 0, v10\nv_cndmask_b32 v8, v9, v8, vcc")
    a(f"s_lshl_b32 s8, s5, 12\ns_lshl_b32 s9, s6, 10\ns_add_u32 s8, s8, s9\ns_lshl_b32 s9, s7, 8\ns_add_u32 s8, s8, s9\ns_lshl_b32 s9, s3, 6\ns_add_u32 s8, s8, s9\ns_add_u32 s8, s8, {QP}")
    a("buffer_store_dword v33, v8, s[48:51], s8 offen")
    a("s_cmp_eq_u32 s12, 0\ns_cbranch_scc1 pre_done")
    ffn_compute(a, vM, vS, vR, 48, 64, 96, 128, "")
    a("pre_done:\ns_endpgm")
    return a.text(), kd(K, 168, 96)

def ffn_compute(a, vM, vS, vR, X, G, U, WD, fl_store):
    aG, aU = 16, 24
    for n in range(7):
        normalize(a, X+n, 45, 46, vM, vS, vR, 8, 9)
        gemv8(a, aG, G+4*n, 45, 46, n == 0)
        gemv8(a, aU, U+4*n, 45, 46, n == 0)
    red8(a, aG); red8(a, aU)
    for A in (aG, aU): T4(a, A+1, A, A)
    for q in ("[2,3,0,1]", "[1,0,3,2]"):
        for A in (aG, aU): a(f"v_add_f32_dpp v{A+1}, v{A+1}, v{A+1} quad_perm:{q} {FULL}")
    g, u = aG+1, aU+1
    rnd(a, g, g); rnd(a, u, u)
    a(f"v_mul_f32 v8, v{g}, v{g}\nv_mul_f32 v8, v8, v{g}")
    a(f"v_mul_f32 v8, {fl(0.044715)}, v8\nv_add_f32 v8, v8, v{g}\nv_mul_f32 v8, {fl(0.7978845608028654)}, v8")
    a(f"v_mul_f32 v8, {fl(2*LOG2E)}, v8\nv_exp_f32 v8, v8\nv_add_f32 v8, 1.0, v8\nv_rcp_f32 v8, v8")
    a(f"v_fma_f32 v8, v8, -2.0, 2.0")
    a(f"v_mul_f32 v9, 0.5, v{g}\nv_mul_f32 v8, v8, v9")
    rnd(a, 8, 8)
    a(f"v_mul_f32 v8, v8, v{u}\nv_cvt_pk_bf16_f32 v8, v8, v8")
    mask2(a, 12, 1, 9, 10)
    for n in range(2):
        for r in range(4):
            a(f"v_and_b32_dpp v{16+4*n+r}, v8, v{12+r} row_newbcast:{8*n} {FULL}")
    for blk in range(4):
        a(f"v_mfma_f32_16x16x32_bf16 v[{48+4*blk}:{51+4*blk}], v[16:19], v[{WD+4*blk}:{WD+3+4*blk}], 0")
    for blk in range(4):
        a(f"v_mfma_f32_16x16x32_bf16 v[{48+4*blk}:{51+4*blk}], v[20:23], v[{WD+16+4*blk}:{WD+19+4*blk}], v[{48+4*blk}:{51+4*blk}]")
    yaddr(a, 24, 25, 1, 9, 10)
    a(f"s_lshl_b32 s14, s13, 4\ns_add_u32 s14, s14, {YB}")
    for blk in range(4):
        a(f"buffer_store_dwordx4 v[{48+4*blk}:{51+4*blk}], v{25 if blk==3 else 24}, s[48:51], s14 offen {fl_store}")
        if blk < 3: a(f"s_add_u32 s14, s14, {32*4096}")

RING = 64
P0 = 32
vLO, vHI, vQ, vSA, vSL = 2, 3, 4, 8, 9
vSC, vMX, vLS, vP, vT0, vT1, vT2 = 10, 11, 12, 13, 14, 15, 16
MK = 20
AA = 24
ACC = 48
sOK, sOV, sO, sSO, sK = 90, 91, 92, 93, 94

def sb_off(a, base, kreg):
    a(f"s_and_b32 s95, s{kreg}, 1\ns_mul_i32 s{sO}, s95, 0x101000")
    a(f"s_bfe_u32 s95, s{kreg}, 0x10001\ns_mul_i32 s95, s95, 0x84000\ns_or_b32 s{sO}, s{sO}, s95")
    a(f"s_bfe_u32 s95, s{kreg}, 0x10002\ns_lshl_b32 s95, s95, 18\ns_or_b32 s{sO}, s{sO}, s95")
    a(f"s_bfe_u32 s95, s{kreg}, 0x10003\ns_lshl_b32 s95, s95, 17\ns_or_b32 s{sO}, s{sO}, s95")
    a(f"s_xor_b32 s{sO}, s{sO}, s{base}")
def score_off(a, dst):
    a(f"s_lshr_b32 s95, s{sO}, 17\ns_lshl_b32 s95, s95, 10\ns_bfe_u32 s{dst}, s{sO}, 0x3000c\ns_lshl_b32 s{dst}, s{dst}, 7\ns_or_b32 s{dst}, s{dst}, s95")
def ring(j): return f"v[{RING+4*j}:{RING+4*j+3}]"
def kvload(a, j, srdname):
    a(f"buffer_load_dwordx4 {ring(j)}, v{vLO if j%2==0 else vHI}, {srdname}, s{sO} offen offset:{(j//2)*512} nt")

def k_body(a, refill):
    for j in range(16):
        a("s_waitcnt vmcnt(16)")
        r = RING+4*j
        a(f"v_dot2_f32_bf16 v{P0+j}, v{r}, v{vQ}, 0")
        for i in range(1, 4): a(f"v_dot2_f32_bf16 v{P0+j}, v{r+i}, v{vQ+i}, v{P0+j}")
        refill(j)
    for j in range(8):
        a(f"v_add_f32_dpp v{P0+j}, v{P0+j}, v{P0+j} row_ror:8 row_mask:0xf bank_mask:0x3")
    for j in range(8):
        a(f"v_add_f32_dpp v{P0+j}, v{P0+8+j}, v{P0+8+j} row_ror:8 row_mask:0xf bank_mask:0xc")
    for j in range(4):
        a(f"v_add_f32_dpp v{P0+j}, v{P0+j}, v{P0+j} row_shl:4 row_mask:0xf bank_mask:0x5")
    for j in range(4):
        a(f"v_add_f32_dpp v{P0+j}, v{P0+4+j}, v{P0+4+j} row_shr:4 row_mask:0xf bank_mask:0xa")
    for j in range(4):
        a(f"v_add_f32_dpp v{P0+j}, v{P0+j}, v{P0+j} quad_perm:[2,3,0,1] {FULL}")
    a(f"v_cndmask_b32 v{P0}, v{P0}, v{P0+2}, s[84:85]\nv_cndmask_b32 v{P0+1}, v{P0+1}, v{P0+3}, s[84:85]")
    for j in range(2):
        a(f"v_add_f32_dpp v{P0+j}, v{P0+j}, v{P0+j} quad_perm:[1,0,3,2] {FULL}")
    a(f"v_cndmask_b32 v{P0}, v{P0}, v{P0+1}, s[86:87]")
    B16(a, P0, P0+1)
    rnd(a, P0, P0)
    a(f"buffer_store_dword v{P0}, v{vSA}, s[48:51], s{sSO} offen sc1")

def v_head(a, tag, next_score):
    a("s_waitcnt vmcnt(16)" if next_score else "s_waitcnt vmcnt(16)")
    a(f"v_cmp_eq_u32 vcc, -1, v{vSC}\ns_cbranch_vccnz v_slow_{tag}")
    a(f"v_ok_{tag}:")
    a(f"v_max_f32_dpp v{vT0}, v{vSC}, v{vSC} row_ror:8 {FULL}")
    for r in (4, 2, 1): a(f"v_max_f32_dpp v{vT0}, v{vT0}, v{vT0} row_ror:{r} {FULL}")
    B32(a, vT0, vT1, "v_max_f32")
    a(f"v_max_f32 v{vT0}, v{vT0}, v{vMX}")
    a(f"v_sub_f32 v{vT1}, v{vMX}, v{vT0}\nv_sub_f32 v{vT2}, v{vSC}, v{vT0}")
    if next_score: next_score()
    a(f"v_mov_b32 v{vMX}, v{vT0}")
    a(f"v_mul_f32 v{vT1}, s88, v{vT1}\nv_mul_f32 v{vT2}, s88, v{vT2}")
    a(f"v_exp_f32 v{vT1}, v{vT1}\nv_exp_f32 v{vT2}, v{vT2}")
    a(f"v_cvt_pk_bf16_f32 v{vP}, v{vT2}, v{vT2}")
    a(f"v_fma_f32 v{vLS}, v{vLS}, v{vT1}, v{vT2}")
    for r in range(4): a(f"v_mul_f32 v{ACC+r}, v{ACC+r}, v{vT1}")

def v_slow(a, tag, soff):
    a(f"v_slow_{tag}:")
    a(f"s_mov_b32 s96, {SPIN}")
    a(f"v_spin_{tag}:")
    a(f"s_sleep 4\nbuffer_load_dword v{vSC}, v{vSL}, s[48:51], s{soff} offen sc1\ns_waitcnt vmcnt(0)")
    a(f"v_cmp_eq_u32 vcc, -1, v{vSC}\ns_cbranch_vccz v_ok_{tag}")
    a(f"s_sub_u32 s96, s96, 1\ns_cmp_lg_u32 s96, 0\ns_cbranch_scc1 v_spin_{tag}\ns_branch v_ok_{tag}")

def v_body(a, refill, waits):
    def build(j):
        for r in range(4):
            a(f"v_and_b32_dpp v{AA+4*(j&1)+r}, v{vP}, v{MK+r} row_newbcast:{j} {FULL}")
    build(0)
    for j in range(16):
        a(f"s_waitcnt vmcnt({waits(j)})")
        A = AA+4*(j&1)
        a(f"v_mfma_f32_16x16x32_bf16 v[{ACC}:{ACC+3}], v[{A}:{A+3}], {ring(j)}, v[{ACC}:{ACC+3}]")
        if j < 15: build(j+1)
        refill(j)

def main_kernel():
    a = Asm(); K = "main_kernel"
    a(f".globl {K}\n.p2align 8\n.type {K},@function\n{K}:")
    a("s_cmp_ge_u32 s2, 256\ns_cbranch_scc1 main_done")
    load_args(a); ids(a)
    a("s_lshr_b32 s5, s2, 4\ns_and_b32 s6, s2, 15")
    a(f"v_and_b32 v{vLO}, 31, v1\nv_lshlrev_b32 v{vLO}, 4, v{vLO}\nv_lshrrev_b32 v{vHI}, 5, v1\nv_lshlrev_b32 v{vHI}, 15, v{vHI}\nv_add_u32 v{vLO}, v{vLO}, v{vHI}\nv_add_u32 v{vHI}, 0x10000, v{vLO}")
    a(f"v_and_b32 v{vSL}, 15, v1\nv_lshrrev_b32 v{vSA}, 5, v1\nv_lshlrev_b32 v{vSA}, 4, v{vSA}\nv_add_u32 v{vSL}, v{vSL}, v{vSA}\nv_lshlrev_b32 v{vSL}, 2, v{vSL}")
    a(f"v_mov_b32 v{vSA}, {hex(OOB)}\nv_and_b32 v{vT0}, 16, v1\nv_cmp_eq_u32 vcc, 0, v{vT0}\nv_cndmask_b32 v{vSA}, v{vSA}, v{vSL}, vcc")
    a(f"v_lshlrev_b32 v17, 2, v1")
    a("s_mov_b32 s84, 0xcccccccc\ns_mov_b32 s85, 0xcccccccc\ns_mov_b32 s86, 0xaaaaaaaa\ns_mov_b32 s87, 0xaaaaaaaa")
    a(f"s_mov_b32 s88, {fl(CEXP)}")
    a("s_lshr_b32 s7, s2, 3\ns_lshl_b32 s7, s7, 23\ns_and_b32 s8, s3, 1\ns_lshl_b32 s8, s8, 22\ns_or_b32 s7, s7, s8\ns_lshr_b32 s9, s3, 1\ns_lshl_b32 s8, s9, 21\ns_or_b32 s7, s7, s8")
    a("s_lshr_b32 s8, s2, 1\ns_lshr_b32 s10, s2, 7\ns_xor_b32 s8, s8, s10\ns_andn2_b32 s8, 1, s8\ns_lshl_b32 s8, s8, 12\ns_or_b32 s7, s7, s8")
    a("s_lshr_b32 s8, s2, 6\ns_xor_b32 s8, s8, s2\ns_and_b32 s8, s8, 1\ns_lshl_b32 s8, s8, 14\ns_or_b32 s7, s7, s8")
    a("s_bfe_u32 s8, s2, 0x10002\ns_xor_b32 s9, s9, s8")
    a(f"s_lshl_b32 s10, s5, 5\ns_add_u32 s10, s10, {VOTE}")
    a(f"s_lshl_b32 s11, s5, 12\ns_lshl_b32 s12, s3, 8\ns_add_u32 s11, s11, s12\ns_add_u32 s11, s11, {QP}")
    a("s_waitcnt lgkmcnt(0)")
    a("s_load_dwordx8 s[72:79], s[38:39], s10")
    srd(a, 40, 18, 1 << 28); srd(a, 44, 20, 1 << 28); srd(a, 48, 38, WSSZ)
    for rb in range(4):
        a(f"buffer_load_dword v{P0+rb}, v17, s[48:51], s11 offen offset:{1024*rb}")
    mask1(a, MK, 1, vT0, vT1)
    a(f"v_mov_b32 v{vMX}, 0xff800000\nv_mov_b32 v{vLS}, 0")
    for r in range(4): a(f"v_mov_b32 v{ACC+r}, 0")
    a("s_waitcnt lgkmcnt(0)")
    if FORCE is None:
        a("s_bitcmp1_b32 s6, 3\ns_cselect_b32 s10, s74, s72\ns_and_b32 s12, s6, 3\ns_lshl_b32 s12, s12, 3\ns_add_u32 s12, s12, 7\ns_lshr_b32 s10, s10, s12\ns_and_b32 s10, s10, 1")
        a("s_xor_b32 s9, s9, s10")
        for t, dst in ((0, sOK), (1, sOV)):
            for i in range(4):
                a(f"s_and_b32 s12, s{72+4*t+i}, 0x03030303\ns_bcnt1_i32_b32 s12, s12")
                a("s_mov_b32 s13, s12" if i == 0 else "s_add_u32 s13, s13, s12")
            a(f"s_cmp_gt_u32 s13, 16\ns_cselect_b32 s13, 1, 0\ns_xor_b32 s13, s13, s9\ns_lshl_b32 s13, s13, 13\ns_or_b32 s{dst}, s7, s13")
    else:
        a(f"s_bfe_u32 s8, s2, 0x10002\ns_lshl_b32 s13, s8, 13\ns_or_b32 s{sOK}, s7, s13\ns_mov_b32 s{sOV}, s{sOK}")
    a(f"s_mov_b32 s{sO}, s{sOK}")
    for j in range(16): kvload(a, j, "s[40:43]")
    a(f"buffer_load_dword v18, v17, s[48:51], s11 offen")
    score_off(a, sSO)
    a("s_waitcnt vmcnt(17)")
    a(f"v_add_f32 v{P0}, v{P0}, v{P0+1}\nv_add_f32 v{P0+2}, v{P0+2}, v{P0+3}\nv_add_f32 v{P0}, v{P0}, v{P0+2}")
    a(f"v_cvt_pk_bf16_f32 v{P0}, v{P0}, v{P0}\nv_lshlrev_b32 v{P0+1}, 1, v0\nds_write_b16 v{P0+1}, v{P0}")
    a(f"v_and_b32 v{P0+2}, 31, v1\nv_lshlrev_b32 v{P0+2}, 4, v{P0+2}")
    a(f"s_waitcnt lgkmcnt(0)\ns_barrier\nds_read_b128 v[{vQ}:{vQ+3}], v{P0+2}")
    a(f"s_mov_b32 s{sK}, 1\ns_waitcnt lgkmcnt(0)")
    a("k_loop:")
    sb_off(a, sOK, sK)
    k_body(a, lambda j: kvload(a, j, "s[40:43]"))
    score_off(a, sSO)
    a(f"s_add_u32 s{sK}, s{sK}, 1\ns_cmp_lt_u32 s{sK}, 16\ns_cbranch_scc1 k_loop")
    a(f"s_mov_b32 s{sO}, s{sOV}")
    score_off(a, 97)
    a(f"buffer_load_dword v{vSC}, v{vSL}, s[48:51], s97 offen sc1")
    k_body(a, lambda j: kvload(a, j, "s[44:47]"))
    a(f"s_mov_b32 s{sK}, 1")
    a("v_loop:")
    sb_off(a, sOV, sK)
    score_off(a, sSO)
    v_head(a, "a", lambda: a(f"buffer_load_dword v{vSC}, v{vSL}, s[48:51], s{sSO} offen sc1"))
    v_body(a, lambda j: kvload(a, j, "s[44:47]"), lambda j: 16)
    a(f"s_mov_b32 s97, s{sSO}")
    a(f"s_add_u32 s{sK}, s{sK}, 1\ns_cmp_lt_u32 s{sK}, 16\ns_cbranch_scc1 v_loop")
    srd(a, 52, 24, 4096*896)
    a("v_lshrrev_b32 v17, 4, v1\nv_mul_u32_u24 v17, 3584, v17\nv_and_b32 v18, 15, v1\nv_lshlrev_b32 v18, 4, v18\nv_add_u32 v17, v17, v18")
    a(f"s_mul_i32 s10, s2, {16*896}")
    a("s_cmp_eq_u32 s3, 0\ns_cbranch_scc1 v_last0")
    v_head(a, "b", None)
    v_body(a, lambda j: None, lambda j: 15-j)
    a("s_branch v_end")
    a("v_last0:")
    v_head(a, "c", None)
    v_body(a, lambda j: a(f"buffer_load_dwordx4 {ring(j)}, v17, s[52:55], s10 offen offset:{(j//4)*896+(j%4)*256} nt"), lambda j: 15)
    a("v_end:")
    rowall(a, [vLS]); B32(a, vLS, vT0)
    a(f"v_lshlrev_b32 v{vT1}, 4, v0\nds_write_b128 v{vT1}, v[{ACC}:{ACC+3}] offset:1024")
    a(f"s_lshl_b32 s8, s3, 2\nv_mov_b32 v{vT2}, s8\nds_write_b32 v{vT2}, v{vMX} offset:512\nds_write_b32 v{vT2}, v{vLS} offset:528")
    a("s_waitcnt lgkmcnt(0)\ns_barrier")
    a("s_cmp_eq_u32 s3, 0\ns_cbranch_scc1 tail0")
    a("s_cmp_lg_u32 s3, 1\ns_cbranch_scc1 main_done\ns_cmp_ge_u32 s2, 112\ns_cbranch_scc1 main_done")
    reducer(a)
    a("s_endpgm")
    a("tail0:")
    tail0(a)
    a("main_done:\ns_endpgm")
    v_slow(a, "a", 97); v_slow(a, "b", 97); v_slow(a, "c", 97)
    return a.text(), kd(K, 128, 100)

def red4(a, R, t):
    multiT(a, "v_permlane32_swap_b32", [(R, R+2), (R+1, R+3)])
    T16(a, R, R+1)
    rowall(a, [R])

def reducer(a):
    srd(a, 52, 16, 896); srd(a, 56, 34, 896)
    a(f"v_lshlrev_b32 v17, 4, v1\nv_mov_b32 v18, {hex(OOB)}\nv_cmp_gt_u32 vcc, 32, v1\nv_cndmask_b32 v19, v18, v17, vcc")
    a(f"s_lshl_b32 s8, s2, 12\ns_add_u32 s9, s8, {YB}\ns_add_u32 s8, s8, {YA}\ns_lshl_b32 s10, s2, 3")
    a("v_lshrrev_b32 v30, 4, v1\nv_lshlrev_b32 v30, 1, v30\nv_and_b32 v31, 15, v1\nv_cmp_eq_u32 vcc, 0, v31\nv_cndmask_b32 v31, v18, v30, vcc")
    a("buffer_load_ushort v29, v30, s[52:55], s10 offen")
    for n in range(4):
        a(f"buffer_load_dwordx4 v[{32+4*n}:{35+4*n}], v{19 if n==3 else 17}, s[48:51], s9 offen offset:{1024*n}")
    for n in range(4):
        a(f"buffer_load_dwordx4 v[{64+4*n}:{67+4*n}], v17, s[48:51], s8 offen offset:{1024*n} sc1")
    a("s_waitcnt vmcnt(4)")
    for r in range(4):
        a(f"v_add_f32 v{32+r}, v{32+r}, v{36+r}\nv_add_f32 v{40+r}, v{40+r}, v{44+r}\nv_add_f32 v{32+r}, v{32+r}, v{40+r}")
    red4(a, 32, 33)
    rnd(a, 32, 32)
    a("v_lshlrev_b32 v29, 16, v29")
    a(f"s_mov_b32 s96, {SPIN}")
    a("red_spin:")
    a("s_waitcnt vmcnt(0)")
    for n in range(4):
        R = 64+4*n
        a(f"v_max3_u32 v{40+n}, v{R}, v{R+1}, v{R+2}\nv_max_u32 v{40+n}, v{40+n}, v{R+3}")
    for n in range(4):
        a(f"v_cmp_eq_u32 s[{72+2*n}:{73+2*n}], -1, v{40+n}")
    a("s_or_b64 s[80:81], s[72:73], s[74:75]\ns_or_b64 s[82:83], s[76:77], s[78:79]\ns_or_b64 s[80:81], s[80:81], s[82:83]\ns_cbranch_scc0 red_ok")
    a("s_sub_u32 s96, s96, 1\ns_cmp_eq_u32 s96, 0\ns_cbranch_scc1 red_ok")
    a("s_sleep 2")
    for n in range(4):
        a(f"s_mov_b64 exec, s[{72+2*n}:{73+2*n}]\ns_cbranch_execz red_skip{n}")
        a(f"buffer_load_dwordx4 v[{64+4*n}:{67+4*n}], v17, s[48:51], s8 offen offset:{1024*n} sc1")
        a(f"red_skip{n}:")
    a("s_mov_b64 exec, -1\ns_branch red_spin")
    a("red_ok:")
    for r in range(4):
        a(f"v_add_f32 v{64+r}, v{64+r}, v{68+r}\nv_add_f32 v{72+r}, v{72+r}, v{76+r}\nv_add_f32 v{64+r}, v{64+r}, v{72+r}")
    red4(a, 64, 65)
    rnd(a, 64, 64)
    a("v_add_f32 v64, v64, v29")
    rnd(a, 64, 64)
    a("v_add_f32 v64, v64, v32\nv_cvt_pk_bf16_f32 v64, v64, v64")
    a("buffer_store_short v64, v31, s[56:59], s10 offen")

def tail0(a):
    a(f"v_lshlrev_b32 v{vT1}, 4, v1\nv_mov_b32 v{vT2}, 0")
    a(f"ds_read_b128 v[32:35], v{vT2} offset:512\nds_read_b128 v[36:39], v{vT2} offset:528")
    for w in range(4):
        a(f"ds_read_b128 v[{48+4*w}:{51+4*w}], v{vT1} offset:{1024+1024*w}")
    a("v_lshrrev_b32 v17, 5, v1\nv_lshlrev_b32 v17, 13, v17\nv_bfe_u32 v18, v1, 1, 3\nv_lshlrev_b32 v18, 10, v18\nv_add_u32 v17, v17, v18")
    a("v_and_b32 v18, 1, v1\nv_lshlrev_b32 v18, 5, v18\nv_add_u32 v17, v17, v18\nv_and_b32 v18, 16, v1\nv_add_u32 v17, v17, v18")
    a(f"v_mov_b32 v19, {hex(OOB)}\nv_cmp_eq_u32 vcc, 0, v1\nv_cndmask_b32 v18, v19, v1, vcc")
    a("v_and_b32 v28, 15, v1\nv_lshlrev_b32 v29, 3, v28\nv_lshlrev_b32 v28, 6, v28\nv_and_b32 v30, 48, v1\nv_add_u32 v28, v28, v30")
    a(f"s_lshl_b32 s8, s5, 14\ns_add_u32 s8, s8, {OIN}\ns_lshl_b32 s9, s6, 6\ns_add_u32 s9, s9, s8\ns_lshl_b32 s10, s6, 10\ns_add_u32 s8, s8, s10")
    a(f"s_lshl_b32 s10, s5, 7\ns_add_u32 s10, s10, {ML}\ns_lshl_b32 s11, s6, 3\ns_add_u32 s11, s11, s10")
    a("s_waitcnt lgkmcnt(4)")
    a("v_max3_f32 v40, v32, v33, v34\nv_max_f32 v40, v40, v35")
    for w in range(4): a(f"v_sub_f32 v{32+w}, v{32+w}, v40")
    for w in range(4): a(f"v_mul_f32 v{32+w}, s88, v{32+w}")
    for w in range(4): a(f"v_exp_f32 v{32+w}, v{32+w}")
    a("v_mul_f32 v41, v32, v36")
    for w in range(1, 4): a(f"v_fmac_f32 v41, v{32+w}, v{36+w}")
    a("s_waitcnt lgkmcnt(0)")
    for r in range(4): a(f"v_mul_f32 v{44+r}, v32, v{48+r}")
    for w in range(1, 4):
        for r in range(4): a(f"v_fmac_f32 v{44+r}, v{32+w}, v{48+4*w+r}")
    a("buffer_store_dwordx4 v[44:47], v17, s[48:51], s9 offen sc1")
    a("buffer_store_dwordx2 v[40:41], v18, s[48:51], s11 offen sc1")
    mask2(a, MK, 1, vT0, vT1)
    yaddr(a, 8, 9, 1, vT0, vT1)
    a(f"s_mov_b32 s96, {SPIN}")
    a("t0_spin:")
    a("buffer_load_dwordx4 v[32:35], v28, s[48:51], s8 offen sc1")
    a("buffer_load_dwordx2 v[36:37], v29, s[48:51], s10 offen sc1")
    a("s_waitcnt vmcnt(0)")
    a("v_max3_u32 v38, v32, v33, v34\nv_max3_u32 v38, v38, v35, v36\nv_max_u32 v38, v38, v37")
    a("v_cmp_eq_u32 vcc, -1, v38\ns_and_b64 exec, exec, vcc\ns_cbranch_execz t0_ok")
    a("s_sub_u32 s96, s96, 1\ns_cmp_eq_u32 s96, 0\ns_cbranch_scc1 t0_ok")
    a("s_sleep 2\ns_branch t0_spin")
    a("t0_ok:\ns_mov_b64 exec, -1")
    a(f"v_max_f32_dpp v38, v36, v36 row_ror:8 {FULL}")
    for r in (4, 2, 1): a(f"v_max_f32_dpp v38, v38, v38 row_ror:{r} {FULL}")
    a("v_sub_f32 v36, v36, v38\nv_mul_f32 v36, s88, v36\nv_exp_f32 v36, v36")
    for r in range(4): a(f"v_mul_f32 v{32+r}, v{32+r}, v36")
    a("v_mul_f32 v36, v36, v37")
    rowall(a, [36, 32, 33, 34, 35])
    a("v_rcp_f32 v37, v36")
    for r in range(4): fdiv(a, 32+r, 32+r, 36, 37, 40+r)
    for r in range(4): a(f"v_cvt_pk_bf16_f32 v{32+r}, v{32+r}, v{32+r}")
    for n in range(4):
        for r in range(4): a(f"v_and_b32 v{48+4*n+r}, v{32+n}, v{MK+r}")
    for n in range(4):
        for blk in range(4):
            D = f"v[{32+4*blk}:{35+4*blk}]"
            a(f"v_mfma_f32_16x16x32_bf16 {D}, v[{48+4*n}:{51+4*n}], {ring(n*4+blk)}, {'0' if n==0 else D}")
    a(f"s_lshl_b32 s8, s2, 4\ns_add_u32 s8, s8, {YA}")
    for blk in range(4):
        a(f"buffer_store_dwordx4 v[{32+4*blk}:{35+4*blk}], v{9 if blk==3 else 8}, s[48:51], s8 offen sc1")
        if blk < 3: a(f"s_add_u32 s8, s8, {32*4096}")

FORCE = None
if __name__ == "__main__":
    out = sys.argv[1]
    if len(sys.argv) > 2: FORCE = sys.argv[2]
    t1, k1 = pre_kernel(); t2, k2 = main_kernel()
    s = HEADER
    s += "; @launch kernel=pre_kernel grid=(256,1,1) block=(256,1,1) lds=0\n"
    s += "; @launch kernel=main_kernel grid=(256,1,1) block=(256,1,1) lds=8192\n"
    s += '.amdgcn_target "amdgcn-amd-amdhsa--gfx950"\n.text\n' + t1 + t2 + k1 + k2
    open(out, "w").write(s)
```

```python
import sys
from common import *

OPT = set(sys.argv[2:])
STAMP = "stamp" in OPT
MIXED = "mixed" in OPT
SPIN = 20000
SC   = 0x000000
OIN  = 0x200000
ML   = 0x240000
YA   = 0x250000
QP   = 0x2C0000
VOTE = 0x2E0000
RDY  = 0x2E9000
EPO  = 0x2F8000
GU   = 0x300000
WSSZ = 0x340000
STB  = 0x390000
VSTR = 4352

def stamp(a, i):
    if STAMP: a(f"s_memrealtime s[98:99]\ns_waitcnt lgkmcnt(0)\nv_writelane_b32 v200, s98, {i}")
def stamp_out(a):
    if STAMP:
        a(f"s_mov_b32 s50, 0x400000\ns_lshl_b32 s8, s2, 2\ns_add_u32 s8, s8, s3\ns_lshl_b32 s8, s8, 6\ns_add_u32 s8, s8, {STB}")
        a(f"v_lshlrev_b32 v201, 2, v1\nv_mov_b32 v202, {hex(OOB)}\nv_cmp_gt_u32 vcc, 16, v1\nv_cndmask_b32 v201, v202, v201, vcc\nbuffer_store_dword v200, v201, s[48:51], s8 offen")

RA, RB = 64, 128
P0 = 32
vLO, vHI, vQ, vSA, vSL, vSC = 2, 3, 4, 8, 9, 10
vLS, vP, vT0, vT1, vT2 = 12, 13, 14, 15, 16
MK, AA, ACC = 20, 24, 48
vMX, vSH, vSD = 52, 53, 54
vPO, vPM, vY, vY3 = 56, 57, 58, 59
vRP = 19
sOK, sOV, sO, sSO, sK, sTAG = 90, 91, 92, 93, 94, 89
sPO, sPM, sYA = 80, 81, 82
L_M, L_L, L_V, L_O, L_P = 512, 528, 544, 1024, 1024

def T_of(k): return (k&1)*0x101000 ^ ((k>>1)&1)*0x84000 ^ ((k>>2)&1)*0x40000 ^ (k>>3)*0x20000
def sb_off(a, base, kreg):
    a(f"s_and_b32 s95, s{kreg}, 1\ns_mul_i32 s{sO}, s95, 0x101000")
    a(f"s_bfe_u32 s95, s{kreg}, 0x10001\ns_mul_i32 s95, s95, 0x84000\ns_or_b32 s{sO}, s{sO}, s95")
    a(f"s_bfe_u32 s95, s{kreg}, 0x10002\ns_lshl_b32 s95, s95, 18\ns_or_b32 s{sO}, s{sO}, s95")
    a(f"s_bfe_u32 s95, s{kreg}, 0x10003\ns_lshl_b32 s95, s95, 17\ns_or_b32 s{sO}, s{sO}, s95")
    a(f"s_xor_b32 s{sO}, s{sO}, s{base}")
def sb_const(a, base, k, dst=sO):
    a(f"s_xor_b32 s{dst}, s{base}, {hex(T_of(k))}" if k else f"s_mov_b32 s{dst}, s{base}")
def score_off(a, dst, src=sO):
    a(f"s_lshr_b32 s95, s{src}, 17\ns_lshl_b32 s95, s95, 10\ns_bfe_u32 s{dst}, s{src}, 0x3000c\ns_lshl_b32 s{dst}, s{dst}, 7\ns_or_b32 s{dst}, s{dst}, s95")
def ring(R, j): return f"v[{R+4*j}:{R+4*j+3}]"
def kvload(a, R, j, srdname, so=sO):
    a(f"buffer_load_dwordx4 {ring(R,j)}, v{vLO if j%2==0 else vHI}, {srdname}, s{so} offen offset:{(j//2)*512} nt")
SK, SV, SW = "s[40:43]", "s[44:47]", "s[48:51]"

def k_body(a, R, wait, refill):
    for j in range(16):
        w = wait(j)
        if w is not None: a(f"s_waitcnt vmcnt({w})")
        r = R+4*j
        a(f"v_dot2_f32_bf16 v{P0+j}, v{r}, v{vQ}, 0")
        for i in range(1, 4): a(f"v_dot2_f32_bf16 v{P0+j}, v{r+i}, v{vQ+i}, v{P0+j}")
        refill(j)
    for j in range(8):
        a(f"v_add_f32_dpp v{P0+j}, v{P0+j}, v{P0+j} row_ror:8 row_mask:0xf bank_mask:0x3")
    for j in range(8):
        a(f"v_add_f32_dpp v{P0+j}, v{P0+8+j}, v{P0+8+j} row_ror:8 row_mask:0xf bank_mask:0xc")
    for j in range(4):
        a(f"v_add_f32_dpp v{P0+j}, v{P0+j}, v{P0+j} row_shl:4 row_mask:0xf bank_mask:0x5")
    for j in range(4):
        a(f"v_add_f32_dpp v{P0+j}, v{P0+4+j}, v{P0+4+j} row_shr:4 row_mask:0xf bank_mask:0xa")
    for j in range(4):
        a(f"v_add_f32_dpp v{P0+j}, v{P0+j}, v{P0+j} quad_perm:[2,3,0,1] {FULL}")
    a(f"v_cndmask_b32 v{P0}, v{P0}, v{P0+2}, s[84:85]\nv_cndmask_b32 v{P0+1}, v{P0+1}, v{P0+3}, s[84:85]")
    for j in range(2):
        a(f"v_add_f32_dpp v{P0+j}, v{P0+j}, v{P0+j} quad_perm:[1,0,3,2] {FULL}")
    a(f"v_cndmask_b32 v{P0}, v{P0}, v{P0+1}, s[86:87]")
    B16(a, P0, P0+1)
    a(f"v_mov_b32 v{P0+1}, v{P0}\nv_permlane32_swap_b32 v{P0}, v{P0+1}\nv_cvt_pk_bf16_f32 v{vSD}, v{P0}, v{P0+1}")
    a(f"buffer_store_dwordx2 v[{vSD}:{vSD+1}], v{vSA}, {SW}, s{sSO} offen sc1")

def score_load(a, so):
    a(f"buffer_load_dwordx2 v[{vSC}:{vSC+1}], v{vSL}, {SW}, s{so} offen sc1")

def v_head(a, tag, next_score):
    a("s_waitcnt vmcnt(16)")
    a(f"v_cmp_ne_u32 vcc, s{sTAG}, v{vSC+1}\ns_cbranch_vccnz v_slow_{tag}")
    a(f"v_ok_{tag}:")
    a(f"v_lshlrev_b32 v{vT2}, v{vSH}, v{vSC}\nv_and_b32 v{vT2}, 0xffff0000, v{vT2}")
    if next_score: next_score()
    a(f"v_max_f32_dpp v{vT0}, v{vT2}, v{vT2} row_ror:8 {FULL}")
    for r in (4, 2, 1): a(f"v_max_f32_dpp v{vT0}, v{vT0}, v{vT0} row_ror:{r} {FULL}")
    B32(a, vT0, vT1, "v_max_f32")
    a(f"v_max_f32 v{vT0}, v{vT0}, v{vMX}")
    a(f"v_sub_f32 v{vT1}, v{vMX}, v{vT0}\nv_sub_f32 v{vT2}, v{vT2}, v{vT0}")
    a(f"v_mov_b32 v{vMX}, v{vT0}")
    a(f"v_mul_f32 v{vT1}, s88, v{vT1}\nv_mul_f32 v{vT2}, s88, v{vT2}")
    a(f"v_exp_f32 v{vT1}, v{vT1}\nv_exp_f32 v{vT2}, v{vT2}")
    a(f"v_cvt_pk_bf16_f32 v{vP}, v{vT2}, v{vT2}")
    a(f"v_fma_f32 v{vLS}, v{vLS}, v{vT1}, v{vT2}")
    for r in range(4): a(f"v_mul_f32 v{ACC+r}, v{ACC+r}, v{vT1}")

def v_slow(a, tag, soff):
    a(f"v_slow_{tag}:")
    a(f"s_mov_b32 s96, {SPIN}")
    a(f"v_spin_{tag}:")
    a("s_sleep 4"); score_load(a, soff); a("s_waitcnt vmcnt(0)")
    a(f"v_cmp_ne_u32 vcc, s{sTAG}, v{vSC+1}\ns_cbranch_vccz v_ok_{tag}")
    a(f"s_sub_u32 s96, s96, 1\ns_cmp_lg_u32 s96, 0\ns_cbranch_scc1 v_spin_{tag}\ns_branch v_ok_{tag}")

def v_body(a, refill, waits):
    def build(j):
        for r in range(4):
            a(f"v_and_b32_dpp v{AA+4*(j&1)+r}, v{vP}, v{MK+r} row_newbcast:{j} {FULL}")
    build(0)
    for j in range(16):
        a(f"s_waitcnt vmcnt({waits(j)})")
        A = AA+4*(j&1)
        a(f"v_mfma_f32_16x16x32_bf16 v[{ACC}:{ACC+3}], v[{A}:{A+3}], {ring(RA,j)}, v[{ACC}:{ACC+3}]")
        if j < 15: build(j+1)
        refill(j)

def y_stores(a, D, srcfn):
    a(f"s_mov_b32 s8, s{sYA}")
    for blk in range(4):
        a(f"buffer_store_dwordx4 {srcfn(blk)}, v{vY3 if blk==3 else vY}, {SW}, s8 offen sc1")
        if blk < 3: a(f"s_add_u32 s8, s8, {32*4096}")

def kernel():
    a = Asm(); K = NAME + "_kernel"
    a(f".globl {K}\n.p2align 8\n.type {K},@function\n{K}:")
    a("s_cmp_ge_u32 s2, 256\ns_cbranch_scc1 main_done")
    stamp(a, 0)
    a("s_load_dwordx16 s[16:31], s[0:1], 0\ns_load_dwordx8 s[32:39], s[0:1], 64")
    a("v_lshrrev_b32 v1, 6, v0\nv_readfirstlane_b32 s3, v1\nv_and_b32 v1, 63, v0")
    a("s_lshr_b32 s5, s2, 4\ns_and_b32 s6, s2, 15")
    a("v_lshlrev_b32 v17, 4, v1")
    a("v_lshrrev_b32 v18, 3, v1\nv_and_b32 v14, 7, v1\nv_lshlrev_b32 v14, 4, v14\nv_lshl_add_u32 v19, v18, 13, v14")
    a("v_mul_u32_u24 v47, 3584, v18\nv_add_u32 v47, v47, v14")
    a(f"v_mov_b32 v15, {hex(OOB)}\nv_cmp_gt_u32 vcc, 32, v1\nv_cndmask_b32 v14, v15, v19, vcc")
    a("v_cmp_gt_u32 vcc, 48, v1\nv_cndmask_b32 v16, v15, v47, vcc")
    a("v_lshlrev_b32 v18, 1, v18")
    a(f"v_and_b32 v{vLO}, 31, v1\nv_lshlrev_b32 v{vLO}, 4, v{vLO}\nv_lshrrev_b32 v{vHI}, 5, v1\nv_lshlrev_b32 v{vHI}, 15, v{vHI}\nv_add_u32 v{vLO}, v{vLO}, v{vHI}\nv_add_u32 v{vHI}, 0x10000, v{vLO}")
    a("s_bfe_u32 s7, s2, 0x20002\ns_mul_i32 s8, s7, 112\ns_mul_i32 s9, s3, 28\ns_add_u32 s8, s8, s9\ns_lshl_b32 s9, s8, 1")
    a("s_lshl_b32 s8, s8, 13\ns_lshl_b32 s10, s5, 9\ns_add_u32 s8, s8, s10\ns_and_b32 s10, s2, 3\ns_lshl_b32 s10, s10, 7\ns_add_u32 s8, s8, s10")
    a("s_lshr_b32 s11, s2, 3\ns_and_b32 s13, s2, 7")
    a(f"s_mul_i32 s12, s13, 56\ns_mul_i32 s14, s3, 14\ns_add_u32 s12, s12, s14\ns_mul_i32 s14, s12, 3584\ns_lshl_b32 s12, s12, 1\ns_lshl_b32 s15, s11, 7\ns_add_u32 s14, s14, s15")
    a("s_lshl_b32 s83, s11, 23\ns_and_b32 s10, s3, 1\ns_lshl_b32 s10, s10, 22\ns_or_b32 s83, s83, s10\ns_lshr_b32 s4, s3, 1\ns_lshl_b32 s10, s4, 21\ns_or_b32 s83, s83, s10")
    a("s_lshr_b32 s10, s2, 1\ns_lshr_b32 s15, s2, 7\ns_xor_b32 s10, s10, s15\ns_andn2_b32 s10, 1, s10\ns_lshl_b32 s10, s10, 12\ns_or_b32 s83, s83, s10")
    a("s_lshr_b32 s10, s2, 6\ns_xor_b32 s10, s10, s2\ns_and_b32 s10, s10, 1\ns_lshl_b32 s10, s10, 14\ns_or_b32 s83, s83, s10")
    a(f"s_bfe_u32 s10, s2, 0x10002\ns_xor_b32 s4, s4, s10\ns_lshl_b32 s10, s10, 13\ns_or_b32 s{sOK}, s83, s10")
    a("s_waitcnt lgkmcnt(0)")
    a(f"s_mov_b32 s10, {EPO}\ns_load_dword s{sTAG}, s[38:39], s10")
    srd(a, 52, 16, 896); srd(a, 56, 22, 448*8192)
    a("buffer_load_dwordx4 v[60:63], v17, s[52:55], 0 offen")
    for n in range(4):
        a(f"buffer_load_ushort v{40+n}, v18, s[52:55], s9 offen offset:{16*n}")
    for n in range(4):
        a(f"buffer_load_dwordx4 v[{160+4*n}:{163+4*n}], v{19 if n<3 else 14}, s[56:59], s8 offen nt")
        if n < 3: a(f"s_add_u32 s8, s8, {8*8192}")
    srd(a, 60, 28, 448*3584); srd(a, 64, 30, 448*3584); srd(a, 68, 32, 1792*896)
    srd(a, 40, 18, 1 << 28); srd(a, 44, 20, 1 << 28); srd(a, 48, 38, WSSZ)
    for n in range(2):
        a(f"buffer_load_ushort v{44+n}, v18, s[52:55], s12 offen offset:{16*n}")
    for n in range(2):
        a(f"buffer_load_dwordx4 v[{176+4*n}:{179+4*n}], v{47 if n==0 else 16}, s[60:63], s14 offen nt")
        a(f"buffer_load_dwordx4 v[{184+4*n}:{187+4*n}], v{47 if n==0 else 16}, s[64:67], s14 offen nt")
        if n == 0: a(f"s_add_u32 s14, s14, {8*3584}")
    sb_const(a, sOK, 0)
    for j in range(8): kvload(a, RA, j, SK)
    stamp(a, 1)
    a("s_cmp_lt_u32 s3, 2\ns_cselect_b32 s72, s18, s20\ns_cselect_b32 s73, s19, s21")
    a("s_lshl_b32 s74, s11, 23\ns_and_b32 s75, s2, 1\ns_lshl_b32 s75, s75, 22\ns_or_b32 s74, s74, s75")
    a("s_bfe_u32 s76, s2, 0x10001\ns_lshl_b32 s75, s76, 21\ns_or_b32 s74, s74, s75")
    a("s_bfe_u32 s75, s2, 0x10002\ns_lshl_b32 s75, s75, 11\ns_or_b32 s74, s74, s75\ns_or_b32 s74, s74, 0x1e0000")
    a("s_and_b32 s77, s3, 1\ns_mul_i32 s75, s77, 0x7000\ns_xor_b32 s74, s74, s75")
    a("s_xor_b32 s75, s74, 0x8400\ns_load_dword s78, s[72:73], s75")
    a("s_getreg_b32 s79, hwreg(HW_REG_XCC_ID)\ns_bfe_u32 s79, s79, 0x10002")
    a("s_xor_b32 s76, s76, s79\ns_xor_b32 s76, s76, s77")
    a(f"v_and_b32 v{vSL}, 15, v1\nv_lshlrev_b32 v{vSL}, 3, v{vSL}\nv_cmp_gt_u32 vcc, 16, v1\nv_cndmask_b32 v{vSA}, v15, v{vSL}, vcc")
    a(f"v_cmp_gt_u32 vcc, 32, v1\nv_cndmask_b32 v{vSH}, 0, 16, vcc")
    a("s_mov_b32 s84, 0xcccccccc\ns_mov_b32 s85, 0xcccccccc\ns_mov_b32 s86, 0xaaaaaaaa\ns_mov_b32 s87, 0xaaaaaaaa")
    a(f"s_mov_b32 s88, {fl(CEXP)}")
    a(f"v_lshrrev_b32 v{vPO}, 5, v1\nv_lshlrev_b32 v{vPO}, 13, v{vPO}\nv_bfe_u32 v12, v1, 1, 3\nv_lshlrev_b32 v12, 10, v12\nv_add_u32 v{vPO}, v{vPO}, v12")
    a(f"v_and_b32 v12, 1, v1\nv_lshlrev_b32 v12, 5, v12\nv_add_u32 v{vPO}, v{vPO}, v12\nv_and_b32 v12, 16, v1\nv_add_u32 v{vPO}, v{vPO}, v12")
    a(f"v_cmp_eq_u32 vcc, 0, v1\nv_cndmask_b32 v{vPM}, v15, v1, vcc")
    yaddr(a, vY, vY3, 1, 12, 13)
    a(f"s_lshl_b32 s{sPO}, s5, 14\ns_lshl_b32 s10, s6, 6\ns_add_u32 s{sPO}, s{sPO}, s10\ns_add_u32 s{sPO}, s{sPO}, {OIN}")
    a(f"s_lshl_b32 s{sPM}, s2, 3\ns_add_u32 s{sPM}, s{sPM}, {ML}\ns_lshl_b32 s{sYA}, s2, 4\ns_add_u32 s{sYA}, s{sYA}, {YA}")
    a("s_cmp_eq_u32 s3, 0\ns_cselect_b64 vcc, -1, 0")
    for r in (vPO, vPM, vY, vY3): a(f"v_cndmask_b32 v{r}, v15, v{r}, vcc")
    a(f"v_mul_u32_u24 v{vRP}, {VSTR}, v1\ns_cselect_b64 vcc, 0xff, 0\nv_cndmask_b32 v{vRP}, v15, v{vRP}, vcc")
    a("s_waitcnt vmcnt(14)")
    stamp(a, 8)
    vM, vS, vR = 20, 21, 22
    layernorm_stats(a, 60, 32, vM, vS, vR, 12, 13)
    for n in range(4):
        normalize(a, 40+n, 10, 11, vM, vS, vR, 12, 13)
        gemv8(a, 32, 160+4*n, 10, 11, n == 0)
    a("s_waitcnt vmcnt(8)")
    aG, aU = 24, 160
    for n in range(2):
        normalize(a, 44+n, 10, 11, vM, vS, vR, 12, 13)
        gemv8(a, aG, 176+4*n, 10, 11, n == 0)
        gemv8(a, aU, 184+4*n, 10, 11, n == 0)
    red8(a, 32); red8(a, aG); red8(a, aU)
    a(f"v_lshlrev_b32 v12, 2, v0\nds_write_b32 v12, v32 offset:{L_P}\nds_write_b32 v12, v{aG} offset:{L_P+1024}\nds_write_b32 v12, v{aU} offset:{L_P+2048}")
    a("v_and_b32 v13, 7, v1\nv_lshrrev_b32 v10, 3, v1\nv_lshlrev_b32 v10, 3, v10")
    a("s_cmp_eq_u32 s3, 0\ns_cselect_b32 s9, 6, 10\nv_lshlrev_b32 v13, s9, v13\nv_add_u32 v13, v13, v10")
    a(f"s_lshl_b32 s8, s5, 13\ns_add_u32 s8, s8, {QP}\ns_lshl_b32 s9, s3, 9\ns_add_u32 s15, s8, s9")
    a("s_lshl_b32 s9, s7, 11\ns_add_u32 s8, s8, s9\ns_and_b32 s9, s2, 3\ns_lshl_b32 s9, s9, 9\ns_add_u32 s8, s8, s9")
    a(f"s_lshl_b32 s9, s11, 13\ns_lshl_b32 s10, s13, 6\ns_add_u32 s9, s9, s10\ns_lshl_b32 s10, s3, 9\ns_add_u32 s9, s9, s10\ns_add_u32 s9, s9, {GU-512}")
    a(f"s_cmp_lt_u32 s11, 28\ns_cselect_b32 s10, 0, {hex(OOB)}\ns_cmp_eq_u32 s3, 3\ns_cselect_b32 s10, {hex(OOB)}, s10\ns_cmp_eq_u32 s3, 0\ns_cselect_b32 s8, s8, s9\ns_cselect_b32 s10, 0, s10\nv_or_b32 v13, s10, v13")
    a("s_min_u32 s9, s3, 2\ns_lshl_b32 s9, s9, 10\nv_lshl_add_u32 v12, v1, 2, s9")
    a(f"s_waitcnt lgkmcnt(0)\ns_barrier")
    a(f"ds_read2st64_b32 v[32:33], v12 offset0:{L_P//256} offset1:{L_P//256+1}\nds_read2st64_b32 v[34:35], v12 offset0:{L_P//256+2} offset1:{L_P//256+3}")
    a(f"s_add_u32 s{sTAG}, s{sTAG}, 0x9e3779b9\nv_mov_b32 v37, s{sTAG}\nv_mov_b32 v{vSD+1}, s{sTAG}")
    a("s_waitcnt lgkmcnt(0)\nv_add_f32 v32, v32, v33\nv_add_f32 v34, v34, v35\nv_add_f32 v36, v32, v34")
    a(f"buffer_store_dwordx2 v[36:37], v13, {SW}, s8 offen sc1")
    stamp(a, 9)
    for j in range(8, 16): kvload(a, RA, j, SK)
    sb_const(a, sOK, 1)
    for j in range(8): kvload(a, RB, j, SK)
    for i in range(2):
        a("s_waitcnt lgkmcnt(0)\ns_memtime s[100:101]\ns_waitcnt lgkmcnt(0)")
        a(f"s_load_dword s78, s[72:73], s74\ns_waitcnt lgkmcnt(0)\ns_memtime s[96:97]\ns_waitcnt lgkmcnt(0)")
        a(f"s_sub_u32 s{8+i}, s96, s100")
        if i == 0: a("s_xor_b32 s74, s74, 0x2000")
    a("s_cmp_lt_u32 s9, s8\ns_cselect_b32 s8, 1, 0\ns_xor_b32 s8, s8, s76\ns_lshl_b32 s8, s8, s3")
    stamp(a, 10)
    a("v_lshlrev_b32 v17, 3, v1")
    def qgather():
        for rb in range(4):
            if rb == 2: a("s_add_u32 s9, s15, 4096")
            a(f"buffer_load_dwordx2 v[{32+2*rb}:{33+2*rb}], v17, {SW}, s{15 if rb<2 else 9} offen offset:{2048*(rb&1)} sc1")
    qgather()
    for j in range(8, 16): kvload(a, RB, j, SK)
    a(f"v_mov_b32 v12, s8\ns_lshl_b32 s9, s3, 2\nv_mov_b32 v13, s9\nds_write_b32 v13, v12 offset:{L_V}")
    mask1(a, MK, 1, vT0, vT1)
    a(f"v_mov_b32 v{vMX}, 0xff800000\nv_mov_b32 v{vLS}, 0")
    for r in range(4): a(f"v_mov_b32 v{ACC+r}, 0")
    a(f"s_mov_b32 s96, {SPIN}\ns_waitcnt vmcnt(8)")
    a("q_chk:")
    a(f"v_xor_b32 v33, s{sTAG}, v33\nv_xor_b32 v35, s{sTAG}, v35\nv_xor_b32 v37, s{sTAG}, v37\nv_xor_b32 v39, s{sTAG}, v39")
    a("v_or3_b32 v33, v33, v35, v37\nv_or_b32 v33, v33, v39\nv_cmp_ne_u32 vcc, 0, v33\ns_cbranch_vccnz q_spin")
    a("q_ok:")
    a("v_add_f32 v32, v32, v34\nv_add_f32 v36, v36, v38\nv_add_f32 v32, v32, v36")
    a("v_cvt_pk_bf16_f32 v32, v32, v32\nv_lshlrev_b32 v33, 1, v0\nds_write_b16 v33, v32")
    a("v_and_b32 v34, 31, v1\nv_lshlrev_b32 v34, 4, v34\nv_mov_b32 v35, 0")
    a(f"s_waitcnt lgkmcnt(0)\ns_barrier\nds_read_b128 v[{vQ}:{vQ+3}], v34")
    a(f"ds_read_b128 v[36:39], v35 offset:{L_V}")
    a(f"s_lshl_b32 s8, s79, 4\ns_andn2_b32 s9, s{sTAG}, 63\ns_or_b32 s8, s8, s9\ns_lshl_b32 s9, s2, 2\ns_add_u32 s9, s9, {VOTE}")
    a("s_waitcnt lgkmcnt(0)\nv_or3_b32 v36, v36, v37, v38\nv_or3_b32 v36, v36, v39, s8")
    a(f"buffer_store_dword v36, v{vRP}, {SW}, s9 offen sc1")
    stamp(a, 2)
    sb_const(a, sOK, 0, 97); score_off(a, sSO, 97)
    sb_const(a, sOK, 2)
    k_body(a, RA, lambda j: None, lambda j: kvload(a, RA, j, SK))
    sb_const(a, sOK, 1, 97); score_off(a, sSO, 97)
    k_body(a, RB, lambda j: 18 if j == 8 else None, lambda j: None)
    score_off(a, sSO)
    sb_const(a, sOK, 3)
    a(f"s_and_b32 s15, s11, 7\ns_mul_i32 s15, s15, {VSTR}\ns_add_u32 s15, s15, {VOTE}\nv_lshlrev_b32 v17, 4, v1")
    a(f"buffer_load_dwordx4 v[60:63], v17, {SW}, s15 offen sc1")
    k_body(a, RA, lambda j: 18, lambda j: kvload(a, RA, j, SK))
    score_off(a, sSO)
    stamp(a, 11)
    a(f"s_mov_b32 s96, {SPIN}\ns_waitcnt vmcnt(17)")
    a("vt_chk:")
    for r in range(4): a(f"v_xor_b32 v{32+r}, s{sTAG}, v{60+r}")
    a("v_or3_b32 v32, v32, v33, v34\nv_or_b32 v32, v32, v35\nv_cmp_lt_u32 vcc, 63, v32\ns_cbranch_vccnz vt_spin")
    a("vt_ok:")
    for r in range(4): a(f"v_and_b32 v{32+r}, 3, v{60+r}\nv_and_b32 v{36+r}, 12, v{60+r}")
    a("v_bcnt_u32_b32 v32, v32, 0\nv_bcnt_u32_b32 v36, v36, 0")
    for r in range(1, 4): a(f"v_bcnt_u32_b32 v32, v{32+r}, v32\nv_bcnt_u32_b32 v36, v{36+r}, v36")
    a("v_lshl_add_u32 v32, v36, 16, v32")
    waveall(a, 32, 33, "v_add_u32")
    a("s_andn2_b32 s8, s2, 4\ns_lshr_b32 s8, s8, 2")
    for r in range(4): a(f"v_readlane_b32 s{72+r}, v{60+r}, s8")
    a("v_readfirstlane_b32 s9, v32")
    a("s_bitcmp1_b32 s2, 0\ns_cselect_b32 s72, s73, s72\ns_cselect_b32 s74, s75, s74\ns_bitcmp1_b32 s2, 1\ns_cselect_b32 s72, s74, s72")
    a("s_bfe_u32 s72, s72, 0x10004\ns_xor_b32 s4, s4, s72")
    if STAMP: a("v_writelane_b32 v200, s9, 15")
    if not MIXED:
        a(f"s_and_b32 s8, s9, 0xffff\ns_cmp_gt_u32 s8, 256\ns_cselect_b32 s8, 1, 0\ns_xor_b32 s8, s8, s4\ns_lshl_b32 s8, s8, 13\ns_or_b32 s{sOK}, s83, s8")
        a(f"s_lshr_b32 s8, s9, 16\ns_cmp_gt_u32 s8, 256\ns_cselect_b32 s8, 1, 0\ns_xor_b32 s8, s8, s4\ns_lshl_b32 s8, s8, 13\ns_or_b32 s{sOV}, s83, s8")
    else:
        a(f"s_mov_b32 s{sOV}, s{sOK}")
    stamp(a, 12)
    a(f"s_mov_b32 s{sK}, 4")
    a("k_loop:")
    sb_off(a, sOK, sK)
    k_body(a, RA, lambda j: 16, lambda j: kvload(a, RA, j, SK))
    score_off(a, sSO)
    a(f"s_add_u32 s{sK}, s{sK}, 1\ns_cmp_lt_u32 s{sK}, 16\ns_cbranch_scc1 k_loop")
    a(f"s_mov_b32 s{sO}, s{sOV}")
    score_off(a, 97)
    a("v_mov_b32 v24, -1\nv_mov_b32 v25, -1\nv_mov_b32 v26, -1\nv_mov_b32 v27, -1")
    a(f"buffer_store_dwordx4 v[24:27], v{vPO}, {SW}, s{sPO} offen sc1")
    a(f"buffer_store_dwordx2 v[24:25], v{vPM}, {SW}, s{sPM} offen sc1")
    y_stores(a, 24, lambda blk: "v[24:27]")
    score_load(a, 97)
    k_body(a, RA, lambda j: 23, lambda j: kvload(a, RA, j, SV))
    a(f"s_lshl_b32 s9, s2, 2\ns_add_u32 s9, s9, {RDY}\ns_waitcnt vmcnt(18)")
    a(f"buffer_store_dword v{vSD+1}, v{vRP}, {SW}, s9 offen sc1")
    a(f"s_mov_b32 s{sK}, 1")
    stamp(a, 3)
    a("v_loop:")
    sb_off(a, sOV, sK)
    score_off(a, sSO)
    v_head(a, "a", lambda: score_load(a, sSO))
    v_body(a, lambda j: kvload(a, RA, j, SV), lambda j: 16)
    a(f"s_mov_b32 s97, s{sSO}")
    a(f"s_add_u32 s{sK}, s{sK}, 1\ns_cmp_lt_u32 s{sK}, 16\ns_cbranch_scc1 v_loop")
    a(f"s_add_u32 s15, s15, {RDY-VOTE}")
    def rdy(): a(f"buffer_load_dwordx4 v[60:63], v17, {SW}, s15 offen sc1")
    a("s_cmp_eq_u32 s3, 0\ns_cbranch_scc1 v_last0")
    v_head(a, "b", rdy)
    v_body(a, lambda j: None, lambda j: 16-j)
    a("s_branch v_end")
    a("v_last0:")
    srd(a, 52, 24, 4096*896)
    a("v_lshrrev_b32 v46, 4, v1\nv_mul_u32_u24 v19, 1792, v46\nv_and_b32 v18, 15, v1\nv_lshlrev_b32 v18, 4, v18\nv_lshl_add_u32 v46, v19, 1, v18\nv_add_u32 v19, v19, v18")
    a("v_and_b32 v18, 7, v1\nv_lshlrev_b32 v18, 6, v18\nv_and_b32 v47, 56, v1\nv_add_u32 v18, v18, v47")
    a(f"s_mul_i32 s10, s2, {16*896}\ns_min_u32 s14, s2, 223\ns_mul_i32 s14, s14, {8*896}\ns_lshl_b32 s12, s2, 10\ns_add_u32 s12, s12, {GU}")
    def wd():
        rdy(); gu_load(a)
        for i in range(8):
            a(f"buffer_load_dwordx4 {ring(RB,i)}, v19, s[68:71], s14 offen offset:{(i//4)*896+(i%4)*256} nt")
    v_head(a, "c", wd)
    v_body(a, lambda j: a(f"buffer_load_dwordx4 {ring(RA,j)}, v46, s[52:55], s10 offen offset:{(j//4)*896+(j%4)*256} nt"), lambda j: 26)
    a("v_end:")
    stamp(a, 4)
    rowall(a, [vLS]); B32(a, vLS, vT0)
    a(f"v_lshlrev_b32 v{vT1}, 4, v0\nds_write_b128 v{vT1}, v[{ACC}:{ACC+3}] offset:{L_O}")
    a(f"s_lshl_b32 s8, s3, 2\nv_mov_b32 v{vT2}, s8\nds_write_b32 v{vT2}, v{vMX} offset:{L_M}\nds_write_b32 v{vT2}, v{vLS} offset:{L_L}")
    a("s_waitcnt lgkmcnt(0)\ns_barrier")
    a("s_cmp_eq_u32 s3, 0\ns_cbranch_scc1 tail0")
    a("s_cmp_lg_u32 s3, 1\ns_cbranch_scc1 main_fin\ns_cmp_ge_u32 s2, 112\ns_cbranch_scc1 main_fin")
    reducer(a)
    a("s_branch main_fin")
    a("tail0:")
    tail0(a)
    a("main_fin:")
    stamp(a, 7); stamp_out(a)
    a("main_done:\ns_endpgm")
    v_slow(a, "a", 97); v_slow(a, "b", 97); v_slow(a, "c", 97)
    a("q_spin:\ns_sub_u32 s96, s96, 1\ns_cmp_eq_u32 s96, 0\ns_cbranch_scc1 q_ok\ns_sleep 2")
    qgather()
    a("s_waitcnt vmcnt(0)\ns_branch q_chk")
    a("vt_spin:\ns_sub_u32 s96, s96, 1\ns_cmp_eq_u32 s96, 0\ns_cbranch_scc1 vt_ok\ns_sleep 2")
    a(f"buffer_load_dwordx4 v[60:63], v17, {SW}, s15 offen sc1\ns_waitcnt vmcnt(0)\ns_branch vt_chk")
    return a.text(), kd(K, 208 if STAMP else 192, 102)

def gu_load(a):
    a(f"buffer_load_dwordx2 v[42:43], v18, {SW}, s12 offen sc1\nbuffer_load_dwordx2 v[32:33], v18, {SW}, s12 offen offset:512 sc1")

def rdy_check(a, tag, extra, extra_load):
    a(f"s_mov_b32 s96, {SPIN}")
    a(f"rdy_chk_{tag}:")
    for r in range(4): a(f"v_xor_b32 v{24+r}, s{sTAG}, v{60+r}")
    a("v_or3_b32 v24, v24, v25, v26\nv_or_b32 v24, v24, v27")
    extra()
    a(f"v_cmp_ne_u32 vcc, 0, v24\ns_cbranch_vccz rdy_ok_{tag}")
    a(f"s_sub_u32 s96, s96, 1\ns_cmp_eq_u32 s96, 0\ns_cbranch_scc1 rdy_ok_{tag}\ns_sleep 2")
    a(f"buffer_load_dwordx4 v[60:63], v17, {SW}, s15 offen sc1")
    extra_load()
    a(f"s_waitcnt vmcnt(0)\ns_branch rdy_chk_{tag}")
    a(f"rdy_ok_{tag}:")

def red4(a, R):
    multiT(a, "v_permlane32_swap_b32", [(R, R+2), (R+1, R+3)])
    T16(a, R, R+1)
    rowall(a, [R])

def reducer(a):
    srd(a, 52, 16, 896); srd(a, 56, 34, 896)
    a("s_waitcnt vmcnt(0)")
    rdy_check(a, "r", lambda: None, lambda: None)
    a(f"v_mov_b32 v18, {hex(OOB)}")
    a(f"s_lshl_b32 s8, s2, 12\ns_add_u32 s8, s8, {YA}\ns_lshl_b32 s10, s2, 3")
    a("v_lshrrev_b32 v30, 4, v1\nv_lshlrev_b32 v30, 1, v30\nv_and_b32 v31, 15, v1\nv_cmp_eq_u32 vcc, 0, v31\nv_cndmask_b32 v31, v18, v30, vcc")
    a("buffer_load_ushort v29, v30, s[52:55], s10 offen")
    for n in range(4):
        a(f"buffer_load_dwordx4 v[{64+4*n}:{67+4*n}], v17, {SW}, s8 offen offset:{1024*n} sc1")
    a(f"s_mov_b32 s96, {SPIN}")
    a("red_spin:")
    a("s_waitcnt vmcnt(0)")
    for n in range(4):
        R = 64+4*n
        a(f"v_max3_u32 v{40+n}, v{R}, v{R+1}, v{R+2}\nv_max_u32 v{40+n}, v{40+n}, v{R+3}")
    for n in range(4):
        a(f"v_cmp_eq_u32 s[{72+2*n}:{73+2*n}], -1, v{40+n}")
    a("s_or_b64 s[80:81], s[72:73], s[74:75]\ns_or_b64 s[82:83], s[76:77], s[78:79]\ns_or_b64 s[80:81], s[80:81], s[82:83]\ns_cbranch_scc0 red_ok")
    a("s_sub_u32 s96, s96, 1\ns_cmp_eq_u32 s96, 0\ns_cbranch_scc1 red_ok")
    a("s_sleep 2")
    for n in range(4):
        a(f"s_mov_b64 exec, s[{72+2*n}:{73+2*n}]\ns_cbranch_execz red_skip{n}")
        a(f"buffer_load_dwordx4 v[{64+4*n}:{67+4*n}], v17, {SW}, s8 offen offset:{1024*n} sc1")
        a(f"red_skip{n}:")
    a("s_mov_b64 exec, -1\ns_branch red_spin")
    a("red_ok:")
    stamp(a, 6)
    for r in range(4):
        a(f"v_add_f32 v{64+r}, v{64+r}, v{68+r}\nv_add_f32 v{72+r}, v{72+r}, v{76+r}")
    for r in range(4): a(f"v_add_f32 v{64+r}, v{64+r}, v{72+r}")
    red4(a, 64)
    a("v_lshlrev_b32 v29, 16, v29\nv_add_f32 v64, v64, v29\nv_cvt_pk_bf16_f32 v64, v64, v64")
    a("buffer_store_short v64, v31, s[56:59], s10 offen")
    a("s_cmp_lg_u32 s2, 0\ns_cbranch_scc1 main_fin")
    a(f"s_mov_b32 s8, {EPO}\nv_cmp_eq_u32 vcc, 0, v1\nv_cndmask_b32 v31, v18, v1, vcc\nbuffer_store_dword v{vSD+1}, v31, {SW}, s8 offen")

def tail0(a):
    a(f"v_lshlrev_b32 v{vT1}, 4, v1\nv_mov_b32 v{vT2}, 0")
    a(f"ds_read_b128 v[28:31], v{vT2} offset:{L_M}\nds_read_b128 v[36:39], v{vT2} offset:{L_L}")
    for w in range(4):
        a(f"ds_read_b128 v[{160+4*w}:{163+4*w}], v{vT1} offset:{L_O+1024*w}")
    a("s_waitcnt lgkmcnt(4)")
    a("v_max3_f32 v40, v28, v29, v30\nv_max_f32 v40, v40, v31")
    for w in range(4): a(f"v_sub_f32 v{28+w}, v{28+w}, v40")
    for w in range(4): a(f"v_mul_f32 v{28+w}, s88, v{28+w}")
    for w in range(4): a(f"v_exp_f32 v{28+w}, v{28+w}")
    a("v_mul_f32 v41, v28, v36")
    for w in range(1, 4): a(f"v_fmac_f32 v41, v{28+w}, v{36+w}")
    a("s_waitcnt lgkmcnt(0)")
    for r in range(4): a(f"v_mul_f32 v{48+r}, v28, v{160+r}")
    for w in range(1, 4):
        for r in range(4): a(f"v_fmac_f32 v{48+r}, v{28+w}, v{160+4*w+r}")
    a(f"buffer_store_dwordx4 v[48:51], v{vPO}, {SW}, s{sPO} offen sc1")
    a(f"buffer_store_dwordx2 v[40:41], v{vPM}, {SW}, s{sPM} offen sc1")
    stamp(a, 5)
    a("v_and_b32 v28, 15, v1\nv_lshlrev_b32 v29, 3, v28\nv_lshlrev_b32 v28, 6, v28\nv_and_b32 v31, 48, v1\nv_add_u32 v28, v28, v31")
    a(f"s_lshl_b32 s8, s2, 10\ns_add_u32 s8, s8, {OIN}\ns_lshl_b32 s10, s5, 7\ns_add_u32 s10, s10, {ML}")
    mask2(a, MK, 1, vT0, vT1)
    a("s_cmp_lt_u32 s2, 224\ns_cselect_b32 s9, -1, 0\ns_waitcnt vmcnt(2)")
    rdy_check(a, "t", lambda: a(f"v_xor_b32 v25, s{sTAG}, v43\nv_xor_b32 v26, s{sTAG}, v33\nv_or_b32 v25, v25, v26\nv_and_or_b32 v24, v25, s9, v24"), lambda: gu_load(a))
    a("v_and_b32 v42, s9, v42\nv_and_b32 v32, s9, v32")
    T4(a, 176, 42, 42); T4(a, 177, 32, 32)
    for q in ("[2,3,0,1]", "[1,0,3,2]"):
        for A in (176, 177): a(f"v_add_f32_dpp v{A}, v{A}, v{A} quad_perm:{q} {FULL}")
    g, u = 176, 177
    rnd(a, g, g); rnd(a, u, u)
    a(f"v_mul_f32 v8, v{g}, v{g}\nv_mul_f32 v8, v8, v{g}")
    a(f"v_mul_f32 v8, {fl(0.044715)}, v8\nv_add_f32 v8, v8, v{g}\nv_mul_f32 v8, {fl(0.7978845608028654)}, v8")
    a(f"v_mul_f32 v8, {fl(2*LOG2E)}, v8\nv_exp_f32 v8, v8\nv_add_f32 v8, 1.0, v8\nv_rcp_f32 v8, v8")
    a(f"v_fma_f32 v8, v8, -2.0, 2.0")
    a(f"v_mul_f32 v9, 0.5, v{g}\nv_mul_f32 v8, v8, v9")
    rnd(a, 8, 8)
    a(f"v_mul_f32 v8, v8, v{u}\nv_cvt_pk_bf16_f32 v8, v8, v8")
    for n in range(2):
        for r in range(4):
            a(f"v_and_b32_dpp v{176+4*n+r}, v8, v{MK+r} row_newbcast:{8*n} {FULL}")
    Y = 160
    for n in range(2):
        for blk in range(4):
            D = f"v[{Y+4*blk}:{Y+3+4*blk}]"
            a(f"v_mfma_f32_16x16x32_bf16 {D}, v[{176+4*n}:{179+4*n}], {ring(RB, n*4+blk)}, {'0' if n==0 else D}")
    a(f"s_mov_b32 s96, {SPIN}")
    a("t0_spin:")
    a(f"buffer_load_dwordx4 v[32:35], v28, {SW}, s8 offen sc1")
    a(f"buffer_load_dwordx2 v[36:37], v29, {SW}, s10 offen sc1")
    a("s_waitcnt vmcnt(0)")
    a("v_max3_u32 v38, v32, v33, v34\nv_max3_u32 v38, v38, v35, v36\nv_max_u32 v38, v38, v37")
    a("v_cmp_eq_u32 vcc, -1, v38\ns_and_b64 exec, exec, vcc\ns_cbranch_execz t0_ok")
    a("s_sub_u32 s96, s96, 1\ns_cmp_eq_u32 s96, 0\ns_cbranch_scc1 t0_ok")
    a("s_sleep 2\ns_branch t0_spin")
    a("t0_ok:\ns_mov_b64 exec, -1")
    stamp(a, 6)
    a(f"v_max_f32_dpp v38, v36, v36 row_ror:8 {FULL}")
    for r in (4, 2, 1): a(f"v_max_f32_dpp v38, v38, v38 row_ror:{r} {FULL}")
    a("v_sub_f32 v36, v36, v38\nv_mul_f32 v36, s88, v36\nv_exp_f32 v36, v36")
    for r in range(4): a(f"v_mul_f32 v{32+r}, v{32+r}, v36")
    a("v_mul_f32 v36, v36, v37")
    rowall(a, [36, 32, 33, 34, 35])
    a("v_rcp_f32 v37, v36")
    for r in range(4): a(f"v_mul_f32 v{40+r}, v{32+r}, v37")
    for r in range(4): a(f"v_fma_f32 v{32+r}, -v{40+r}, v36, v{32+r}")
    for r in range(4): a(f"v_fma_f32 v{32+r}, v{32+r}, v37, v{40+r}")
    for r in range(4): a(f"v_cvt_pk_bf16_f32 v{32+r}, v{32+r}, v{32+r}")
    for n in range(4):
        for r in range(4): a(f"v_and_b32 v{176+4*n+r}, v{32+n}, v{MK+r}")
    for n in range(4):
        for blk in range(4):
            D = f"v[{Y+4*blk}:{Y+3+4*blk}]"
            a(f"v_mfma_f32_16x16x32_bf16 {D}, v[{176+4*n}:{179+4*n}], {ring(RA, n*4+blk)}, {D}")
    y_stores(a, Y, lambda blk: f"v[{Y+4*blk}:{Y+3+4*blk}]")

if __name__ == "__main__":
    t, k = kernel()
    s = HEADER + "; @launch grid=(256,1,1) block=(256,1,1) lds=8192\n"
    s += '.amdgcn_target "amdgcn-amd-amdhsa--gfx950"\n.text\n' + t + k
    open(sys.argv[1], "w").write(s)
```

```python
from asmlib import Asm
NAME = "parallel_sum__mha_block_cached__geglu_ffn__decode"
SC   = 0x000000
OIN  = 0x200000
ML   = 0x240000
YA   = 0x250000
YB   = 0x2C0000
QP   = 0x330000
VOTE = 0x340000
WSSZ = 0x350000
OOB  = 0x80000000
FULL = "row_mask:0xf bank_mask:0xf"
import struct
def f2u(x): return struct.unpack("<I", struct.pack("<f", x))[0]
def fl(x): return hex(f2u(x))
LOG2E = 1.4426950408889634
CEXP = LOG2E/16.0

HEADER = """; Kernarg layout for this problem (96 bytes, ptrs only, base s[0:1]):
"""

def kd(name, vgpr, sgpr):
    acc = min(256, (vgpr+3)//4*4)
    return f""".section .rodata,"a"
.p2align 6
.amdhsa_kernel {name}
  .amdhsa_next_free_vgpr {vgpr}
  .amdhsa_next_free_sgpr {sgpr}
  .amdhsa_accum_offset {acc}
  .amdhsa_group_segment_fixed_size 0
  .amdhsa_kernarg_size 96
  .amdhsa_user_sgpr_count 2
  .amdhsa_user_sgpr_kernarg_segment_ptr 1
  .amdhsa_system_sgpr_workgroup_id_x 1
  .amdhsa_float_denorm_mode_32 3
.end_amdhsa_kernel
"""

def srd(a, d, p, size):
    a(f"s_mov_b32 s{d}, s{p}\ns_mov_b32 s{d+1}, s{p+1}\ns_mov_b32 s{d+2}, {hex(size)}\ns_mov_b32 s{d+3}, 0x20000")

def T32(a, x, y, op="v_add_f32"):
    a(f"v_permlane32_swap_b32 v{x}, v{y}\n{op} v{x}, v{x}, v{y}")
def T16(a, x, y, op="v_add_f32"):
    a(f"v_permlane16_swap_b32 v{x}, v{y}\n{op} v{x}, v{x}, v{y}")
def multiT(a, swap, pairs, op="v_add_f32"):
    for x, y in pairs: a(f"{swap} v{x}, v{y}")
    for x, y in pairs: a(f"{op} v{x}, v{x}, v{y}")
def T8(a, x, y):
    a(f"v_add_f32_dpp v{x}, v{x}, v{x} row_ror:8 row_mask:0xf bank_mask:0x3")
    a(f"v_add_f32_dpp v{x}, v{y}, v{y} row_ror:8 row_mask:0xf bank_mask:0xc")
def T4(a, d, x, y):
    a(f"v_add_f32_dpp v{d}, v{x}, v{x} row_shl:4 row_mask:0xf bank_mask:0x5")
    a(f"v_add_f32_dpp v{d}, v{y}, v{y} row_shr:4 row_mask:0xf bank_mask:0xa")
def B32(a, x, t, op="v_add_f32"):
    a(f"v_mov_b32 v{t}, v{x}"); T32(a, x, t, op)
def B16(a, x, t, op="v_add_f32"):
    a(f"v_mov_b32 v{t}, v{x}"); T16(a, x, t, op)
def rowall(a, regs, op="v_add_f32"):
    for r in (8, 4, 2, 1):
        for x in regs: a(f"{op}_dpp v{x}, v{x}, v{x} row_ror:{r} {FULL}")
def waveall(a, x, t, op="v_add_f32"):
    rowall(a, [x], op); B16(a, x, t, op); B32(a, x, t, op)
def rnd(a, d, s):
    a(f"v_cvt_pk_bf16_f32 v{d}, v{s}, v{s}\nv_and_b32 v{d}, 0xffff0000, v{d}")
def fdiv(a, d, n, den, rc, t):
    a(f"v_mul_f32 v{t}, v{n}, v{rc}")
    a(f"v_fma_f32 v{d}, -v{t}, v{den}, v{n}")
    a(f"v_fma_f32 v{d}, v{d}, v{rc}, v{t}")

def layernorm_stats(a, X, U, vM, vS, vR, t0, t1):
    for i in range(4):
        a(f"v_lshlrev_b32 v{U+2*i}, 16, v{X+i}\nv_and_b32 v{U+2*i+1}, 0xffff0000, v{X+i}")
    a(f"v_add_f32 v{t0}, v{U}, v{U+1}\nv_add_f32 v{t1}, v{U+2}, v{U+3}\nv_add_f32 v{vM}, v{U+4}, v{U+5}\nv_add_f32 v{vS}, v{U+6}, v{U+7}")
    a(f"v_add_f32 v{t0}, v{t0}, v{t1}\nv_add_f32 v{vM}, v{vM}, v{vS}\nv_add_f32 v{t0}, v{t0}, v{vM}")
    waveall(a, t0, t1)
    a(f"v_mov_b32 v{vS}, {fl(448.0)}\nv_mov_b32 v{vR}, {fl(1/448.0)}")
    fdiv(a, vM, t0, vS, vR, t1)
    a(f"v_mov_b32 v{t0}, 0")
    a("s_mov_b32 exec_hi, 0x00ffffff")
    for i in range(8):
        a(f"v_sub_f32 v{U+i}, v{U+i}, v{vM}")
    for i in range(8):
        a(f"v_fmac_f32 v{t0}, v{U+i}, v{U+i}")
    a("s_mov_b32 exec_hi, -1")
    waveall(a, t0, t1)
    fdiv(a, U, t0, vS, vR, t1)
    rnd(a, vM, vM)
    rnd(a, U, U)
    a(f"v_add_f32 v{U}, {fl(1e-5)}, v{U}")
    rnd(a, U, U)
    a(f"v_sqrt_f32 v{t0}, v{U}")
    a(f"v_rcp_f32 v{t1}, v{t0}")
    a(f"v_fma_f32 v{U+1}, -v{t0}, v{t0}, v{U}")
    a(f"v_mul_f32 v{t1}, 0.5, v{t1}")
    a(f"v_fma_f32 v{t0}, v{U+1}, v{t1}, v{t0}")
    rnd(a, vS, t0)
    a(f"v_rcp_f32 v{vR}, v{vS}")

def normalize(a, x, lo, hi, vM, vS, vR, t0, t1):
    a(f"v_lshlrev_b32 v{t0}, 16, v{x}\nv_sub_f32 v{t0}, v{t0}, v{vM}")
    rnd(a, t0, t0)
    fdiv(a, t0, t0, vS, vR, t1)
    a(f"v_cvt_pk_bf16_f32 v{t0}, v{t0}, v{t0}")
    a(f"v_and_b32 v{lo}, 0xffff, v{t0}\nv_and_b32 v{hi}, 0xffff0000, v{t0}")

def gemv8(a, acc, W, lo, hi, first):
    for r in range(4):
        if first:
            a(f"v_dot2_f32_bf16 v{acc+2*r}, v{W+r}, v{lo}, 0\nv_dot2_f32_bf16 v{acc+2*r+1}, v{W+r}, v{hi}, 0")
        else:
            a(f"v_dot2_f32_bf16 v{acc+2*r}, v{W+r}, v{lo}, v{acc+2*r}\nv_dot2_f32_bf16 v{acc+2*r+1}, v{W+r}, v{hi}, v{acc+2*r+1}")

def red8(a, A):
    multiT(a, "v_permlane32_swap_b32", [(A+i, A+4+i) for i in range(4)])
    multiT(a, "v_permlane16_swap_b32", [(A, A+2), (A+1, A+3)])
    T8(a, A, A+1)

def mask2(a, M, vL, t0, t1):
    a(f"v_and_b32 v{t0}, 15, v{vL}")
    a(f"v_and_b32 v{t1}, 1, v{vL}\nv_lshlrev_b32 v{t1}, 4, v{t1}\nv_mov_b32 v{M}, 0xffff\nv_lshlrev_b32 v{t1}, v{t1}, v{M}")
    a(f"v_lshrrev_b32 v{t0}, 1, v{t0}")
    for r in range(4):
        a(f"v_cmp_eq_u32 vcc, {r}, v{t0}\nv_cndmask_b32 v{M+r}, 0, v{t1}, vcc")

def mask1(a, M, vL, t0, t1):
    a(f"v_lshrrev_b32 v{t0}, 1, v{vL}\nv_xor_b32 v{t0}, v{t0}, v{vL}\nv_and_b32 v{t0}, 8, v{t0}")
    a(f"v_bfe_u32 v{t1}, v{vL}, 1, 2\nv_or_b32 v{t0}, v{t0}, v{t1}")
    a(f"v_and_b32 v{t1}, 1, v{vL}\nv_lshlrev_b32 v{t1}, 4, v{t1}\nv_mov_b32 v{M}, 0xffff\nv_lshlrev_b32 v{t1}, v{t1}, v{M}")
    for r in range(4):
        a(f"v_cmp_eq_u32 vcc, {r}, v{t0}\nv_cndmask_b32 v{M+r}, 0, v{t1}, vcc")

def yaddr(a, d, d3, vL, t0, t1, stride=4096):
    a(f"v_and_b32 v{t0}, 15, v{vL}\nv_lshrrev_b32 v{t1}, 4, v{vL}\nv_lshl_add_u32 v{t0}, v{t0}, 1, v{t1}\nv_mul_u32_u24 v{t0}, {stride}, v{t0}")
    a(f"v_mov_b32 v{t1}, {hex(OOB)}")
    a(f"v_cmp_gt_u32 vcc, 32, v{vL}\nv_cndmask_b32 v{d}, v{t1}, v{t0}, vcc")
    a(f"v_and_b32 v{t0}, 8, v{vL}\nv_cmp_eq_u32 vcc, 0, v{t0}\nv_cndmask_b32 v{d3}, v{t1}, v{d}, vcc")


def ln_stats2(a, X, U, vM, vS, vR, t0, t1, t2, t3, sx0):
    a(f"v_mov_b32 v{t0}, 0\nv_mov_b32 v{t1}, 0")
    a("s_mov_b32 exec_hi, 0x00ffffff")
    for i in range(4):
        a(f"v_lshlrev_b32 v{U+2*i}, 16, v{X+i}\nv_and_b32 v{U+2*i+1}, 0xffff0000, v{X+i}")
    for i in range(8): a(f"v_subrev_f32 v{U+i}, s{sx0}, v{U+i}")
    a(f"v_add_f32 v{t0}, v{U}, v{U+1}\nv_mul_f32 v{t1}, v{U}, v{U}\nv_add_f32 v{t2}, v{U+2}, v{U+3}\nv_mul_f32 v{t3}, v{U+1}, v{U+1}")
    a(f"v_add_f32 v{vM}, v{U+4}, v{U+5}\nv_fmac_f32 v{t1}, v{U+2}, v{U+2}\nv_add_f32 v{vS}, v{U+6}, v{U+7}\nv_fmac_f32 v{t3}, v{U+3}, v{U+3}")
    a(f"v_add_f32 v{t0}, v{t0}, v{t2}\nv_fmac_f32 v{t1}, v{U+4}, v{U+4}\nv_add_f32 v{vM}, v{vM}, v{vS}\nv_fmac_f32 v{t3}, v{U+5}, v{U+5}")
    a(f"v_fmac_f32 v{t1}, v{U+6}, v{U+6}\nv_add_f32 v{t0}, v{t0}, v{vM}\nv_fmac_f32 v{t3}, v{U+7}, v{U+7}\nv_add_f32 v{t1}, v{t1}, v{t3}")
    a("s_mov_b32 exec_hi, -1")
    a(f"v_mov_b32 v{vS}, {fl(448.0)}\nv_mov_b32 v{vR}, {fl(1/448.0)}")
    rowall(a, [t0, t1])
    for swap in ("v_permlane16_swap_b32", "v_permlane32_swap_b32"):
        a(f"v_mov_b32 v{t2}, v{t0}\nv_mov_b32 v{t3}, v{t1}")
        multiT(a, swap, [(t0, t2), (t1, t3)])
    fdiv(a, vM, t0, vS, vR, t2)
    a(f"v_fma_f32 v{t1}, -v{t0}, v{vM}, v{t1}\nv_add_f32 v{vM}, s{sx0}, v{vM}")
    fdiv(a, U, t1, vS, vR, t2)
    a(f"v_cvt_pk_bf16_f32 v{vM}, v{vM}, v{vM}\nv_max_f32 v{U}, 0, v{U}\nv_and_b32 v{vM}, 0xffff0000, v{vM}")
    rnd(a, U, U)
    a(f"v_add_f32 v{U}, {fl(1e-5)}, v{U}")
    rnd(a, U, U)
    a(f"v_sqrt_f32 v{t0}, v{U}\nv_rsq_f32 v{t1}, v{U}")
    a(f"v_fma_f32 v{U+1}, -v{t0}, v{t0}, v{U}\nv_mul_f32 v{t1}, 0.5, v{t1}")
    a(f"v_fma_f32 v{t0}, v{U+1}, v{t1}, v{t0}")
    rnd(a, vS, t0)
    a(f"v_rcp_f32 v{vR}, v{vS}")

def center_rows(a, xs, vM):
    for x in xs: a(f"v_lshlrev_b32 v{x}, 16, v{x}")
    for x in xs: a(f"v_sub_f32 v{x}, v{x}, v{vM}")
    for x in xs: a(f"v_cvt_pk_bf16_f32 v{x}, v{x}, v{x}")
    for x in xs: a(f"v_and_b32 v{x}, 0xffff0000, v{x}")

def scale_rows(a, xs, ts, vS, vR):
    for x, t in zip(xs, ts): a(f"v_mul_f32 v{t}, v{x}, v{vR}")
    for x, t in zip(xs, ts): a(f"v_fma_f32 v{x}, -v{t}, v{vS}, v{x}")
    for x, t in zip(xs, ts): a(f"v_fma_f32 v{x}, v{x}, v{vR}, v{t}")
    for x, t in zip(xs, ts): a(f"v_cvt_pk_bf16_f32 v{x}, v{x}, v{x}")
    for x, t in zip(xs, ts): a(f"v_and_b32 v{t}, 0xffff, v{x}")
    for x, t in zip(xs, ts): a(f"v_and_b32 v{x}, 0xffff0000, v{x}")
```

```python
import sys
from common import *

OPT = set(sys.argv[2:])
STAMP = "stamp" in OPT
MIXED = "mixed" in OPT
SPIN = 20000
WARM = "nowarm" not in OPT
def opt(name, d):
    for o in OPT:
        if o.startswith(name+"="): return int(o.split("=")[1])
    return d
B1, B2, B3, B4 = opt("B1", 6), opt("B2", 12), opt("B3", 20), opt("B4", 26)
XP   = 0x000000
XR   = 0x080000
OIN  = 0x200000
ML   = 0x240000
YA   = 0x250000
QP   = 0x2C0000
VOTE = 0x2E0000
EPO  = 0x2F8000
GU   = 0x300000
WSSZ = 0x340000
STB  = 0x390000
VSTR = 4352

def stamp(a, i):
    if STAMP: a(f"s_memrealtime s[98:99]\ns_waitcnt lgkmcnt(0)\nv_writelane_b32 v200, s98, {i}")
def stamp_out(a):
    if STAMP:
        a(f"s_mov_b32 s50, 0x400000\ns_lshl_b32 s8, s2, 2\ns_add_u32 s8, s8, s3\ns_lshl_b32 s8, s8, 6\ns_add_u32 s8, s8, {STB}")
        a(f"v_lshlrev_b32 v201, 2, v1\nv_mov_b32 v202, {hex(OOB)}\nv_cmp_gt_u32 vcc, 16, v1\nv_cndmask_b32 v201, v202, v201, vcc\nbuffer_store_dword v200, v201, s[48:51], s8 offen")

RA, RB = 64, 128
P0 = 32
vLO, vHI, vQ, vSW, vSB, vSC = 2, 3, 4, 8, 9, 10
vLS, vP, vT0, vT1, vT2 = 12, 13, 14, 15, 16
MK, AA, ACC = 20, 24, 48
vMX, vSH, vSD = 52, 53, 54
vPO, vPM, vY, vY3 = 56, 57, 58, 59
vRP = 19
sOK, sOV, sO, sXF, sK, sTAG = 90, 91, 92, 93, 94, 89
sXO, sXI = 97, 7
sPO, sPM, sYA = 80, 81, 82
L_M, L_L, L_V, L_O, L_P, L_S = 512, 528, 544, 1024, 1024, 5120

def T_of(k): return (k&1)*0x101000 ^ ((k>>1)&1)*0x84000 ^ ((k>>2)&1)*0x40000 ^ (k>>3)*0x20000
def sb_off(a, base, kreg):
    a(f"s_and_b32 s95, s{kreg}, 1\ns_mul_i32 s{sO}, s95, 0x101000")
    a(f"s_bfe_u32 s95, s{kreg}, 0x10001\ns_mul_i32 s95, s95, 0x84000\ns_or_b32 s{sO}, s{sO}, s95")
    a(f"s_bfe_u32 s95, s{kreg}, 0x10002\ns_lshl_b32 s95, s95, 18\ns_or_b32 s{sO}, s{sO}, s95")
    a(f"s_bfe_u32 s95, s{kreg}, 0x10003\ns_lshl_b32 s95, s95, 17\ns_or_b32 s{sO}, s{sO}, s95")
    a(f"s_xor_b32 s{sO}, s{sO}, s{base}")
def sb_const(a, base, k, dst=sO):
    a(f"s_xor_b32 s{dst}, s{base}, {hex(T_of(k))}" if k else f"s_mov_b32 s{dst}, s{base}")
def score_off(a, dst, src=sO):
    a(f"s_lshr_b32 s95, s{src}, 17\ns_lshl_b32 s95, s95, 10\ns_bfe_u32 s{dst}, s{src}, 0x3000c\ns_lshl_b32 s{dst}, s{dst}, 7\ns_or_b32 s{dst}, s{dst}, s95")
def ring(R, j): return f"v[{R+4*j}:{R+4*j+3}]"
def kvload(a, R, j, srdname, so=sO):
    a(f"buffer_load_dwordx4 {ring(R,j)}, v{vLO if j%2==0 else vHI}, {srdname}, s{so} offen offset:{(j//2)*512} nt")
SK, SV, SW = "s[40:43]", "s[44:47]", "s[48:51]"

def k_body(a, R, wait, refill):
    for j in range(16):
        w = wait(j)
        if w is not None: a(f"s_waitcnt vmcnt({w})")
        r = R+4*j
        a(f"v_dot2_f32_bf16 v{P0+j}, v{r}, v{vQ}, 0")
        for i in range(1, 4): a(f"v_dot2_f32_bf16 v{P0+j}, v{r+i}, v{vQ+i}, v{P0+j}")
        refill(j)
    for j in range(8):
        a(f"v_add_f32_dpp v{P0+j}, v{P0+j}, v{P0+j} row_ror:8 row_mask:0xf bank_mask:0x3")
    for j in range(8):
        a(f"v_add_f32_dpp v{P0+j}, v{P0+8+j}, v{P0+8+j} row_ror:8 row_mask:0xf bank_mask:0xc")
    for j in range(4):
        a(f"v_add_f32_dpp v{P0+j}, v{P0+j}, v{P0+j} row_shl:4 row_mask:0xf bank_mask:0x5")
    for j in range(4):
        a(f"v_add_f32_dpp v{P0+j}, v{P0+4+j}, v{P0+4+j} row_shr:4 row_mask:0xf bank_mask:0xa")
    for j in range(4):
        a(f"v_add_f32_dpp v{P0+j}, v{P0+j}, v{P0+j} quad_perm:[2,3,0,1] {FULL}")
    a(f"v_cndmask_b32 v{P0}, v{P0}, v{P0+2}, s[84:85]\nv_cndmask_b32 v{P0+1}, v{P0+1}, v{P0+3}, s[84:85]")
    for j in range(2):
        a(f"v_add_f32_dpp v{P0+j}, v{P0+j}, v{P0+j} quad_perm:[1,0,3,2] {FULL}")
    a(f"v_cndmask_b32 v{P0}, v{P0}, v{P0+1}, s[86:87]")
    B16(a, P0, P0+1)
    a(f"v_mov_b32 v{P0+1}, v{P0}\nv_permlane32_swap_b32 v{P0}, v{P0+1}\nv_cvt_pk_bf16_f32 v{vSD}, v{P0}, v{P0+1}")
    a(f"ds_write_b32 v{vSW}, v{vSD}\nv_add_u32 v{vSW}, 64, v{vSW}")

def v_head(a, extra):
    a(f"ds_read_b32 v{vSC}, v{vSW}\nv_add_u32 v{vSW}, 64, v{vSW}")
    if extra: extra()
    a("s_waitcnt lgkmcnt(0)")
    a(f"v_lshlrev_b32 v{vT2}, v{vSH}, v{vSC}\nv_and_b32 v{vT2}, 0xffff0000, v{vT2}")
    a(f"v_max_f32_dpp v{vT0}, v{vT2}, v{vT2} row_ror:8 {FULL}")
    for r in (4, 2, 1): a(f"v_max_f32_dpp v{vT0}, v{vT0}, v{vT0} row_ror:{r} {FULL}")
    B32(a, vT0, vT1, "v_max_f32")
    a(f"v_max_f32 v{vT0}, v{vT0}, v{vMX}")
    a(f"v_sub_f32 v{vT1}, v{vMX}, v{vT0}\nv_sub_f32 v{vT2}, v{vT2}, v{vT0}")
    a(f"v_mov_b32 v{vMX}, v{vT0}")
    a(f"v_mul_f32 v{vT1}, s88, v{vT1}\nv_mul_f32 v{vT2}, s88, v{vT2}")
    a(f"v_exp_f32 v{vT1}, v{vT1}\nv_exp_f32 v{vT2}, v{vT2}")
    a(f"v_cvt_pk_bf16_f32 v{vP}, v{vT2}, v{vT2}")
    a(f"v_fma_f32 v{vLS}, v{vLS}, v{vT1}, v{vT2}")
    for r in range(4): a(f"v_mul_f32 v{ACC+r}, v{ACC+r}, v{vT1}")

def xp_load(a):
    a(f"s_lshl_b32 s8, s{sXI}, 9\nbuffer_load_dwordx2 v[60:61], v18, {SW}, s8 offen sc1")
def xr_load(a):
    a(f"s_lshl_b32 s8, s{sXI}, 10\ns_add_u32 s8, s8, {XR}\nbuffer_load_dwordx4 v[60:63], v17, {SW}, s8 offen sc1")
def x_check(a, tag, tagreg, load):
    a(f"s_mov_b32 s96, {SPIN}")
    a(f"x_chk_{tag}:")
    a(f"v_cmp_ne_u32 vcc, s{sTAG}, v{tagreg}\ns_cbranch_vccz x_ok_{tag}")
    a(f"s_sub_u32 s96, s96, 1\ns_cmp_eq_u32 s96, 0\ns_cbranch_scc1 x_ok_{tag}\ns_sleep 4")
    load(a)
    a(f"s_waitcnt vmcnt(0)\ns_branch x_chk_{tag}")
    a(f"x_ok_{tag}:")

def tagbytes(a, R):
    for r in range(4): a(f"v_perm_b32 v{R+r}, v{R+r}, v{vSD+1}, s{72+r}")
def tagsel(a):
    for r in range(4): a(f"s_mov_b32 s{72+r}, {hex(0x07060500+r)}")
    a("s_mov_b32 s76, 0x0c0c0400\ns_mov_b32 s77, 0x04000c0c")
def tagbad(a, d, R, t):
    a(f"v_perm_b32 v{d}, v{R+1}, v{R}, s76\nv_perm_b32 v{t}, v{R+3}, v{R+2}, s77")
    a(f"v_or_b32 v{d}, v{d}, v{t}\nv_xor_b32 v{d}, v{d}, v{vSD+1}")

def v_body(a, refill, waits):
    def build(j):
        for r in range(4):
            a(f"v_and_b32_dpp v{AA+4*(j&1)+r}, v{vP}, v{MK+r} row_newbcast:{j} {FULL}")
    build(0)
    for j in range(16):
        a(f"s_waitcnt vmcnt({waits(j)})")
        A = AA+4*(j&1)
        a(f"v_mfma_f32_16x16x32_bf16 v[{ACC}:{ACC+3}], v[{A}:{A+3}], {ring(RA,j)}, v[{ACC}:{ACC+3}]")
        if j < 15: build(j+1)
        refill(j)

def y_stores(a, D, srcfn):
    a(f"s_mov_b32 s8, s{sYA}")
    for blk in range(4):
        a(f"buffer_store_dwordx4 {srcfn(blk)}, v{vY3 if blk==3 else vY}, {SW}, s8 offen sc1")
        if blk < 3: a(f"s_add_u32 s8, s8, {32*4096}")

def kernel():
    a = Asm(); K = NAME + "_kernel"
    a(f".globl {K}\n.p2align 8\n.type {K},@function\n{K}:")
    a("s_cmp_ge_u32 s2, 256\ns_cbranch_scc1 main_done")
    stamp(a, 0)
    a("s_load_dwordx16 s[16:31], s[0:1], 0\ns_load_dwordx8 s[32:39], s[0:1], 64\ns_memtime s[100:101]")
    a("v_lshrrev_b32 v1, 6, v0\nv_readfirstlane_b32 s3, v1\nv_and_b32 v1, 63, v0")
    a("s_lshr_b32 s5, s2, 4\ns_and_b32 s6, s2, 15")
    a("v_lshlrev_b32 v17, 4, v1")
    a("v_lshrrev_b32 v18, 3, v1\nv_and_b32 v14, 7, v1\nv_lshlrev_b32 v14, 4, v14\nv_lshl_add_u32 v19, v18, 13, v14")
    a("v_mul_u32_u24 v47, 3584, v18\nv_add_u32 v47, v47, v14")
    a(f"v_mov_b32 v15, {hex(OOB)}\nv_cmp_gt_u32 vcc, 32, v1\nv_cndmask_b32 v14, v15, v19, vcc")
    a("v_cmp_gt_u32 vcc, 48, v1\nv_cndmask_b32 v16, v15, v47, vcc")
    a("v_lshlrev_b32 v18, 1, v18")
    a(f"v_and_b32 v{vLO}, 31, v1\nv_lshlrev_b32 v{vLO}, 4, v{vLO}\nv_lshrrev_b32 v{vHI}, 5, v1\nv_lshlrev_b32 v{vHI}, 15, v{vHI}\nv_add_u32 v{vLO}, v{vLO}, v{vHI}\nv_add_u32 v{vHI}, 0x10000, v{vLO}")
    a("s_bfe_u32 s7, s2, 0x20002\ns_mul_i32 s8, s7, 112\ns_mul_i32 s9, s3, 28\ns_add_u32 s8, s8, s9\ns_lshl_b32 s9, s8, 1")
    a("s_lshl_b32 s8, s8, 13\ns_lshl_b32 s10, s5, 9\ns_add_u32 s8, s8, s10\ns_and_b32 s10, s2, 3\ns_lshl_b32 s10, s10, 7\ns_add_u32 s8, s8, s10")
    a("s_lshr_b32 s11, s2, 3\ns_and_b32 s13, s2, 7")
    a(f"s_mul_i32 s12, s13, 56\ns_mul_i32 s14, s3, 14\ns_add_u32 s12, s12, s14\ns_mul_i32 s14, s12, 3584\ns_lshl_b32 s12, s12, 1\ns_lshl_b32 s15, s11, 7\ns_add_u32 s14, s14, s15")
    a("s_lshl_b32 s83, s11, 23\ns_and_b32 s10, s3, 1\ns_lshl_b32 s10, s10, 22\ns_or_b32 s83, s83, s10\ns_lshr_b32 s4, s3, 1\ns_lshl_b32 s10, s4, 21\ns_or_b32 s83, s83, s10")
    a("s_lshr_b32 s10, s2, 1\ns_lshr_b32 s15, s2, 7\ns_xor_b32 s10, s10, s15\ns_andn2_b32 s10, 1, s10\ns_lshl_b32 s10, s10, 12\ns_or_b32 s83, s83, s10")
    a("s_lshr_b32 s10, s2, 6\ns_xor_b32 s10, s10, s2\ns_and_b32 s10, s10, 1\ns_lshl_b32 s10, s10, 14\ns_or_b32 s83, s83, s10")
    a(f"s_bfe_u32 s10, s2, 0x10002\ns_xor_b32 s4, s4, s10\ns_lshl_b32 s10, s10, 13\ns_or_b32 s{sOK}, s83, s10")
    a("s_lshl_b32 s74, s11, 23\ns_and_b32 s75, s2, 3\ns_lshl_b32 s75, s75, 21\ns_or_b32 s74, s74, s75")
    a("s_bfe_u32 s75, s2, 0x10002\ns_lshl_b32 s75, s75, 11\ns_or_b32 s74, s74, s75\ns_or_b32 s74, s74, 0x40000")
    a("s_and_b32 s76, s3, 1\ns_lshl_b32 s75, s76, 13\ns_or_b32 s74, s74, s75")
    a("s_getreg_b32 s79, hwreg(HW_REG_XCC_ID)\ns_bfe_u32 s79, s79, 0x10002")
    a("s_xor_b32 s76, s76, s79\ns_xor_b32 s76, s76, s2\ns_and_b32 s76, s76, 1")
    a(f"s_mov_b32 s10, {EPO}\ns_cmp_lt_u32 s3, 2")
    sb_const(a, sOK, 0)
    a("s_waitcnt lgkmcnt(0)")
    a("s_cselect_b32 s72, s18, s20\ns_cselect_b32 s73, s19, s21")
    a("s_lshr_b32 s100, s100, 3\ns_mul_i32 s100, s100, 0x9e3779b1\ns_lshr_b32 s100, s100, 8\ns_and_b32 s100, s100, 0x1bd780\ns_or_b32 s74, s74, s100\ns_xor_b32 s75, s74, 0x8400")
    a("s_load_dword s78, s[72:73], s75")
    a(f"s_load_dword s{sTAG}, s[38:39], s10\ns_load_dword s77, s[16:17], 0")
    srd(a, 52, 16, 896); srd(a, 56, 22, 448*8192); srd(a, 40, 18, 1 << 28)
    a("buffer_load_dwordx4 v[60:63], v17, s[52:55], 0 offen")
    for n in range(4):
        a(f"buffer_load_ushort v{40+n}, v18, s[52:55], s9 offen offset:{16*n}")
    for n in range(4):
        a(f"buffer_load_dwordx4 v[{160+4*n}:{163+4*n}], v{19 if n<3 else 14}, s[56:59], s8 offen nt")
        if n < 3: a(f"s_add_u32 s8, s8, {8*8192}")
    def kpre(lo, hi):
        for i in range(lo, hi):
            if i == 16: sb_const(a, sOK, 1)
            kvload(a, RA if i < 16 else RB, i % 16, SK)
    kpre(0, B1)
    srd(a, 60, 28, 448*3584); srd(a, 64, 30, 448*3584); srd(a, 68, 32, 1792*896)
    srd(a, 44, 20, 1 << 28); srd(a, 48, 38, WSSZ)
    a("s_waitcnt lgkmcnt(0)\ns_lshl_b32 s77, s77, 16")
    stamp(a, 1)
    a(f"s_lshl_b32 s8, s5, 13\ns_add_u32 s8, s8, {QP}\ns_lshl_b32 s9, s3, 9\ns_add_u32 s15, s8, s9")
    a("s_lshl_b32 s9, s7, 11\ns_add_u32 s8, s8, s9\ns_and_b32 s9, s2, 3\ns_lshl_b32 s9, s9, 9\ns_add_u32 s7, s8, s9")
    a(f"v_and_b32 v13, 7, v1\nv_and_b32 v10, 56, v1\nv_lshl_add_u32 v11, v13, 6, v10\nv_lshl_add_u32 v46, v13, 10, v10")
    a(f"v_mul_u32_u24 v{vRP}, {VSTR}, v1\ns_cmp_eq_u32 s3, 0\ns_cselect_b64 vcc, 0xff, 0\nv_cndmask_b32 v{vRP}, v15, v{vRP}, vcc")
    a(f"s_cselect_b64 vcc, -1, 0\nv_cndmask_b32 v{vSC}, v15, v11, vcc")
    a(f"s_add_u32 s{sTAG}, s{sTAG}, 0x9e3779b9\nv_mov_b32 v{vSD+1}, s{sTAG}")
    a(f"s_waitcnt vmcnt({B1+8})")
    vM, vS, vR = 20, 21, 22
    ln_stats2(a, 60, 32, vM, vS, vR, 12, 13, 11, 23, 77)
    a(f"s_waitcnt vmcnt({B1+4})")
    center_rows(a, [40, 41, 42, 43], vM)
    scale_rows(a, [40, 41, 42, 43], [24, 25, 26, 27], vS, vR)
    a(f"s_waitcnt vmcnt({B1})")
    stamp(a, 8)
    for n in range(4): gemv8(a, 32, 160+4*n, 24+n, 40+n, n == 0)
    red8(a, 32)
    a(f"v_lshlrev_b32 v12, 2, v0\nds_write_b32 v12, v32 offset:{L_P}\nv_lshlrev_b32 v12, 2, v1")
    a(f"s_waitcnt lgkmcnt(0)\ns_barrier")
    a(f"ds_read2st64_b32 v[32:33], v12 offset0:{L_P//256} offset1:{L_P//256+1}\nds_read2st64_b32 v[34:35], v12 offset0:{L_P//256+2} offset1:{L_P//256+3}")
    a(f"s_waitcnt lgkmcnt(0)\nv_add_f32 v32, v32, v33\nv_add_f32 v34, v34, v35\nv_add_f32 v{vSD}, v32, v34")
    a(f"buffer_store_dwordx2 v[{vSD}:{vSD+1}], v{vSC}, {SW}, s7 offen sc1")
    stamp(a, 9)
    for n in range(2):
        a(f"buffer_load_ushort v{44+n}, v18, s[52:55], s12 offen offset:{16*n}")
    for n in range(2):
        a(f"buffer_load_dwordx4 v[{176+4*n}:{179+4*n}], v{47 if n==0 else 16}, s[60:63], s14 offen nt")
        a(f"buffer_load_dwordx4 v[{184+4*n}:{187+4*n}], v{47 if n==0 else 16}, s[64:67], s14 offen nt")
        if n == 0: a(f"s_add_u32 s14, s14, {8*3584}")
    kpre(B1, B2)
    for i in range(2):
        a("s_memtime s[100:101]\ns_waitcnt lgkmcnt(0)")
        a(f"s_load_dword s78, s[72:73], s74\ns_waitcnt lgkmcnt(0)\ns_memtime s[96:97]\ns_waitcnt lgkmcnt(0)")
        a(f"s_sub_u32 s{8+i}, s96, s100")
        if i == 0: a("s_xor_b32 s74, s74, 0x2000")
    if STAMP: a("v_writelane_b32 v200, s8, 13\nv_writelane_b32 v200, s9, 14")
    a("s_cmp_lt_u32 s9, s8\ns_cselect_b32 s8, 1, 0\ns_xor_b32 s8, s8, s76\ns_lshl_b32 s8, s8, s3")
    a(f"v_mov_b32 v12, s8\ns_lshl_b32 s9, s3, 2\nv_mov_b32 v13, s9\nds_write_b32 v13, v12 offset:{L_V}")
    a(f"s_lshl_b32 s9, s3, 10\ns_add_u32 s9, s9, {L_S}\nv_and_b32 v{vSW}, 15, v1\nv_lshl_add_u32 v{vSW}, v{vSW}, 2, s9\nv_lshl_add_u32 v{vSB}, v1, 2, s9")
    a(f"s_lshl_b32 s{sXO}, s2, 2\ns_add_u32 s{sXO}, s{sXO}, s3\ns_xor_b32 s{sXI}, s{sXO}, 16")
    a(f"v_cmp_gt_u32 vcc, 32, v1\nv_cndmask_b32 v{vSH}, 0, 16, vcc")
    a("s_mov_b32 s84, 0xcccccccc\ns_mov_b32 s85, 0xcccccccc\ns_mov_b32 s86, 0xaaaaaaaa\ns_mov_b32 s87, 0xaaaaaaaa")
    a(f"s_mov_b32 s88, {fl(CEXP)}")
    a(f"v_lshrrev_b32 v{vPO}, 5, v1\nv_lshlrev_b32 v{vPO}, 13, v{vPO}\nv_bfe_u32 v12, v1, 1, 3\nv_lshlrev_b32 v12, 10, v12\nv_add_u32 v{vPO}, v{vPO}, v12")
    a(f"v_and_b32 v12, 1, v1\nv_lshlrev_b32 v12, 5, v12\nv_add_u32 v{vPO}, v{vPO}, v12\nv_and_b32 v12, 16, v1\nv_add_u32 v{vPO}, v{vPO}, v12")
    a(f"v_cmp_eq_u32 vcc, 0, v1\nv_cndmask_b32 v{vPM}, v15, v1, vcc")
    yaddr(a, vY, vY3, 1, 12, 13)
    a(f"s_lshl_b32 s{sPO}, s5, 14\ns_lshl_b32 s10, s6, 6\ns_add_u32 s{sPO}, s{sPO}, s10\ns_add_u32 s{sPO}, s{sPO}, {OIN}")
    a(f"s_lshl_b32 s{sPM}, s2, 4\ns_add_u32 s{sPM}, s{sPM}, {ML}\ns_lshl_b32 s{sYA}, s2, 4\ns_add_u32 s{sYA}, s{sYA}, {YA}")
    a("s_cmp_eq_u32 s3, 0\ns_cselect_b64 vcc, -1, 0")
    for r in (vPO, vPM, vY, vY3): a(f"v_cndmask_b32 v{r}, v15, v{r}, vcc")
    a(f"s_lshl_b32 s14, s11, 13\ns_lshl_b32 s10, s13, 6\ns_add_u32 s14, s14, s10\ns_lshl_b32 s10, s3, 9\ns_add_u32 s14, s14, s10\ns_add_u32 s14, s14, {GU-512}")
    a(f"s_cmp_lt_u32 s11, 28\ns_cselect_b32 s10, 0, {hex(OOB)}\ns_add_u32 s9, s3, 3\ns_bitcmp1_b32 s9, 1\ns_cselect_b32 s10, {hex(OOB)}, s10\nv_or_b32 v46, s10, v46")
    a(f"s_and_b32 s12, s11, 7\ns_mul_i32 s12, s12, {VSTR}\ns_add_u32 s12, s12, {VOTE}\nv_lshlrev_b32 v17, 4, v1\nv_lshlrev_b32 v18, 3, v1")
    a(f"s_waitcnt vmcnt({B2-B1+4})")
    center_rows(a, [44, 45], vM)
    scale_rows(a, [44, 45], [12, 13], vS, vR)
    a(f"s_waitcnt vmcnt({B2-B1})")
    aG, aU = 24, 160
    for n in range(2):
        gemv8(a, aG, 176+4*n, 12+n, 44+n, n == 0)
        gemv8(a, aU, 184+4*n, 12+n, 44+n, n == 0)
    stamp(a, 10)
    def gather():
        for rb in range(4):
            if rb == 2: a("s_add_u32 s9, s15, 4096")
            a(f"buffer_load_dwordx2 v[{32+2*rb}:{33+2*rb}], v18, {SW}, s{15 if rb<2 else 9} offen offset:{2048*(rb&1)} sc1")
    def check(ok):
        a(f"v_xor_b32 v40, s{sTAG}, v33\nv_xor_b32 v41, s{sTAG}, v35\nv_xor_b32 v42, s{sTAG}, v37\nv_xor_b32 v43, s{sTAG}, v39")
        a("v_or3_b32 v40, v40, v41, v42\nv_or_b32 v40, v40, v43")
        a(f"v_cmp_ne_u32 vcc, 0, v40\ns_cbranch_vccz {ok}")
    gather(); kpre(B2, B3)
    red8(a, aG); red8(a, aU)
    a(f"v_lshlrev_b32 v12, 2, v0\nds_write_b32 v12, v{aG} offset:{L_P+1024}\nds_write_b32 v12, v{aU} offset:{L_P+2048}")
    mask1(a, MK, 1, vT0, vT1)
    a(f"s_waitcnt vmcnt({B3-B2})")
    check("g_ok1")
    gather(); kpre(B3, B4)
    a(f"s_waitcnt vmcnt({B4-B3})")
    check("g_ok2")
    gather(); kpre(B4, 32)
    a(f"s_mov_b32 s96, {SPIN}\ns_waitcnt vmcnt({32-B4})")
    a("g_spin:")
    check("g_ok3")
    a("s_sub_u32 s96, s96, 1\ns_cmp_eq_u32 s96, 0\ns_cbranch_scc1 g_ok3\ns_sleep 2")
    gather()
    a("s_waitcnt vmcnt(0)\ns_branch g_spin")
    a("g_ok1:"); kpre(B3, B4)
    a("g_ok2:"); kpre(B4, 32)
    a("g_ok3:")
    stamp(a, 11)
    a("v_add_f32 v32, v32, v34\nv_add_f32 v36, v36, v38\nv_add_f32 v32, v32, v36")
    a("v_cvt_pk_bf16_f32 v32, v32, v32\nv_lshlrev_b32 v33, 1, v0\nds_write_b16 v33, v32")
    a("v_and_b32 v34, 31, v1\nv_lshlrev_b32 v34, 4, v34")
    a("s_max_u32 s9, s3, 1\ns_min_u32 s9, s9, 2\ns_lshl_b32 s9, s9, 10\nv_lshl_add_u32 v35, v1, 2, s9")
    a("v_mov_b32 v36, 0")
    a(f"s_waitcnt lgkmcnt(0)\ns_barrier\nds_read_b128 v[{vQ}:{vQ+3}], v34")
    a(f"ds_read_b128 v[36:39], v36 offset:{L_V}")
    a(f"ds_read2st64_b32 v[40:41], v35 offset0:{L_P//256} offset1:{L_P//256+1}\nds_read2st64_b32 v[42:43], v35 offset0:{L_P//256+2} offset1:{L_P//256+3}")
    a(f"s_lshl_b32 s8, s79, 4\ns_andn2_b32 s9, s{sTAG}, 63\ns_or_b32 s8, s8, s9\ns_lshl_b32 s9, s2, 2\ns_add_u32 s9, s9, {VOTE}")
    a("s_waitcnt lgkmcnt(2)\nv_or3_b32 v36, v36, v37, v38\nv_or3_b32 v36, v36, v39, s8")
    a(f"buffer_store_dword v36, v{vRP}, {SW}, s9 offen sc1")
    a(f"s_waitcnt lgkmcnt(0)\nv_add_f32 v40, v40, v41\nv_add_f32 v42, v42, v43\nv_add_f32 v{vSD}, v40, v42")
    a(f"buffer_store_dwordx2 v[{vSD}:{vSD+1}], v46, {SW}, s14 offen sc1")
    a(f"v_mov_b32 v{vMX}, 0xff800000\nv_mov_b32 v{vLS}, 0")
    for r in range(4): a(f"v_mov_b32 v{ACC+r}, 0")
    stamp(a, 2)
    sb_const(a, sOK, 2)
    k_body(a, RA, lambda j: None if j < B2 else 33, lambda j: kvload(a, RA, j, SK))
    k_body(a, RB, lambda j: 15-j+2+16, lambda j: None)
    sb_const(a, sOK, 3)
    a(f"buffer_load_dwordx4 v[60:63], v17, {SW}, s12 offen sc1")
    k_body(a, RA, lambda j: 16, lambda j: kvload(a, RA, j, SK))
    a(f"s_mov_b32 s96, {SPIN}\ns_waitcnt vmcnt(16)")
    a("vt_chk:")
    for r in range(4): a(f"v_xor_b32 v{32+r}, s{sTAG}, v{60+r}")
    a("v_or3_b32 v32, v32, v33, v34\nv_or_b32 v32, v32, v35\nv_cmp_lt_u32 vcc, 63, v32\ns_cbranch_vccnz vt_spin")
    a("vt_ok:")
    for r in range(4): a(f"v_and_b32 v{32+r}, 3, v{60+r}\nv_and_b32 v{36+r}, 12, v{60+r}")
    a("v_bcnt_u32_b32 v32, v32, 0\nv_bcnt_u32_b32 v36, v36, 0")
    for r in range(1, 4): a(f"v_bcnt_u32_b32 v32, v{32+r}, v32\nv_bcnt_u32_b32 v36, v{36+r}, v36")
    a("v_lshl_add_u32 v32, v36, 16, v32")
    waveall(a, 32, 33, "v_add_u32")
    a("s_andn2_b32 s8, s2, 4\ns_lshr_b32 s8, s8, 2")
    for r in range(4): a(f"v_readlane_b32 s{72+r}, v{60+r}, s8")
    a("v_readfirstlane_b32 s9, v32")
    a("s_bitcmp1_b32 s2, 0\ns_cselect_b32 s72, s73, s72\ns_cselect_b32 s74, s75, s74\ns_bitcmp1_b32 s2, 1\ns_cselect_b32 s72, s74, s72")
    a("s_bfe_u32 s72, s72, 0x10004\ns_xor_b32 s4, s4, s72")
    if STAMP: a("v_writelane_b32 v200, s9, 15")
    if not MIXED:
        a(f"s_lshr_b32 s8, s9, 16\ns_cmp_gt_u32 s8, 256\ns_cselect_b32 s8, 1, 0\ns_xor_b32 s8, s8, s4\ns_lshl_b32 s8, s8, 13\ns_or_b32 s{sOV}, s83, s8")
        a(f"s_xor_b32 s{sXF}, s{sOK}, s{sOV}")
        a(f"s_and_b32 s8, s9, 0xffff\ns_cmp_gt_u32 s8, 256\ns_cselect_b32 s8, 1, 0\ns_xor_b32 s8, s8, s4\ns_lshl_b32 s8, s8, 13\ns_or_b32 s{sOK}, s83, s8")
        a(f"s_xor_b32 s8, s{sOK}, s{sOV}\ns_lshl_b32 s8, s8, 1\ns_or_b32 s{sXF}, s{sXF}, s8")
    else:
        a(f"s_mov_b32 s{sOV}, s{sOK}\ns_mov_b32 s{sXF}, 0")
    stamp(a, 12)
    a(f"s_mov_b32 s{sK}, 4")
    a("k_loop:")
    sb_off(a, sOK, sK)
    k_body(a, RA, lambda j: 15, lambda j: kvload(a, RA, j, SK))
    a(f"s_cmp_lg_u32 s{sK}, 4\ns_cbranch_scc1 k_next\ns_bitcmp0_b32 s{sXF}, 13\ns_cbranch_scc1 k_next")
    a(f"s_waitcnt lgkmcnt(0)\nds_read_b32 v{vSD}, v{vSB}\ns_lshl_b32 s8, s{sXO}, 9\ns_waitcnt lgkmcnt(0)")
    a(f"buffer_store_dwordx2 v[{vSD}:{vSD+1}], v18, {SW}, s8 offen sc1")
    a("k_next:")
    a(f"s_add_u32 s{sK}, s{sK}, 1\ns_cmp_lt_u32 s{sK}, 16\ns_cbranch_scc1 k_loop")
    a(f"s_mov_b32 s{sO}, s{sOV}")
    a(f"s_bitcmp0_b32 s{sXF}, 13\ns_cbranch_scc1 t_nop1")
    xp_load(a)
    a("t_nop1:")
    k_body(a, RA, lambda j: 15, lambda j: kvload(a, RA, j, SV))
    a(f"v_subrev_u32 v{vSW}, 1024, v{vSW}")
    a(f"s_bitcmp0_b32 s{sXF}, 14\ns_cbranch_scc1 t_nor")
    a(f"s_waitcnt lgkmcnt(0)\nds_read2st64_b32 v[24:25], v{vSB} offset0:1 offset1:2\nds_read_b32 v26, v{vSB} offset:768\nv_mov_b32 v27, s{sTAG}")
    a(f"s_lshl_b32 s8, s{sXO}, 10\ns_add_u32 s8, s8, {XR}\ns_waitcnt lgkmcnt(0)")
    a(f"buffer_store_dwordx4 v[24:27], v17, {SW}, s8 offen sc1")
    a("t_nor:")
    a(f"s_bitcmp0_b32 s{sXF}, 13\ns_cbranch_scc1 t_nop2")
    a("s_waitcnt vmcnt(16)")
    x_check(a, "p", 61, xp_load)
    a(f"ds_write_b32 v{vSB}, v60")
    a("t_nop2:")
    a(f"s_mov_b32 s{sK}, 1")
    stamp(a, 3)
    a("v_loop:")
    sb_off(a, sOV, sK)
    a(f"s_bitcmp0_b32 s{sXF}, 14\ns_cbranch_scc1 v_go\ns_cmp_eq_u32 s{sK}, 4\ns_cbranch_scc1 v_xr1\ns_cmp_eq_u32 s{sK}, 5\ns_cbranch_scc1 v_xr2")
    a("v_go:")
    v_head(a, None)
    v_body(a, lambda j: kvload(a, RA, j, SV), lambda j: 15)
    a(f"s_add_u32 s{sK}, s{sK}, 1\ns_cmp_lt_u32 s{sK}, 16\ns_cbranch_scc1 v_loop")
    tagsel(a)
    a("s_cmp_eq_u32 s3, 0\ns_cbranch_scc1 v_last0")
    v_head(a, None)
    v_body(a, lambda j: None, lambda j: 15-j)
    a("s_branch v_end")
    a("v_last0:")
    srd(a, 52, 24, 4096*896)
    a("v_lshrrev_b32 v46, 4, v1\nv_mul_u32_u24 v19, 1792, v46\nv_and_b32 v18, 15, v1\nv_lshlrev_b32 v18, 4, v18\nv_lshl_add_u32 v46, v19, 1, v18\nv_add_u32 v19, v19, v18")
    a("v_and_b32 v18, 7, v1\nv_lshlrev_b32 v18, 6, v18\nv_and_b32 v47, 56, v1\nv_add_u32 v18, v18, v47")
    a(f"s_mul_i32 s10, s2, {16*896}\ns_min_u32 s14, s2, 223\ns_mul_i32 s14, s14, {8*896}\ns_lshl_b32 s12, s2, 10\ns_add_u32 s12, s12, {GU}")
    def wd():
        gu_load(a)
        for i in range(8):
            a(f"buffer_load_dwordx4 {ring(RB,i)}, v19, s[68:71], s14 offen offset:{(i//4)*896+(i%4)*256} nt")
    v_head(a, wd)
    v_body(a, lambda j: a(f"buffer_load_dwordx4 {ring(RA,j)}, v46, s[52:55], s10 offen offset:{(j//4)*896+(j%4)*256} nt"), lambda j: 25)
    a("v_end:")
    stamp(a, 4)
    rowall(a, [vLS]); B32(a, vLS, vT0)
    a(f"v_lshlrev_b32 v{vT1}, 4, v0\nds_write_b128 v{vT1}, v[{ACC}:{ACC+3}] offset:{L_O}")
    a(f"s_lshl_b32 s8, s3, 2\nv_mov_b32 v{vT2}, s8\nds_write_b32 v{vT2}, v{vMX} offset:{L_M}\nds_write_b32 v{vT2}, v{vLS} offset:{L_L}")
    a("s_waitcnt lgkmcnt(0)\ns_barrier")
    a("s_cmp_eq_u32 s3, 0\ns_cbranch_scc1 tail0")
    a("s_cmp_lg_u32 s3, 1\ns_cbranch_scc1 main_fin\ns_cmp_ge_u32 s2, 112\ns_cbranch_scc1 main_fin")
    reducer(a)
    a("s_branch main_fin")
    a("tail0:")
    tail0(a)
    a("main_fin:")
    stamp(a, 7); stamp_out(a)
    a("main_done:\ns_endpgm")
    a("v_xr1:"); xr_load(a); a("s_branch v_go")
    a("v_xr2:\ns_waitcnt vmcnt(16)")
    x_check(a, "r", 63, xr_load)
    a(f"ds_write2st64_b32 v{vSB}, v60, v61 offset0:1 offset1:2\nds_write_b32 v{vSB}, v62 offset:768\ns_branch v_go")
    a("vt_spin:\ns_sub_u32 s96, s96, 1\ns_cmp_eq_u32 s96, 0\ns_cbranch_scc1 vt_ok\ns_sleep 2")
    a(f"buffer_load_dwordx4 v[60:63], v17, {SW}, s12 offen sc1\ns_waitcnt vmcnt(0)\ns_branch vt_chk")
    return a.text(), kd(K, 208 if STAMP else 192, 102)

def gu_load(a):
    a(f"buffer_load_dwordx2 v[42:43], v18, {SW}, s12 offen sc1\nbuffer_load_dwordx2 v[32:33], v18, {SW}, s12 offen offset:512 sc1")

def red4(a, R):
    multiT(a, "v_permlane32_swap_b32", [(R, R+2), (R+1, R+3)])
    T16(a, R, R+1)
    rowall(a, [R])

def reducer(a):
    srd(a, 52, 16, 896); srd(a, 56, 34, 896)
    a(f"v_mov_b32 v18, {hex(OOB)}")
    a(f"s_lshl_b32 s8, s2, 12\ns_add_u32 s8, s8, {YA}\ns_lshl_b32 s10, s2, 3")
    a("v_lshrrev_b32 v30, 4, v1\nv_lshlrev_b32 v30, 1, v30\nv_and_b32 v31, 15, v1\nv_cmp_eq_u32 vcc, 0, v31\nv_cndmask_b32 v31, v18, v30, vcc")
    a("buffer_load_ushort v29, v30, s[52:55], s10 offen")
    for n in range(4):
        a(f"buffer_load_dwordx4 v[{64+4*n}:{67+4*n}], v17, {SW}, s8 offen offset:{1024*n} sc1")
    a(f"s_mov_b32 s96, {SPIN}")
    a("red_spin:")
    a("s_waitcnt vmcnt(0)")
    for n in range(4): tagbad(a, 40+n, 64+4*n, 44+n)
    for n in range(4):
        a(f"v_cmp_ne_u32 s[{60+2*n}:{61+2*n}], 0, v{40+n}")
    a("s_or_b64 s[80:81], s[60:61], s[62:63]\ns_or_b64 s[82:83], s[64:65], s[66:67]\ns_or_b64 s[80:81], s[80:81], s[82:83]\ns_cbranch_scc0 red_ok")
    a("s_sub_u32 s96, s96, 1\ns_cmp_eq_u32 s96, 0\ns_cbranch_scc1 red_ok")
    a("s_sleep 2")
    for n in range(4):
        a(f"s_mov_b64 exec, s[{60+2*n}:{61+2*n}]\ns_cbranch_execz red_skip{n}")
        a(f"buffer_load_dwordx4 v[{64+4*n}:{67+4*n}], v17, {SW}, s8 offen offset:{1024*n} sc1")
        a(f"red_skip{n}:")
    a("s_mov_b64 exec, -1\ns_branch red_spin")
    a("red_ok:")
    stamp(a, 6)
    for r in range(16): a(f"v_and_b32 v{64+r}, 0xffffff00, v{64+r}")
    for r in range(4):
        a(f"v_add_f32 v{64+r}, v{64+r}, v{68+r}\nv_add_f32 v{72+r}, v{72+r}, v{76+r}")
    for r in range(4): a(f"v_add_f32 v{64+r}, v{64+r}, v{72+r}")
    red4(a, 64)
    a("v_lshlrev_b32 v29, 16, v29\nv_add_f32 v64, v64, v29\nv_cvt_pk_bf16_f32 v64, v64, v64")
    a("buffer_store_short v64, v31, s[56:59], s10 offen")
    a("s_cmp_lg_u32 s2, 0\ns_cbranch_scc1 main_fin")
    a(f"s_mov_b32 s8, {EPO}\nv_cmp_eq_u32 vcc, 0, v1\nv_cndmask_b32 v31, v18, v1, vcc\nbuffer_store_dword v{vSD+1}, v31, {SW}, s8 offen")

def tail0(a):
    a(f"v_lshlrev_b32 v{vT1}, 4, v1\nv_mov_b32 v{vT2}, 0")
    a(f"ds_read_b128 v[28:31], v{vT2} offset:{L_M}\nds_read_b128 v[36:39], v{vT2} offset:{L_L}")
    for w in range(4):
        a(f"ds_read_b128 v[{160+4*w}:{163+4*w}], v{vT1} offset:{L_O+1024*w}")
    a("s_waitcnt lgkmcnt(4)")
    a(f"v_max3_f32 v{vMX}, v28, v29, v30\nv_max_f32 v{vMX}, v{vMX}, v31")
    for w in range(4): a(f"v_sub_f32 v{28+w}, v{28+w}, v{vMX}")
    for w in range(4): a(f"v_mul_f32 v{28+w}, s88, v{28+w}")
    for w in range(4): a(f"v_exp_f32 v{28+w}, v{28+w}")
    a(f"v_mul_f32 v{vMX+1}, v28, v36")
    for w in range(1, 4): a(f"v_fmac_f32 v{vMX+1}, v{28+w}, v{36+w}")
    a("s_waitcnt lgkmcnt(0)")
    for r in range(4): a(f"v_mul_f32 v{48+r}, v28, v{160+r}")
    for w in range(1, 4):
        for r in range(4): a(f"v_fmac_f32 v{48+r}, v{28+w}, v{160+4*w+r}")
    tagbytes(a, 48)
    a(f"buffer_store_dwordx4 v[48:51], v{vPO}, {SW}, s{sPO} offen sc1")
    a(f"buffer_store_dwordx4 v[{vMX}:{vMX+3}], v{vPM}, {SW}, s{sPM} offen sc1")
    stamp(a, 5)
    a("v_and_b32 v28, 15, v1\nv_lshlrev_b32 v29, 4, v28\nv_lshlrev_b32 v28, 6, v28\nv_and_b32 v31, 48, v1\nv_add_u32 v28, v28, v31")
    a(f"s_lshl_b32 s8, s2, 10\ns_add_u32 s8, s8, {OIN}\ns_lshl_b32 s10, s5, 8\ns_add_u32 s10, s10, {ML}")
    mask2(a, MK, 1, vT0, vT1)
    a("s_cmp_lt_u32 s2, 224\ns_cselect_b32 s9, -1, 0\ns_waitcnt vmcnt(2)")
    a(f"s_mov_b32 s96, {SPIN}\ngu_chk:")
    a(f"v_xor_b32 v25, s{sTAG}, v43\nv_xor_b32 v26, s{sTAG}, v33\nv_or_b32 v25, v25, v26\nv_and_b32 v25, s9, v25\nv_cmp_ne_u32 vcc, 0, v25\ns_cbranch_vccz gu_ok")
    a("s_sub_u32 s96, s96, 1\ns_cmp_eq_u32 s96, 0\ns_cbranch_scc1 gu_ok\ns_sleep 2")
    gu_load(a)
    a("s_waitcnt vmcnt(0)\ns_branch gu_chk\ngu_ok:")
    a("v_and_b32 v42, s9, v42\nv_and_b32 v32, s9, v32")
    T4(a, 176, 42, 42); T4(a, 177, 32, 32)
    for q in ("[2,3,0,1]", "[1,0,3,2]"):
        for A in (176, 177): a(f"v_add_f32_dpp v{A}, v{A}, v{A} quad_perm:{q} {FULL}")
    g, u = 176, 177
    rnd(a, g, g); rnd(a, u, u)
    a(f"v_mul_f32 v8, v{g}, v{g}\nv_mul_f32 v8, v8, v{g}")
    a(f"v_mul_f32 v8, {fl(0.044715)}, v8\nv_add_f32 v8, v8, v{g}\nv_mul_f32 v8, {fl(0.7978845608028654)}, v8")
    a(f"v_mul_f32 v8, {fl(2*LOG2E)}, v8\nv_exp_f32 v8, v8\nv_add_f32 v8, 1.0, v8\nv_rcp_f32 v8, v8")
    a(f"v_fma_f32 v8, v8, -2.0, 2.0")
    a(f"v_mul_f32 v9, 0.5, v{g}\nv_mul_f32 v8, v8, v9")
    rnd(a, 8, 8)
    a(f"v_mul_f32 v8, v8, v{u}\nv_cvt_pk_bf16_f32 v8, v8, v8")
    for n in range(2):
        for r in range(4):
            a(f"v_and_b32_dpp v{176+4*n+r}, v8, v{MK+r} row_newbcast:{8*n} {FULL}")
    Y = 160
    for n in range(2):
        for blk in range(4):
            D = f"v[{Y+4*blk}:{Y+3+4*blk}]"
            a(f"v_mfma_f32_16x16x32_bf16 {D}, v[{176+4*n}:{179+4*n}], {ring(RB, n*4+blk)}, {'0' if n==0 else D}")
    a(f"s_mov_b32 s96, {SPIN}")
    a("t0_spin:")
    a(f"buffer_load_dwordx4 v[32:35], v28, {SW}, s8 offen sc1")
    a(f"buffer_load_dwordx4 v[36:39], v29, {SW}, s10 offen sc1")
    a("s_waitcnt vmcnt(0)")
    tagbad(a, 40, 32, 41)
    a(f"v_xor_b32 v39, v39, v{vSD+1}\nv_or_b32 v40, v40, v39")
    a("v_cmp_ne_u32 vcc, 0, v40\ns_and_b64 exec, exec, vcc\ns_cbranch_execz t0_ok")
    a("s_sub_u32 s96, s96, 1\ns_cmp_eq_u32 s96, 0\ns_cbranch_scc1 t0_ok")
    a("s_sleep 2\ns_branch t0_spin")
    a("t0_ok:\ns_mov_b64 exec, -1")
    stamp(a, 6)
    a(f"v_max_f32_dpp v38, v36, v36 row_ror:8 {FULL}")
    for r in (4, 2, 1): a(f"v_max_f32_dpp v38, v38, v38 row_ror:{r} {FULL}")
    a("v_sub_f32 v36, v36, v38\nv_mul_f32 v36, s88, v36\nv_exp_f32 v36, v36")
    for r in range(4): a(f"v_and_b32 v{32+r}, 0xffffff00, v{32+r}")
    for r in range(4): a(f"v_mul_f32 v{32+r}, v{32+r}, v36")
    a("v_mul_f32 v36, v36, v37")
    rowall(a, [36, 32, 33, 34, 35])
    a("v_rcp_f32 v37, v36")
    for r in range(4): a(f"v_mul_f32 v{40+r}, v{32+r}, v37")
    for r in range(4): a(f"v_fma_f32 v{32+r}, -v{40+r}, v36, v{32+r}")
    for r in range(4): a(f"v_fma_f32 v{32+r}, v{32+r}, v37, v{40+r}")
    for r in range(4): a(f"v_cvt_pk_bf16_f32 v{32+r}, v{32+r}, v{32+r}")
    for n in range(4):
        for r in range(4): a(f"v_and_b32 v{176+4*n+r}, v{32+n}, v{MK+r}")
    for n in range(4):
        for blk in range(4):
            D = f"v[{Y+4*blk}:{Y+3+4*blk}]"
            a(f"v_mfma_f32_16x16x32_bf16 {D}, v[{176+4*n}:{179+4*n}], {ring(RA, n*4+blk)}, {D}")
    for blk in range(4): tagbytes(a, Y+4*blk)
    y_stores(a, Y, lambda blk: f"v[{Y+4*blk}:{Y+3+4*blk}]")

if __name__ == "__main__":
    t, k = kernel()
    s = HEADER + "; @launch grid=(256,1,1) block=(256,1,1) lds=9216\n"
    s += '.amdgcn_target "amdgcn-amd-amdhsa--gfx950"\n.text\n' + t + k
    open(sys.argv[1], "w").write(s)
```

```python
import sys
from common import *

OPT = set(sys.argv[2:])
STAMP = "stamp" in OPT
MIXED = "mixed" in OPT
SPIN = 20000
WARM = "nowarm" not in OPT
def opt(name, d):
    for o in OPT:
        if o.startswith(name+"="): return int(o.split("=")[1])
    return d
B1, B2, B3, B4 = opt("B1", 6), opt("B2", 12), opt("B3", 20), opt("B4", 26)
XP   = 0x000000
XR   = 0x080000
OIN  = 0x200000
ML   = 0x240000
YA   = 0x250000
QP   = 0x2C0000
VOTE = 0x2E0000
EPO  = 0x2F8000
GU   = 0x300000
WSSZ = 0x340000
STB  = 0x390000
VSTR = 4352

def stamp(a, i):
    if STAMP: a(f"s_memrealtime s[98:99]\ns_waitcnt lgkmcnt(0)\nv_writelane_b32 v200, s98, {i}")
def stamp_out(a):
    if STAMP and "dbg" in OPT:
        srd(a, 52, 36, 256)
        a("v_readlane_b32 s8, v200, 0\nv_readlane_b32 s9, v200, 2\nv_readlane_b32 s10, v200, 3\nv_readlane_b32 s11, v200, 4\nv_readlane_b32 s12, v200, 7\nv_readlane_b32 s13, v200, 15\nv_readlane_b32 s14, v200, 1\nv_readlane_b32 s15, v200, 9")
        a("s_not_b32 s72, s8\ns_not_b32 s73, s11\ns_not_b32 s74, s10")
        for i, r in enumerate([72, 8, 14, 15, 9, 74, 10, 73, 11, 12, 13]): a(f"v_writelane_b32 v201, s{r}, {i}")
        a(f"v_lshlrev_b32 v202, 2, v1\nv_mov_b32 v203, {hex(OOB)}\nv_cmp_gt_u32 vcc, 11, v1\nv_cndmask_b32 v202, v203, v202, vcc\nbuffer_atomic_umax v201, v202, s[52:55], 0 offen sc1")
    elif STAMP:
        a(f"s_mov_b32 s50, 0x400000\ns_lshl_b32 s8, s2, 2\ns_add_u32 s8, s8, s3\ns_lshl_b32 s8, s8, 6\ns_add_u32 s8, s8, {STB}")
        a(f"v_lshlrev_b32 v201, 2, v1\nv_mov_b32 v202, {hex(OOB)}\nv_cmp_gt_u32 vcc, 16, v1\nv_cndmask_b32 v201, v202, v201, vcc\nbuffer_store_dword v200, v201, s[48:51], s8 offen")

RA, RB = 64, 128
P0 = 32
vLO, vHI, vQ, vSW, vSB, vSC = 2, 3, 4, 8, 9, 10
vLS, vP, vT0, vT1, vT2 = 12, 13, 14, 15, 16
MK, AA, ACC = 20, 24, 48
vMX, vSH, vSD = 52, 53, 54
vPO, vPM, vY, vY3 = 56, 57, 58, 59
vRP = 19
sOK, sOV, sO, sXF, sK, sTAG = 90, 91, 92, 93, 94, 89
sXO, sXI = 97, 7
sPO, sPM, sYA = 80, 81, 82
L_M, L_L, L_V, L_O, L_P, L_S = 512, 528, 544, 1024, 1024, 5120

def T_of(k): return (k&1)*0x101000 ^ ((k>>1)&1)*0x84000 ^ ((k>>2)&1)*0x40000 ^ (k>>3)*0x20000
def sb_off(a, base, kreg):
    a(f"s_and_b32 s95, s{kreg}, 1\ns_mul_i32 s{sO}, s95, 0x101000")
    a(f"s_bfe_u32 s95, s{kreg}, 0x10001\ns_mul_i32 s95, s95, 0x84000\ns_or_b32 s{sO}, s{sO}, s95")
    a(f"s_bfe_u32 s95, s{kreg}, 0x10002\ns_lshl_b32 s95, s95, 18\ns_or_b32 s{sO}, s{sO}, s95")
    a(f"s_bfe_u32 s95, s{kreg}, 0x10003\ns_lshl_b32 s95, s95, 17\ns_or_b32 s{sO}, s{sO}, s95")
    a(f"s_xor_b32 s{sO}, s{sO}, s{base}")
def sb_const(a, base, k, dst=sO):
    a(f"s_xor_b32 s{dst}, s{base}, {hex(T_of(k))}" if k else f"s_mov_b32 s{dst}, s{base}")
def score_off(a, dst, src=sO):
    a(f"s_lshr_b32 s95, s{src}, 17\ns_lshl_b32 s95, s95, 10\ns_bfe_u32 s{dst}, s{src}, 0x3000c\ns_lshl_b32 s{dst}, s{dst}, 7\ns_or_b32 s{dst}, s{dst}, s95")
def ring(R, j): return f"v[{R+4*j}:{R+4*j+3}]"
def kvload(a, R, j, srdname, so=sO):
    a(f"buffer_load_dwordx4 {ring(R,j)}, v{vLO if j%2==0 else vHI}, {srdname}, s{so} offen offset:{(j//2)*512} nt")
SK, SV, SW = "s[40:43]", "s[44:47]", "s[48:51]"

def k_body(a, R, wait, refill):
    for j in range(16):
        w = wait(j)
        if w is not None: a(f"s_waitcnt vmcnt({w})")
        r = R+4*j
        a(f"v_dot2_f32_bf16 v{P0+j}, v{r}, v{vQ}, 0")
        for i in range(1, 4): a(f"v_dot2_f32_bf16 v{P0+j}, v{r+i}, v{vQ+i}, v{P0+j}")
        refill(j)
    for j in range(8):
        a(f"v_add_f32_dpp v{P0+j}, v{P0+j}, v{P0+j} row_ror:8 row_mask:0xf bank_mask:0x3")
    for j in range(8):
        a(f"v_add_f32_dpp v{P0+j}, v{P0+8+j}, v{P0+8+j} row_ror:8 row_mask:0xf bank_mask:0xc")
    for j in range(4):
        a(f"v_add_f32_dpp v{P0+j}, v{P0+j}, v{P0+j} row_shl:4 row_mask:0xf bank_mask:0x5")
    for j in range(4):
        a(f"v_add_f32_dpp v{P0+j}, v{P0+4+j}, v{P0+4+j} row_shr:4 row_mask:0xf bank_mask:0xa")
    for j in range(4):
        a(f"v_add_f32_dpp v{P0+j}, v{P0+j}, v{P0+j} quad_perm:[2,3,0,1] {FULL}")
    a(f"v_cndmask_b32 v{P0}, v{P0}, v{P0+2}, s[84:85]\nv_cndmask_b32 v{P0+1}, v{P0+1}, v{P0+3}, s[84:85]")
    for j in range(2):
        a(f"v_add_f32_dpp v{P0+j}, v{P0+j}, v{P0+j} quad_perm:[1,0,3,2] {FULL}")
    a(f"v_cndmask_b32 v{P0}, v{P0}, v{P0+1}, s[86:87]")
    B16(a, P0, P0+1)
    a(f"v_mov_b32 v{P0+1}, v{P0}\nv_permlane32_swap_b32 v{P0}, v{P0+1}\nv_cvt_pk_bf16_f32 v{vSD}, v{P0}, v{P0+1}")
    a(f"ds_write_b32 v{vSW}, v{vSD}\nv_add_u32 v{vSW}, 64, v{vSW}")

def v_head(a, extra):
    a(f"ds_read_b32 v{vSC}, v{vSW}\nv_add_u32 v{vSW}, 64, v{vSW}")
    if extra: extra()
    a("s_waitcnt lgkmcnt(0)")
    a(f"v_lshlrev_b32 v{vT2}, v{vSH}, v{vSC}\nv_and_b32 v{vT2}, 0xffff0000, v{vT2}")
    a(f"v_max_f32_dpp v{vT0}, v{vT2}, v{vT2} row_ror:8 {FULL}")
    for r in (4, 2, 1): a(f"v_max_f32_dpp v{vT0}, v{vT0}, v{vT0} row_ror:{r} {FULL}")
    B32(a, vT0, vT1, "v_max_f32")
    a(f"v_max_f32 v{vT0}, v{vT0}, v{vMX}")
    a(f"v_sub_f32 v{vT1}, v{vMX}, v{vT0}\nv_sub_f32 v{vT2}, v{vT2}, v{vT0}")
    a(f"v_mov_b32 v{vMX}, v{vT0}")
    a(f"v_mul_f32 v{vT1}, s88, v{vT1}\nv_mul_f32 v{vT2}, s88, v{vT2}")
    a(f"v_exp_f32 v{vT1}, v{vT1}\nv_exp_f32 v{vT2}, v{vT2}")
    a(f"v_cvt_pk_bf16_f32 v{vP}, v{vT2}, v{vT2}")
    a(f"v_fma_f32 v{vLS}, v{vLS}, v{vT1}, v{vT2}")
    for r in range(4): a(f"v_mul_f32 v{ACC+r}, v{ACC+r}, v{vT1}")

def xp_load(a):
    a(f"s_lshl_b32 s8, s{sXI}, 9\nbuffer_load_dwordx2 v[60:61], v18, {SW}, s8 offen sc1")
def xr_load(a):
    a(f"s_lshl_b32 s8, s{sXI}, 10\ns_add_u32 s8, s8, {XR}\nbuffer_load_dwordx4 v[60:63], v17, {SW}, s8 offen sc1")
def x_check(a, tag, tagreg, load):
    a(f"s_mov_b32 s96, {SPIN}")
    a(f"x_chk_{tag}:")
    a(f"v_cmp_ne_u32 vcc, s{sTAG}, v{tagreg}\ns_cbranch_vccz x_ok_{tag}")
    a(f"s_sub_u32 s96, s96, 1\ns_cmp_eq_u32 s96, 0\ns_cbranch_scc1 x_ok_{tag}\ns_sleep 4")
    load(a)
    a(f"s_waitcnt vmcnt(0)\ns_branch x_chk_{tag}")
    a(f"x_ok_{tag}:")

def tagbytes(a, R):
    for r in range(4): a(f"v_perm_b32 v{R+r}, v{R+r}, v{vSD+1}, s{72+r}")
def tagsel(a):
    for r in range(4): a(f"s_mov_b32 s{72+r}, {hex(0x07060500+r)}")
    a("s_mov_b32 s76, 0x0c0c0400\ns_mov_b32 s77, 0x04000c0c")
def tagbad(a, d, R, t):
    a(f"v_perm_b32 v{d}, v{R+1}, v{R}, s76\nv_perm_b32 v{t}, v{R+3}, v{R+2}, s77")
    a(f"v_or_b32 v{d}, v{d}, v{t}\nv_xor_b32 v{d}, v{d}, v{vSD+1}")

def v_body(a, refill, waits):
    def build(j):
        for r in range(4):
            a(f"v_and_b32_dpp v{AA+4*(j&1)+r}, v{vP}, v{MK+r} row_newbcast:{j} {FULL}")
    build(0)
    for j in range(16):
        a(f"s_waitcnt vmcnt({waits(j)})")
        A = AA+4*(j&1)
        a(f"v_mfma_f32_16x16x32_bf16 v[{ACC}:{ACC+3}], v[{A}:{A+3}], {ring(RA,j)}, v[{ACC}:{ACC+3}]")
        if j < 15: build(j+1)
        refill(j)

def y_stores(a, D, srcfn):
    a(f"s_mov_b32 s8, s{sYA}")
    for blk in range(4):
        a(f"buffer_store_dwordx4 {srcfn(blk)}, v{vY3 if blk==3 else vY}, {SW}, s8 offen sc1")
        if blk < 3: a(f"s_add_u32 s8, s8, {32*4096}")

def kernel():
    a = Asm(); K = NAME + "_kernel"
    a(f".globl {K}\n.p2align 8\n.type {K},@function\n{K}:")
    a("s_cmp_ge_u32 s2, 256\ns_cbranch_scc1 main_done")
    stamp(a, 0)
    a("s_load_dwordx16 s[16:31], s[0:1], 0\ns_load_dwordx8 s[32:39], s[0:1], 64\ns_memtime s[100:101]")
    a("v_lshrrev_b32 v1, 6, v0\nv_readfirstlane_b32 s3, v1\nv_and_b32 v1, 63, v0")
    a("s_lshr_b32 s5, s2, 4\ns_and_b32 s6, s2, 15")
    a("v_lshlrev_b32 v17, 4, v1")
    a("v_lshrrev_b32 v18, 3, v1\nv_and_b32 v14, 7, v1\nv_lshlrev_b32 v14, 4, v14\nv_lshl_add_u32 v19, v18, 13, v14")
    a("v_mul_u32_u24 v47, 3584, v18\nv_add_u32 v47, v47, v14")
    a(f"v_mov_b32 v15, {hex(OOB)}\nv_cmp_gt_u32 vcc, 32, v1\nv_cndmask_b32 v14, v15, v19, vcc")
    a("v_cmp_gt_u32 vcc, 48, v1\nv_cndmask_b32 v16, v15, v47, vcc")
    a("v_lshlrev_b32 v18, 1, v18")
    a(f"v_and_b32 v{vLO}, 31, v1\nv_lshlrev_b32 v{vLO}, 4, v{vLO}\nv_lshrrev_b32 v{vHI}, 5, v1\nv_lshlrev_b32 v{vHI}, 15, v{vHI}\nv_add_u32 v{vLO}, v{vLO}, v{vHI}\nv_add_u32 v{vHI}, 0x10000, v{vLO}")
    a("s_bfe_u32 s7, s2, 0x20002\ns_mul_i32 s8, s7, 112\ns_mul_i32 s9, s3, 28\ns_add_u32 s8, s8, s9\ns_lshl_b32 s9, s8, 1")
    a("s_lshl_b32 s8, s8, 13\ns_lshl_b32 s10, s5, 9\ns_add_u32 s8, s8, s10\ns_and_b32 s10, s2, 3\ns_lshl_b32 s10, s10, 7\ns_add_u32 s8, s8, s10")
    a("s_lshr_b32 s11, s2, 3\ns_and_b32 s13, s2, 7")
    a(f"s_mul_i32 s12, s13, 56\ns_mul_i32 s14, s3, 14\ns_add_u32 s12, s12, s14\ns_mul_i32 s14, s12, 3584\ns_lshl_b32 s12, s12, 1\ns_lshl_b32 s15, s11, 7\ns_add_u32 s14, s14, s15")
    a("s_lshl_b32 s83, s11, 23\ns_and_b32 s10, s3, 1\ns_lshl_b32 s10, s10, 22\ns_or_b32 s83, s83, s10\ns_lshr_b32 s4, s3, 1\ns_lshl_b32 s10, s4, 21\ns_or_b32 s83, s83, s10")
    a("s_lshr_b32 s10, s2, 1\ns_lshr_b32 s15, s2, 7\ns_xor_b32 s10, s10, s15\ns_andn2_b32 s10, 1, s10\ns_lshl_b32 s10, s10, 12\ns_or_b32 s83, s83, s10")
    a("s_lshr_b32 s10, s2, 6\ns_xor_b32 s10, s10, s2\ns_and_b32 s10, s10, 1\ns_lshl_b32 s10, s10, 14\ns_or_b32 s83, s83, s10")
    a(f"s_bfe_u32 s10, s2, 0x10002\ns_xor_b32 s4, s4, s10\ns_lshl_b32 s10, s10, 13\ns_or_b32 s{sOK}, s83, s10")
    a("s_lshl_b32 s74, s11, 23\ns_and_b32 s75, s2, 3\ns_lshl_b32 s75, s75, 21\ns_or_b32 s74, s74, s75")
    a("s_bfe_u32 s75, s2, 0x10002\ns_lshl_b32 s75, s75, 11\ns_or_b32 s74, s74, s75\ns_or_b32 s74, s74, 0x40000")
    a("s_and_b32 s76, s3, 1\ns_lshl_b32 s75, s76, 13\ns_or_b32 s74, s74, s75")
    a("s_getreg_b32 s79, hwreg(HW_REG_XCC_ID)\ns_bfe_u32 s79, s79, 0x10002")
    a("s_xor_b32 s76, s76, s79\ns_xor_b32 s76, s76, s2\ns_and_b32 s76, s76, 1")
    a(f"s_mov_b32 s10, {EPO}\ns_cmp_lt_u32 s3, 2")
    sb_const(a, sOK, 0)
    a("s_waitcnt lgkmcnt(0)")
    a("s_cselect_b32 s72, s18, s20\ns_cselect_b32 s73, s19, s21")
    a("s_lshr_b32 s100, s100, 3\ns_mul_i32 s100, s100, 0x9e3779b1\ns_lshr_b32 s100, s100, 8\ns_and_b32 s100, s100, 0x1bd780\ns_or_b32 s74, s74, s100\ns_xor_b32 s75, s74, 0x8400")
    a("s_load_dword s78, s[72:73], s75")
    a(f"s_load_dword s{sTAG}, s[38:39], s10\ns_load_dword s77, s[16:17], 0")
    srd(a, 52, 16, 896); srd(a, 56, 22, 448*8192); srd(a, 40, 18, 1 << 28)
    a("buffer_load_dwordx4 v[60:63], v17, s[52:55], 0 offen")
    for n in range(4):
        a(f"buffer_load_ushort v{40+n}, v18, s[52:55], s9 offen offset:{16*n}")
    for n in range(4):
        a(f"buffer_load_dwordx4 v[{160+4*n}:{163+4*n}], v{19 if n<3 else 14}, s[56:59], s8 offen nt")
        if n < 3: a(f"s_add_u32 s8, s8, {8*8192}")
    def kpre(lo, hi):
        for i in range(lo, hi):
            if i == 16: sb_const(a, sOK, 1)
            kvload(a, RA if i < 16 else RB, i % 16, SK)
    kpre(0, B1)
    srd(a, 60, 28, 448*3584); srd(a, 64, 30, 448*3584); srd(a, 68, 32, 1792*896)
    srd(a, 44, 20, 1 << 28); srd(a, 48, 38, WSSZ)
    a("s_waitcnt lgkmcnt(0)\ns_lshl_b32 s77, s77, 16")
    stamp(a, 1)
    a(f"s_lshl_b32 s8, s5, 13\ns_add_u32 s8, s8, {QP}\ns_lshl_b32 s9, s3, 9\ns_add_u32 s15, s8, s9")
    a("s_lshl_b32 s9, s7, 11\ns_add_u32 s8, s8, s9\ns_and_b32 s9, s2, 3\ns_lshl_b32 s9, s9, 9\ns_add_u32 s7, s8, s9")
    a(f"v_and_b32 v13, 7, v1\nv_and_b32 v10, 56, v1\nv_lshl_add_u32 v11, v13, 6, v10\nv_lshl_add_u32 v46, v13, 10, v10")
    a(f"v_mul_u32_u24 v{vRP}, {VSTR}, v1\ns_cmp_eq_u32 s3, 0\ns_cselect_b64 vcc, 0xff, 0\nv_cndmask_b32 v{vRP}, v15, v{vRP}, vcc")
    a(f"s_cselect_b64 vcc, -1, 0\nv_cndmask_b32 v{vSC}, v15, v11, vcc")
    a(f"s_add_u32 s{sTAG}, s{sTAG}, 0x9e3779b9\nv_mov_b32 v{vSD+1}, s{sTAG}")
    a(f"s_waitcnt vmcnt({B1+8})")
    vM, vS, vR = 20, 21, 22
    ln_stats2(a, 60, 32, vM, vS, vR, 12, 13, 11, 23, 77)
    a(f"s_waitcnt vmcnt({B1+4})")
    center_rows(a, [40, 41, 42, 43], vM)
    scale_rows(a, [40, 41, 42, 43], [24, 25, 26, 27], vS, vR)
    a(f"s_waitcnt vmcnt({B1})")
    stamp(a, 8)
    for n in range(4): gemv8(a, 32, 160+4*n, 24+n, 40+n, n == 0)
    red8(a, 32)
    a(f"v_lshlrev_b32 v12, 2, v0\nds_write_b32 v12, v32 offset:{L_P}\nv_lshlrev_b32 v12, 2, v1")
    a(f"s_waitcnt lgkmcnt(0)\ns_barrier")
    a(f"ds_read2st64_b32 v[32:33], v12 offset0:{L_P//256} offset1:{L_P//256+1}\nds_read2st64_b32 v[34:35], v12 offset0:{L_P//256+2} offset1:{L_P//256+3}")
    a(f"s_waitcnt lgkmcnt(0)\nv_add_f32 v32, v32, v33\nv_add_f32 v34, v34, v35\nv_add_f32 v{vSD}, v32, v34")
    a(f"buffer_store_dwordx2 v[{vSD}:{vSD+1}], v{vSC}, {SW}, s7 offen sc1")
    stamp(a, 9)
    for n in range(2):
        a(f"buffer_load_ushort v{44+n}, v18, s[52:55], s12 offen offset:{16*n}")
    for n in range(2):
        a(f"buffer_load_dwordx4 v[{176+4*n}:{179+4*n}], v{47 if n==0 else 16}, s[60:63], s14 offen nt")
        a(f"buffer_load_dwordx4 v[{184+4*n}:{187+4*n}], v{47 if n==0 else 16}, s[64:67], s14 offen nt")
        if n == 0: a(f"s_add_u32 s14, s14, {8*3584}")
    kpre(B1, B2)
    for i in range(2):
        a("s_memtime s[100:101]\ns_waitcnt lgkmcnt(0)")
        a(f"s_load_dword s78, s[72:73], s74\ns_waitcnt lgkmcnt(0)\ns_memtime s[96:97]\ns_waitcnt lgkmcnt(0)")
        a(f"s_sub_u32 s{8+i}, s96, s100")
        if i == 0: a("s_xor_b32 s74, s74, 0x2000")
    if STAMP: a("v_writelane_b32 v200, s8, 13\nv_writelane_b32 v200, s9, 14")
    a("s_cmp_lt_u32 s9, s8\ns_cselect_b32 s8, 1, 0\ns_xor_b32 s8, s8, s76\ns_lshl_b32 s8, s8, s3")
    a(f"v_mov_b32 v12, s8\ns_lshl_b32 s9, s3, 2\nv_mov_b32 v13, s9\nds_write_b32 v13, v12 offset:{L_V}")
    a(f"s_lshl_b32 s9, s3, 10\ns_add_u32 s9, s9, {L_S}\nv_and_b32 v{vSW}, 15, v1\nv_lshl_add_u32 v{vSW}, v{vSW}, 2, s9\nv_lshl_add_u32 v{vSB}, v1, 2, s9")
    a(f"s_lshl_b32 s{sXO}, s2, 2\ns_add_u32 s{sXO}, s{sXO}, s3\ns_xor_b32 s{sXI}, s{sXO}, 16")
    a(f"v_cmp_gt_u32 vcc, 32, v1\nv_cndmask_b32 v{vSH}, 0, 16, vcc")
    a("s_mov_b32 s84, 0xcccccccc\ns_mov_b32 s85, 0xcccccccc\ns_mov_b32 s86, 0xaaaaaaaa\ns_mov_b32 s87, 0xaaaaaaaa")
    a(f"s_mov_b32 s88, {fl(CEXP)}")
    a(f"v_lshrrev_b32 v{vPO}, 5, v1\nv_lshlrev_b32 v{vPO}, 13, v{vPO}\nv_bfe_u32 v12, v1, 1, 3\nv_lshlrev_b32 v12, 10, v12\nv_add_u32 v{vPO}, v{vPO}, v12")
    a(f"v_and_b32 v12, 1, v1\nv_lshlrev_b32 v12, 5, v12\nv_add_u32 v{vPO}, v{vPO}, v12\nv_and_b32 v12, 16, v1\nv_add_u32 v{vPO}, v{vPO}, v12")
    a(f"v_cmp_eq_u32 vcc, 0, v1\nv_cndmask_b32 v{vPM}, v15, v1, vcc")
    yaddr(a, vY, vY3, 1, 12, 13)
    a(f"s_lshl_b32 s{sPO}, s5, 14\ns_lshl_b32 s10, s6, 6\ns_add_u32 s{sPO}, s{sPO}, s10\ns_add_u32 s{sPO}, s{sPO}, {OIN}")
    a(f"s_lshl_b32 s{sPM}, s2, 4\ns_add_u32 s{sPM}, s{sPM}, {ML}\ns_lshl_b32 s{sYA}, s2, 4\ns_add_u32 s{sYA}, s{sYA}, {YA}")
    a("s_cmp_eq_u32 s3, 0\ns_cselect_b64 vcc, -1, 0")
    for r in (vPO, vPM, vY, vY3): a(f"v_cndmask_b32 v{r}, v15, v{r}, vcc")
    a(f"s_lshl_b32 s14, s11, 13\ns_lshl_b32 s10, s13, 6\ns_add_u32 s14, s14, s10\ns_lshl_b32 s10, s3, 9\ns_add_u32 s14, s14, s10\ns_add_u32 s14, s14, {GU-512}")
    a(f"s_cmp_lt_u32 s11, 28\ns_cselect_b32 s10, 0, {hex(OOB)}\ns_add_u32 s9, s3, 3\ns_bitcmp1_b32 s9, 1\ns_cselect_b32 s10, {hex(OOB)}, s10\nv_or_b32 v46, s10, v46")
    a(f"s_and_b32 s12, s11, 7\ns_mul_i32 s12, s12, {VSTR}\ns_add_u32 s12, s12, {VOTE}\nv_lshlrev_b32 v17, 4, v1\nv_lshlrev_b32 v18, 3, v1")
    a(f"s_waitcnt vmcnt({B2-B1+4})")
    center_rows(a, [44, 45], vM)
    scale_rows(a, [44, 45], [12, 13], vS, vR)
    a(f"s_waitcnt vmcnt({B2-B1})")
    aG, aU = 24, 160
    for n in range(2):
        gemv8(a, aG, 176+4*n, 12+n, 44+n, n == 0)
        gemv8(a, aU, 184+4*n, 12+n, 44+n, n == 0)
    stamp(a, 10)
    def gather():
        for rb in range(4):
            if rb == 2: a("s_add_u32 s9, s15, 4096")
            a(f"buffer_load_dwordx2 v[{32+2*rb}:{33+2*rb}], v18, {SW}, s{15 if rb<2 else 9} offen offset:{2048*(rb&1)} sc1")
    def check(ok):
        a(f"v_xor_b32 v40, s{sTAG}, v33\nv_xor_b32 v41, s{sTAG}, v35\nv_xor_b32 v42, s{sTAG}, v37\nv_xor_b32 v43, s{sTAG}, v39")
        a("v_or3_b32 v40, v40, v41, v42\nv_or_b32 v40, v40, v43")
        a(f"v_cmp_ne_u32 vcc, 0, v40\ns_cbranch_vccz {ok}")
    gather(); kpre(B2, B3)
    red8(a, aG); red8(a, aU)
    a(f"v_lshlrev_b32 v12, 2, v0\nds_write_b32 v12, v{aG} offset:{L_P+1024}\nds_write_b32 v12, v{aU} offset:{L_P+2048}")
    mask1(a, MK, 1, vT0, vT1)
    a(f"s_waitcnt vmcnt({B3-B2})")
    check("g_ok1")
    gather(); kpre(B3, B4)
    a(f"s_waitcnt vmcnt({B4-B3})")
    check("g_ok2")
    gather(); kpre(B4, 32)
    a(f"s_mov_b32 s96, {SPIN}\ns_waitcnt vmcnt({32-B4})")
    a("g_spin:")
    check("g_ok3")
    a("s_sub_u32 s96, s96, 1\ns_cmp_eq_u32 s96, 0\ns_cbranch_scc1 g_ok3\ns_sleep 2")
    gather()
    a("s_waitcnt vmcnt(0)\ns_branch g_spin")
    a("g_ok1:"); kpre(B3, B4)
    a("g_ok2:"); kpre(B4, 32)
    a("g_ok3:")
    stamp(a, 11)
    a("v_add_f32 v32, v32, v34\nv_add_f32 v36, v36, v38\nv_add_f32 v32, v32, v36")
    a("v_cvt_pk_bf16_f32 v32, v32, v32\nv_lshlrev_b32 v33, 1, v0\nds_write_b16 v33, v32")
    a("v_and_b32 v34, 31, v1\nv_lshlrev_b32 v34, 4, v34")
    a("s_max_u32 s9, s3, 1\ns_min_u32 s9, s9, 2\ns_lshl_b32 s9, s9, 10\nv_lshl_add_u32 v35, v1, 2, s9")
    a("v_mov_b32 v36, 0")
    a(f"s_waitcnt lgkmcnt(0)\ns_barrier\nds_read_b128 v[{vQ}:{vQ+3}], v34")
    a(f"ds_read_b128 v[36:39], v36 offset:{L_V}")
    a(f"ds_read2st64_b32 v[40:41], v35 offset0:{L_P//256} offset1:{L_P//256+1}\nds_read2st64_b32 v[42:43], v35 offset0:{L_P//256+2} offset1:{L_P//256+3}")
    a(f"s_lshl_b32 s8, s79, 4\ns_andn2_b32 s9, s{sTAG}, 63\ns_or_b32 s8, s8, s9\ns_lshl_b32 s9, s2, 2\ns_add_u32 s9, s9, {VOTE}")
    a("s_waitcnt lgkmcnt(2)\nv_or3_b32 v36, v36, v37, v38\nv_or3_b32 v36, v36, v39, s8")
    a(f"buffer_store_dword v36, v{vRP}, {SW}, s9 offen sc1")
    a(f"s_waitcnt lgkmcnt(0)\nv_add_f32 v40, v40, v41\nv_add_f32 v42, v42, v43\nv_add_f32 v{vSD}, v40, v42")
    a(f"buffer_store_dwordx2 v[{vSD}:{vSD+1}], v46, {SW}, s14 offen sc1")
    a(f"v_mov_b32 v{vMX}, 0xff800000\nv_mov_b32 v{vLS}, 0")
    for r in range(4): a(f"v_mov_b32 v{ACC+r}, 0")
    stamp(a, 2)
    sb_const(a, sOK, 2)
    k_body(a, RA, lambda j: None if j < B2 else 33, lambda j: kvload(a, RA, j, SK))
    k_body(a, RB, lambda j: 15-j+2+16, lambda j: None)
    sb_const(a, sOK, 3)
    a(f"buffer_load_dwordx4 v[60:63], v17, {SW}, s12 offen sc1")
    k_body(a, RA, lambda j: 16, lambda j: kvload(a, RA, j, SK))
    a(f"s_mov_b32 s96, {SPIN}\ns_waitcnt vmcnt(16)")
    a("vt_chk:")
    for r in range(4): a(f"v_xor_b32 v{32+r}, s{sTAG}, v{60+r}")
    a("v_or3_b32 v32, v32, v33, v34\nv_or_b32 v32, v32, v35\nv_cmp_lt_u32 vcc, 63, v32\ns_cbranch_vccnz vt_spin")
    a("vt_ok:")
    for r in range(4): a(f"v_and_b32 v{32+r}, 3, v{60+r}\nv_and_b32 v{36+r}, 12, v{60+r}")
    a("v_bcnt_u32_b32 v32, v32, 0\nv_bcnt_u32_b32 v36, v36, 0")
    for r in range(1, 4): a(f"v_bcnt_u32_b32 v32, v{32+r}, v32\nv_bcnt_u32_b32 v36, v{36+r}, v36")
    a("v_lshl_add_u32 v32, v36, 16, v32")
    waveall(a, 32, 33, "v_add_u32")
    a("s_andn2_b32 s8, s2, 4\ns_lshr_b32 s8, s8, 2")
    for r in range(4): a(f"v_readlane_b32 s{72+r}, v{60+r}, s8")
    a("v_readfirstlane_b32 s9, v32")
    a("s_bitcmp1_b32 s2, 0\ns_cselect_b32 s72, s73, s72\ns_cselect_b32 s74, s75, s74\ns_bitcmp1_b32 s2, 1\ns_cselect_b32 s72, s74, s72")
    a("s_bfe_u32 s72, s72, 0x10004\ns_xor_b32 s4, s4, s72")
    if STAMP: a("v_writelane_b32 v200, s9, 15")
    if not MIXED:
        a(f"s_lshr_b32 s8, s9, 16\ns_cmp_gt_u32 s8, 256\ns_cselect_b32 s8, 1, 0\ns_xor_b32 s8, s8, s4\ns_lshl_b32 s8, s8, 13\ns_or_b32 s{sOV}, s83, s8")
        a(f"s_xor_b32 s{sXF}, s{sOK}, s{sOV}")
        a(f"s_and_b32 s8, s9, 0xffff\ns_cmp_gt_u32 s8, 256\ns_cselect_b32 s8, 1, 0\ns_xor_b32 s8, s8, s4\ns_lshl_b32 s8, s8, 13\ns_or_b32 s{sOK}, s83, s8")
        a(f"s_xor_b32 s8, s{sOK}, s{sOV}\ns_lshl_b32 s8, s8, 1\ns_or_b32 s{sXF}, s{sXF}, s8")
    else:
        a(f"s_mov_b32 s{sOV}, s{sOK}\ns_mov_b32 s{sXF}, 0")
    stamp(a, 12)
    a(f"s_mov_b32 s{sK}, 4")
    a("k_loop:")
    sb_off(a, sOK, sK)
    k_body(a, RA, lambda j: 15, lambda j: kvload(a, RA, j, SK))
    a(f"s_cmp_lg_u32 s{sK}, 4\ns_cbranch_scc1 k_next\ns_bitcmp0_b32 s{sXF}, 13\ns_cbranch_scc1 k_next")
    a(f"s_waitcnt lgkmcnt(0)\nds_read_b32 v{vSD}, v{vSB}\ns_lshl_b32 s8, s{sXO}, 9\ns_waitcnt lgkmcnt(0)")
    a(f"buffer_store_dwordx2 v[{vSD}:{vSD+1}], v18, {SW}, s8 offen sc1")
    a("k_next:")
    a(f"s_add_u32 s{sK}, s{sK}, 1\ns_cmp_lt_u32 s{sK}, 16\ns_cbranch_scc1 k_loop")
    a(f"s_mov_b32 s{sO}, s{sOV}")
    a(f"s_bitcmp0_b32 s{sXF}, 13\ns_cbranch_scc1 t_nop1")
    xp_load(a)
    a("t_nop1:")
    k_body(a, RA, lambda j: 15, lambda j: kvload(a, RA, j, SV))
    a(f"v_subrev_u32 v{vSW}, 1024, v{vSW}")
    a(f"s_bitcmp0_b32 s{sXF}, 14\ns_cbranch_scc1 t_nor")
    a(f"s_waitcnt lgkmcnt(0)\nds_read2st64_b32 v[24:25], v{vSB} offset0:1 offset1:2\nds_read_b32 v26, v{vSB} offset:768\nv_mov_b32 v27, s{sTAG}")
    a(f"s_lshl_b32 s8, s{sXO}, 10\ns_add_u32 s8, s8, {XR}\ns_waitcnt lgkmcnt(0)")
    a(f"buffer_store_dwordx4 v[24:27], v17, {SW}, s8 offen sc1")
    a("t_nor:")
    a(f"s_bitcmp0_b32 s{sXF}, 13\ns_cbranch_scc1 t_nop2")
    a("s_waitcnt vmcnt(16)")
    x_check(a, "p", 61, xp_load)
    a(f"ds_write_b32 v{vSB}, v60")
    a("t_nop2:")
    a(f"s_mov_b32 s{sK}, 1")
    stamp(a, 3)
    a("v_loop:")
    sb_off(a, sOV, sK)
    a(f"s_bitcmp0_b32 s{sXF}, 14\ns_cbranch_scc1 v_go\ns_cmp_eq_u32 s{sK}, 4\ns_cbranch_scc1 v_xr1\ns_cmp_eq_u32 s{sK}, 5\ns_cbranch_scc1 v_xr2")
    a("v_go:")
    v_head(a, None)
    v_body(a, lambda j: kvload(a, RA, j, SV), lambda j: 15)
    a(f"s_add_u32 s{sK}, s{sK}, 1\ns_cmp_lt_u32 s{sK}, 16\ns_cbranch_scc1 v_loop")
    tagsel(a)
    a("s_cmp_eq_u32 s3, 0\ns_cbranch_scc1 v_last0")
    v_head(a, None)
    v_body(a, lambda j: None, lambda j: 15-j)
    a("s_branch v_end")
    a("v_last0:")
    srd(a, 52, 24, 4096*896)
    a("v_lshrrev_b32 v46, 4, v1\nv_mul_u32_u24 v19, 1792, v46\nv_and_b32 v18, 15, v1\nv_lshlrev_b32 v18, 4, v18\nv_lshl_add_u32 v46, v19, 1, v18\nv_add_u32 v19, v19, v18")
    a("v_and_b32 v18, 7, v1\nv_lshlrev_b32 v18, 6, v18\nv_and_b32 v47, 56, v1\nv_add_u32 v18, v18, v47")
    a(f"s_mul_i32 s10, s2, {16*896}\ns_min_u32 s14, s2, 223\ns_mul_i32 s14, s14, {8*896}\ns_lshl_b32 s12, s2, 10\ns_add_u32 s12, s12, {GU}")
    def wd():
        gu_load(a)
        for i in range(8):
            a(f"buffer_load_dwordx4 {ring(RB,i)}, v19, s[68:71], s14 offen offset:{(i//4)*896+(i%4)*256} nt")
    v_head(a, wd)
    v_body(a, lambda j: a(f"buffer_load_dwordx4 {ring(RA,j)}, v46, s[52:55], s10 offen offset:{(j//4)*896+(j%4)*256} nt"), lambda j: 25)
    a("v_end:")
    stamp(a, 4)
    rowall(a, [vLS]); B32(a, vLS, vT0)
    a(f"v_lshlrev_b32 v{vT1}, 4, v0\nds_write_b128 v{vT1}, v[{ACC}:{ACC+3}] offset:{L_O}")
    a(f"s_lshl_b32 s8, s3, 2\nv_mov_b32 v{vT2}, s8\nds_write_b32 v{vT2}, v{vMX} offset:{L_M}\nds_write_b32 v{vT2}, v{vLS} offset:{L_L}")
    a("s_waitcnt lgkmcnt(0)\ns_barrier")
    a("s_cmp_eq_u32 s3, 0\ns_cbranch_scc1 tail0")
    a("s_cmp_lg_u32 s3, 1\ns_cbranch_scc1 main_fin\ns_cmp_ge_u32 s2, 112\ns_cbranch_scc1 main_fin")
    reducer(a)
    a("s_branch main_fin")
    a("tail0:")
    tail0(a)
    a("main_fin:")
    stamp(a, 7); stamp_out(a)
    a("main_done:\ns_endpgm")
    a("v_xr1:"); xr_load(a); a("s_branch v_go")
    a("v_xr2:\ns_waitcnt vmcnt(16)")
    x_check(a, "r", 63, xr_load)
    a(f"ds_write2st64_b32 v{vSB}, v60, v61 offset0:1 offset1:2\nds_write_b32 v{vSB}, v62 offset:768\ns_branch v_go")
    a("vt_spin:\ns_sub_u32 s96, s96, 1\ns_cmp_eq_u32 s96, 0\ns_cbranch_scc1 vt_ok\ns_sleep 2")
    a(f"buffer_load_dwordx4 v[60:63], v17, {SW}, s12 offen sc1\ns_waitcnt vmcnt(0)\ns_branch vt_chk")
    return a.text(), kd(K, 208 if STAMP else 192, 102)

def gu_load(a):
    a(f"buffer_load_dwordx2 v[42:43], v18, {SW}, s12 offen sc1\nbuffer_load_dwordx2 v[32:33], v18, {SW}, s12 offen offset:512 sc1")

def red4(a, R):
    multiT(a, "v_permlane32_swap_b32", [(R, R+2), (R+1, R+3)])
    T16(a, R, R+1)
    rowall(a, [R])

def reducer(a):
    srd(a, 52, 16, 896); srd(a, 56, 34, 896)
    a(f"v_mov_b32 v18, {hex(OOB)}")
    a(f"s_lshl_b32 s8, s2, 12\ns_add_u32 s8, s8, {YA}\ns_lshl_b32 s10, s2, 3")
    a("v_lshrrev_b32 v30, 4, v1\nv_lshlrev_b32 v30, 1, v30\nv_and_b32 v31, 15, v1\nv_cmp_eq_u32 vcc, 0, v31\nv_cndmask_b32 v31, v18, v30, vcc")
    a("buffer_load_ushort v29, v30, s[52:55], s10 offen")
    for n in range(4):
        a(f"buffer_load_dwordx4 v[{64+4*n}:{67+4*n}], v17, {SW}, s8 offen offset:{1024*n} sc1")
    a(f"s_mov_b32 s96, {SPIN}")
    a("red_spin:")
    a("s_waitcnt vmcnt(0)")
    for n in range(4): tagbad(a, 40+n, 64+4*n, 44+n)
    for n in range(4):
        a(f"v_cmp_ne_u32 s[{60+2*n}:{61+2*n}], 0, v{40+n}")
    a("s_or_b64 s[80:81], s[60:61], s[62:63]\ns_or_b64 s[82:83], s[64:65], s[66:67]\ns_or_b64 s[80:81], s[80:81], s[82:83]\ns_cbranch_scc0 red_ok")
    a("s_sub_u32 s96, s96, 1\ns_cmp_eq_u32 s96, 0\ns_cbranch_scc1 red_ok")
    a("s_sleep 2")
    for n in range(4):
        a(f"s_mov_b64 exec, s[{60+2*n}:{61+2*n}]\ns_cbranch_execz red_skip{n}")
        a(f"buffer_load_dwordx4 v[{64+4*n}:{67+4*n}], v17, {SW}, s8 offen offset:{1024*n} sc1")
        a(f"red_skip{n}:")
    a("s_mov_b64 exec, -1\ns_branch red_spin")
    a("red_ok:")
    stamp(a, 6)
    for r in range(16): a(f"v_and_b32 v{64+r}, 0xffffff00, v{64+r}")
    for r in range(4):
        a(f"v_add_f32 v{64+r}, v{64+r}, v{68+r}\nv_add_f32 v{72+r}, v{72+r}, v{76+r}")
    for r in range(4): a(f"v_add_f32 v{64+r}, v{64+r}, v{72+r}")
    red4(a, 64)
    a("v_lshlrev_b32 v29, 16, v29\nv_add_f32 v64, v64, v29\nv_cvt_pk_bf16_f32 v64, v64, v64")
    a("buffer_store_short v64, v31, s[56:59], s10 offen")
    a("s_cmp_lg_u32 s2, 0\ns_cbranch_scc1 main_fin")
    a(f"s_mov_b32 s8, {EPO}\nv_cmp_eq_u32 vcc, 0, v1\nv_cndmask_b32 v31, v18, v1, vcc\nbuffer_store_dword v{vSD+1}, v31, {SW}, s8 offen")

def tail0(a):
    a(f"v_lshlrev_b32 v{vT1}, 4, v1\nv_mov_b32 v{vT2}, 0")
    a(f"ds_read_b128 v[28:31], v{vT2} offset:{L_M}\nds_read_b128 v[36:39], v{vT2} offset:{L_L}")
    for w in range(4):
        a(f"ds_read_b128 v[{160+4*w}:{163+4*w}], v{vT1} offset:{L_O+1024*w}")
    a("s_waitcnt lgkmcnt(4)")
    a(f"v_max3_f32 v{vMX}, v28, v29, v30\nv_max_f32 v{vMX}, v{vMX}, v31")
    for w in range(4): a(f"v_sub_f32 v{28+w}, v{28+w}, v{vMX}")
    for w in range(4): a(f"v_mul_f32 v{28+w}, s88, v{28+w}")
    for w in range(4): a(f"v_exp_f32 v{28+w}, v{28+w}")
    a(f"v_mul_f32 v{vMX+1}, v28, v36")
    for w in range(1, 4): a(f"v_fmac_f32 v{vMX+1}, v{28+w}, v{36+w}")
    a("s_waitcnt lgkmcnt(0)")
    for r in range(4): a(f"v_mul_f32 v{48+r}, v28, v{160+r}")
    for w in range(1, 4):
        for r in range(4): a(f"v_fmac_f32 v{48+r}, v{28+w}, v{160+4*w+r}")
    tagbytes(a, 48)
    a(f"buffer_store_dwordx4 v[48:51], v{vPO}, {SW}, s{sPO} offen sc1")
    a(f"buffer_store_dwordx4 v[{vMX}:{vMX+3}], v{vPM}, {SW}, s{sPM} offen sc1")
    stamp(a, 5)
    a("v_and_b32 v28, 15, v1\nv_lshlrev_b32 v29, 4, v28\nv_lshlrev_b32 v28, 6, v28\nv_and_b32 v31, 48, v1\nv_add_u32 v28, v28, v31")
    a(f"s_lshl_b32 s8, s2, 10\ns_add_u32 s8, s8, {OIN}\ns_lshl_b32 s10, s5, 8\ns_add_u32 s10, s10, {ML}")
    mask2(a, MK, 1, vT0, vT1)
    a("s_cmp_lt_u32 s2, 224\ns_cselect_b32 s9, -1, 0\ns_waitcnt vmcnt(2)")
    a(f"s_mov_b32 s96, {SPIN}\ngu_chk:")
    a(f"v_xor_b32 v25, s{sTAG}, v43\nv_xor_b32 v26, s{sTAG}, v33\nv_or_b32 v25, v25, v26\nv_and_b32 v25, s9, v25\nv_cmp_ne_u32 vcc, 0, v25\ns_cbranch_vccz gu_ok")
    a("s_sub_u32 s96, s96, 1\ns_cmp_eq_u32 s96, 0\ns_cbranch_scc1 gu_ok\ns_sleep 2")
    gu_load(a)
    a("s_waitcnt vmcnt(0)\ns_branch gu_chk\ngu_ok:")
    a("v_and_b32 v42, s9, v42\nv_and_b32 v32, s9, v32")
    T4(a, 176, 42, 42); T4(a, 177, 32, 32)
    for q in ("[2,3,0,1]", "[1,0,3,2]"):
        for A in (176, 177): a(f"v_add_f32_dpp v{A}, v{A}, v{A} quad_perm:{q} {FULL}")
    g, u = 176, 177
    rnd(a, g, g); rnd(a, u, u)
    a(f"v_mul_f32 v8, v{g}, v{g}\nv_mul_f32 v8, v8, v{g}")
    a(f"v_mul_f32 v8, {fl(0.044715)}, v8\nv_add_f32 v8, v8, v{g}\nv_mul_f32 v8, {fl(0.7978845608028654)}, v8")
    a(f"v_mul_f32 v8, {fl(2*LOG2E)}, v8\nv_exp_f32 v8, v8\nv_add_f32 v8, 1.0, v8\nv_rcp_f32 v8, v8")
    a(f"v_fma_f32 v8, v8, -2.0, 2.0")
    a(f"v_mul_f32 v9, 0.5, v{g}\nv_mul_f32 v8, v8, v9")
    rnd(a, 8, 8)
    a(f"v_mul_f32 v8, v8, v{u}\nv_cvt_pk_bf16_f32 v8, v8, v8")
    for n in range(2):
        for r in range(4):
            a(f"v_and_b32_dpp v{176+4*n+r}, v8, v{MK+r} row_newbcast:{8*n} {FULL}")
    Y = 160
    for n in range(2):
        for blk in range(4):
            D = f"v[{Y+4*blk}:{Y+3+4*blk}]"
            a(f"v_mfma_f32_16x16x32_bf16 {D}, v[{176+4*n}:{179+4*n}], {ring(RB, n*4+blk)}, {'0' if n==0 else D}")
    a(f"s_mov_b32 s96, {SPIN}")
    a("t0_spin:")
    a(f"buffer_load_dwordx4 v[32:35], v28, {SW}, s8 offen sc1")
    a(f"buffer_load_dwordx4 v[36:39], v29, {SW}, s10 offen sc1")
    a("s_waitcnt vmcnt(0)")
    tagbad(a, 40, 32, 41)
    a(f"v_xor_b32 v39, v39, v{vSD+1}\nv_or_b32 v40, v40, v39")
    a("v_cmp_ne_u32 vcc, 0, v40\ns_and_b64 exec, exec, vcc\ns_cbranch_execz t0_ok")
    a("s_sub_u32 s96, s96, 1\ns_cmp_eq_u32 s96, 0\ns_cbranch_scc1 t0_ok")
    a("s_sleep 2\ns_branch t0_spin")
    a("t0_ok:\ns_mov_b64 exec, -1")
    stamp(a, 6)
    a(f"v_max_f32_dpp v38, v36, v36 row_ror:8 {FULL}")
    for r in (4, 2, 1): a(f"v_max_f32_dpp v38, v38, v38 row_ror:{r} {FULL}")
    a("v_sub_f32 v36, v36, v38\nv_mul_f32 v36, s88, v36\nv_exp_f32 v36, v36")
    for r in range(4): a(f"v_and_b32 v{32+r}, 0xffffff00, v{32+r}")
    for r in range(4): a(f"v_mul_f32 v{32+r}, v{32+r}, v36")
    a("v_mul_f32 v36, v36, v37")
    rowall(a, [36, 32, 33, 34, 35])
    a("v_rcp_f32 v37, v36")
    for r in range(4): a(f"v_mul_f32 v{40+r}, v{32+r}, v37")
    for r in range(4): a(f"v_fma_f32 v{32+r}, -v{40+r}, v36, v{32+r}")
    for r in range(4): a(f"v_fma_f32 v{32+r}, v{32+r}, v37, v{40+r}")
    for r in range(4): a(f"v_cvt_pk_bf16_f32 v{32+r}, v{32+r}, v{32+r}")
    for n in range(4):
        for r in range(4): a(f"v_and_b32 v{176+4*n+r}, v{32+n}, v{MK+r}")
    for n in range(4):
        for blk in range(4):
            D = f"v[{Y+4*blk}:{Y+3+4*blk}]"
            a(f"v_mfma_f32_16x16x32_bf16 {D}, v[{176+4*n}:{179+4*n}], {ring(RA, n*4+blk)}, {D}")
    for blk in range(4): tagbytes(a, Y+4*blk)
    y_stores(a, Y, lambda blk: f"v[{Y+4*blk}:{Y+3+4*blk}]")

if __name__ == "__main__":
    t, k = kernel()
    s = HEADER + "; @launch grid=(256,1,1) block=(256,1,1) lds=9216\n"
    s += '.amdgcn_target "amdgcn-amd-amdhsa--gfx950"\n.text\n' + t + k
    open(sys.argv[1], "w").write(s)
```

```python
import sys
from common import *

OPT = set(sys.argv[2:])
STAMP = "stamp" in OPT
MIXED = "mixed" in OPT
SPIN = 200000
WARM = "nowarm" not in OPT
def opt(name, d):
    for o in OPT:
        if o.startswith(name+"="): return int(o.split("=")[1])
    return d
PUBF = "sc0 sc1" if "pub01" in OPT else "sc1"
B1, B2, B3, B4 = opt("B1", 12), opt("B2", 16), opt("B3", 20), opt("B4", 26)
XP   = 0x000000
XR   = 0x080000
OIN  = 0x200000
ML   = 0x240000
YA   = 0x180000
QP   = 0x2C0000
VOTE = 0x2E0000
PRG  = 0x2F0000
EPO  = 0x2F8000
GU   = 0x300000
WSSZ = 0x340000
STB  = 0x390000
NREP = opt('NREP', 8)
VSTR = opt('VSTR', 4352 if NREP <= 8 else 1280)
YS = opt('YS', 4352)
OS = opt('OS', 1024)

def stamp(a, i):
    if STAMP: a(f"s_memrealtime s[98:99]\ns_waitcnt lgkmcnt(0)\nv_writelane_b32 v208, s98, {i}")
def stamp_out(a):
    if STAMP and "dbg" in OPT:
        srd(a, 52, 36, 256)
        a("v_readlane_b32 s8, v208, 0\nv_readlane_b32 s9, v208, 2\nv_readlane_b32 s10, v208, 3\nv_readlane_b32 s11, v208, 4\nv_readlane_b32 s12, v208, 7\nv_readlane_b32 s13, v208, 15\nv_readlane_b32 s14, v208, 1\nv_readlane_b32 s15, v208, 9")
        a("s_not_b32 s72, s8\ns_not_b32 s73, s11\ns_not_b32 s74, s10")
        for i, r in enumerate([72, 8, 14, 15, 9, 74, 10, 73, 11, 12, 13]): a(f"v_writelane_b32 v209, s{r}, {i}")
        a(f"v_lshlrev_b32 v210, 2, v1\nv_mov_b32 v211, {hex(OOB)}\nv_cmp_gt_u32 vcc, 11, v1\nv_cndmask_b32 v210, v211, v210, vcc\nbuffer_atomic_umax v209, v210, s[52:55], 0 offen sc1")
    elif STAMP:
        a(f"s_mov_b32 s50, 0x400000\ns_lshl_b32 s8, s2, 2\ns_add_u32 s8, s8, s3\ns_lshl_b32 s8, s8, 6\ns_add_u32 s8, s8, {STB}")
        a(f"v_lshlrev_b32 v209, 2, v1\nv_mov_b32 v210, {hex(OOB)}\nv_cmp_gt_u32 vcc, 16, v1\nv_cndmask_b32 v209, v210, v209, vcc\nbuffer_store_dword v208, v209, s[48:51], s8 offen")

RA, RB = 64, 128
P0 = 32
vLO, vHI, vQ, vSW, vSB, vSC = 2, 3, 4, 8, 9, 10
vLS, vP, vT0, vT1, vT2 = 12, 13, 14, 15, 16
MK, AA, ACC = 20, 24, 48
vMX, vSH, vSD = 52, 53, 54
vPO, vPM, vY, vY3 = 56, 57, 58, 59
vRP = 19
sOK, sOV, sO, sXF, sK, sTAG = 90, 91, 92, 93, 94, 89
sXO, sXI = 97, 7
sPO, sPM, sYA = 80, 81, 82
L_M, L_L, L_V, L_O, L_P, L_S = 512, 528, 544, 1024, 1024, 5120

def T_of(k): return (k&1)*0x101000 ^ ((k>>1)&1)*0x84000 ^ ((k>>2)&1)*0x40000 ^ (k>>3)*0x20000
def sb_off(a, base, kreg):
    a(f"s_and_b32 s95, s{kreg}, 1\ns_mul_i32 s{sO}, s95, 0x101000")
    a(f"s_bfe_u32 s95, s{kreg}, 0x10001\ns_mul_i32 s95, s95, 0x84000\ns_or_b32 s{sO}, s{sO}, s95")
    a(f"s_bfe_u32 s95, s{kreg}, 0x10002\ns_lshl_b32 s95, s95, 18\ns_or_b32 s{sO}, s{sO}, s95")
    a(f"s_bfe_u32 s95, s{kreg}, 0x10003\ns_lshl_b32 s95, s95, 17\ns_or_b32 s{sO}, s{sO}, s95")
    a(f"s_xor_b32 s{sO}, s{sO}, s{base}")
def sb_const(a, base, k, dst=sO):
    a(f"s_xor_b32 s{dst}, s{base}, {hex(T_of(k))}" if k else f"s_mov_b32 s{dst}, s{base}")
def score_off(a, dst, src=sO):
    a(f"s_lshr_b32 s95, s{src}, 17\ns_lshl_b32 s95, s95, 10\ns_bfe_u32 s{dst}, s{src}, 0x3000c\ns_lshl_b32 s{dst}, s{dst}, 7\ns_or_b32 s{dst}, s{dst}, s95")
def ring(R, j): return f"v[{R+4*j}:{R+4*j+3}]"
def kvload(a, R, j, srdname, so=sO):
    a(f"buffer_load_dwordx4 {ring(R,j)}, v{vLO if j%2==0 else vHI}, {srdname}, s{so} offen offset:{joff(j)} nt")
def joff(j):
    return (j//2)*512 if "oldord" in OPT else ((j>>1)&1)*1024 + ((j>>2)&1)*2048 + (j>>3)*512
GR = opt("GR", 8)
SK, SV, SW = "s[40:43]", "s[44:47]", "s[48:51]"

def k_body(a, R, wait, refill, grouped=True):
    for j in range(16):
        w = wait(j)
        if w is not None: a(f"s_waitcnt vmcnt({w - (j % GR if grouped else 0)})")
        r = R+4*j
        a(f"v_dot2_f32_bf16 v{P0+j}, v{r}, v{vQ}, 0")
        for i in range(1, 4): a(f"v_dot2_f32_bf16 v{P0+j}, v{r+i}, v{vQ+i}, v{P0+j}")
        if j % GR == GR-1:
            for jj in range(j-GR+1, j+1): refill(jj)
    for j in range(8):
        a(f"v_add_f32_dpp v{P0+j}, v{P0+j}, v{P0+j} row_ror:8 row_mask:0xf bank_mask:0x3")
    for j in range(8):
        a(f"v_add_f32_dpp v{P0+j}, v{P0+8+j}, v{P0+8+j} row_ror:8 row_mask:0xf bank_mask:0xc")
    for j in range(4):
        a(f"v_add_f32_dpp v{P0+j}, v{P0+j}, v{P0+j} row_shl:4 row_mask:0xf bank_mask:0x5")
    for j in range(4):
        a(f"v_add_f32_dpp v{P0+j}, v{P0+4+j}, v{P0+4+j} row_shr:4 row_mask:0xf bank_mask:0xa")
    for j in range(4):
        a(f"v_add_f32_dpp v{P0+j}, v{P0+j}, v{P0+j} quad_perm:[2,3,0,1] {FULL}")
    a(f"v_cndmask_b32 v{P0}, v{P0}, v{P0+2}, s[84:85]\nv_cndmask_b32 v{P0+1}, v{P0+1}, v{P0+3}, s[84:85]")
    for j in range(2):
        a(f"v_add_f32_dpp v{P0+j}, v{P0+j}, v{P0+j} quad_perm:[1,0,3,2] {FULL}")
    a(f"v_cndmask_b32 v{P0}, v{P0}, v{P0+1}, s[86:87]")
    B16(a, P0, P0+1)
    a(f"v_mov_b32 v{P0+1}, v{P0}\nv_permlane32_swap_b32 v{P0}, v{P0+1}\nv_cvt_pk_bf16_f32 v{vSD}, v{P0}, v{P0+1}")
    a(f"ds_write_b32 v{vSW}, v{vSD}\nv_add_u32 v{vSW}, 64, v{vSW}")

def v_head(a, extra):
    a(f"ds_read_b32 v{vSC}, v{vSW}\nv_add_u32 v{vSW}, 64, v{vSW}")
    if extra: extra()
    a("s_waitcnt lgkmcnt(0)")
    a(f"v_lshlrev_b32 v{vT2}, v{vSH}, v{vSC}\nv_and_b32 v{vT2}, 0xffff0000, v{vT2}")
    a(f"v_max_f32_dpp v{vT0}, v{vT2}, v{vT2} row_ror:8 {FULL}")
    for r in (4, 2, 1): a(f"v_max_f32_dpp v{vT0}, v{vT0}, v{vT0} row_ror:{r} {FULL}")
    B32(a, vT0, vT1, "v_max_f32")
    a(f"v_max_f32 v{vT0}, v{vT0}, v{vMX}")
    a(f"v_sub_f32 v{vT1}, v{vMX}, v{vT0}\nv_sub_f32 v{vT2}, v{vT2}, v{vT0}")
    a(f"v_mov_b32 v{vMX}, v{vT0}")
    a(f"v_mul_f32 v{vT1}, s88, v{vT1}\nv_mul_f32 v{vT2}, s88, v{vT2}")
    a(f"v_exp_f32 v{vT1}, v{vT1}\nv_exp_f32 v{vT2}, v{vT2}")
    a(f"v_cvt_pk_bf16_f32 v{vP}, v{vT2}, v{vT2}")
    a(f"v_fma_f32 v{vLS}, v{vLS}, v{vT1}, v{vT2}")
    for r in range(4): a(f"v_mul_f32 v{ACC+r}, v{ACC+r}, v{vT1}")

def xp_load(a):
    a(f"s_lshl_b32 s8, s{sXI}, 9\nbuffer_load_dwordx2 v[60:61], v18, {SW}, s8 offen sc1")
def xr_load(a):
    a(f"s_lshl_b32 s8, s{sXI}, 10\ns_add_u32 s8, s8, {XR}\nbuffer_load_dwordx4 v[60:63], v17, {SW}, s8 offen sc1")
def x_check(a, tag, tagreg, load):
    a(f"s_mov_b32 s96, {SPIN}")
    a(f"x_chk_{tag}:")
    a(f"v_cmp_ne_u32 vcc, s{sTAG}, v{tagreg}\ns_cbranch_vccz x_ok_{tag}")
    a(f"s_sub_u32 s96, s96, 1\ns_cmp_eq_u32 s96, 0\ns_cbranch_scc1 x_ok_{tag}\ns_sleep 4")
    load(a)
    a(f"s_waitcnt vmcnt(0)\ns_branch x_chk_{tag}")
    a(f"x_ok_{tag}:")

HELP = "help" in OPT
K0 = opt("K0", 3)
LATE = opt("BV", 0)
if LATE: K0 = 22
KP = opt("KP", 13)
HFL = {0: "nt", 1: "", 2: "sc0", 3: "sc1"}[opt("HF", 0)]
def progress(a, kexpr):
    if not HELP: return
    a(f"s_andn2_b32 s8, s{sTAG}, 31\ns_or_b32 s8, s8, {kexpr}\nv_mov_b32 v{vT0}, s8")
    a(f"buffer_store_dword v{vT0}, v63, {SW}, s13 offen")

def helper(a):
    a(f"s_and_b32 s12, s2, 7\ns_lshl_b32 s12, s12, 10\ns_add_u32 s12, s12, {PRG}")
    a(f"s_andn2_b32 s14, s{sTAG}, 31\ns_mov_b32 s96, {opt('HN', 40)}\nv_lshlrev_b32 v18, 3, v1")
    a(f"s_lshr_b32 s10, s{sXO}, 5\ns_lshl_b32 s10, s10, 2\ns_or_b32 s10, s10, s3")
    a("s_mul_i32 s15, s10, 37\ns_mov_b32 s79, 0")
    if STAMP: a("v_writelane_b32 v208, s79, 13")
    a("h_loop:")
    a(f"buffer_load_dwordx2 v[32:33], v18, {SW}, s12 offen nt\nbuffer_load_dwordx2 v[34:35], v18, {SW}, s12 offen offset:512 nt")
    a("s_waitcnt vmcnt(0)")
    for r in range(4): a(f"v_xor_b32 v{32+r}, s14, v{32+r}")
    for r in range(2):
        a(f"v_cmp_gt_u32 vcc, 32, v{32+r}\nv_cndmask_b32 v{32+r}, 0, v{32+r}, vcc")
    for r in range(2):
        a(f"v_min_u32 v{34+r}, 16, v{34+r}\nv_add_u32 v{34+r}, -1, v{34+r}")
    for r in range(2):
        a(f"v_min_u32 v{36+r}, 15, v{32+r}\nv_add_u32 v{38+r}, {opt('HD', 2)}, v{32+r}")
        a(f"v_cmp_ge_i32 s[{60+4*r}:{61+4*r}], v{34+r}, v{36+r}\nv_cmp_le_i32 s[{62+4*r}:{63+4*r}], v{34+r}, v{38+r}\nv_cmp_gt_u32 vcc, {opt('HM', 17)}, v{32+r}")
        a(f"s_and_b64 s[{60+4*r}:{61+4*r}], s[{60+4*r}:{61+4*r}], s[{62+4*r}:{63+4*r}]\ns_and_b64 s[{60+4*r}:{61+4*r}], s[{60+4*r}:{61+4*r}], vcc")
    a("s_or_b64 s[62:63], s[60:61], s[64:65]\ns_cbranch_scc1 h_work")
    a(f"v_min_u32 v36, v32, v33\nv_cmp_gt_u32 vcc, {opt('HM', 17)}, v36\ns_cbranch_vccz main_fin")
    a("s_sleep 8\ns_sub_u32 s96, s96, 1\ns_cmp_lg_u32 s96, 0\ns_cbranch_scc1 h_loop\ns_branch main_fin")
    a("h_work:")
    if STAMP: a("s_add_u32 s79, s79, 1\nv_writelane_b32 v208, s79, 13")
    a("s_and_b32 s9, s15, 63\ns_lshr_b64 s[66:67], s[62:63], s9\ns_ff1_i32_b64 s8, s[66:67]\ns_add_u32 s9, s9, s8\ns_ff1_i32_b64 s11, s[62:63]\ns_cmp_lt_i32 s8, 0\ns_cselect_b32 s9, s11, s9")
    a("s_bitcmp1_b64 s[60:61], s9\ns_cselect_b32 s8, 0, 1")
    a("v_readlane_b32 s72, v34, s9\nv_readlane_b32 s73, v35, s9")
    a("s_cselect_b32 s72, s72, s73\ns_lshl_b32 s9, s9, 1\ns_or_b32 s9, s9, s8")
    a(f"s_or_b32 s8, s14, s72\nv_mov_b32 v36, s8\ns_lshl_b32 s8, s9, 2\ns_add_u32 s8, s8, s12\nbuffer_store_dword v36, v63, {SW}, s8 offen offset:512")
    a("s_xor_b32 s9, s9, s10")
    a("s_lshr_b32 s8, s9, 2\ns_lshl_b32 s73, s8, 23\ns_and_b32 s8, s9, 1\ns_lshl_b32 s8, s8, 22\ns_or_b32 s73, s73, s8")
    a("s_bfe_u32 s8, s9, 0x10001\ns_mul_i32 s8, s8, 0x202000\ns_or_b32 s73, s73, s8")
    a("s_bfe_u32 s8, s9, 0x10006\ns_lshl_b32 s8, s8, 12\ns_or_b32 s73, s73, s8\ns_bfe_u32 s8, s9, 0x10005\ns_lshl_b32 s8, s8, 14\ns_or_b32 s73, s73, s8")
    a(f"s_xor_b32 s73, s73, s{sOV}")
    sb_off(a, 73, 72)
    for j in range(16):
        a(f"buffer_load_dwordx4 {ring(RA,j)}, v{vLO if j%2==0 else vHI}, {SV}, s{sO} offen offset:{(j//2)*512} {HFL}")
    a(f"s_add_u32 s15, s15, 23\ns_waitcnt vmcnt({opt('HW', 4)})\ns_sub_u32 s96, s96, 1\ns_cmp_lg_u32 s96, 0\ns_cbranch_scc1 h_loop")

def tally(a, T):
    for r in range(4): a(f"v_xor_b32 v{T+r}, s{sTAG}, v{60+r}")
    for r in range(4): a(f"v_cmp_gt_u32 s[{60+2*r}:{61+2*r}], 64, v{T+r}")
    for r in range(4): a(f"v_and_b32 v{T+r}, 3, v{60+r}\nv_and_b32 v{T+4+r}, 12, v{60+r}")
    for r in range(4): a(f"v_bcnt_u32_b32 v{T+r}, v{T+r}, 0\nv_bcnt_u32_b32 v{T+4+r}, v{T+4+r}, 0")
    for r in range(4): a(f"v_lshl_add_u32 v{T+r}, v{T+4+r}, 10, v{T+r}")
    for r in range(4): a(f"v_or_b32 v{T+r}, 0x200000, v{T+r}")
    for r in range(4): a(f"v_cndmask_b32 v{T+r}, 0, v{T+r}, s[{60+2*r}:{61+2*r}]")
    a(f"v_add3_u32 v{T}, v{T}, v{T+1}, v{T+2}\nv_add_u32 v{T}, v{T}, v{T+3}")
    a("s_andn2_b32 s8, s2, 4\ns_lshr_b32 s8, s8, 2")
    for r in range(4): a(f"v_readlane_b32 s{72+r}, v{60+r}, s8")
    waveall(a, T, T+1, "v_add_u32")
    a("s_bitcmp1_b32 s2, 0\ns_cselect_b32 s72, s73, s72\ns_cselect_b32 s74, s75, s74\ns_bitcmp1_b32 s2, 1\ns_cselect_b32 s72, s74, s72")
    a(f"v_readfirstlane_b32 s8, v{T}")
    if STAMP: a("v_writelane_b32 v208, s8, 15")
    a("s_lshr_b32 s73, s8, 20\ns_and_b32 s74, s8, 0x3ff\ns_bfe_u32 s75, s8, 0xa000a")
    a("s_bfe_u32 s9, s72, 0x10004\ns_lshl_b32 s9, s9, 2")
    a("s_cmp_gt_u32 s74, 256\ns_cselect_b32 s8, 1, 0\ns_or_b32 s9, s9, s8\ns_cmp_gt_u32 s75, 256\ns_cselect_b32 s8, 2, 0\ns_or_b32 s9, s9, s8")
    a("s_sub_u32 s8, s73, s74\ns_add_u32 s8, s8, 1\ns_max_u32 s74, s74, s8\ns_sub_u32 s8, s73, s75\ns_add_u32 s8, s8, 1\ns_max_u32 s75, s75, s8\ns_min_u32 s74, s74, s75")
    a(f"s_xor_b32 s72, s72, s{sTAG}\ns_cmp_lt_u32 s72, 64\ns_cselect_b32 s74, s74, 0\ns_cmp_gt_u32 s74, 256")

def classes(a):
    a("s_lshr_b32 s8, s9, 2\ns_xor_b32 s4, s4, s8")
    if not MIXED:
        a(f"s_lshr_b32 s8, s9, 1\ns_xor_b32 s8, s8, s4\ns_and_b32 s8, s8, 1\ns_lshl_b32 s8, s8, 13\ns_or_b32 s{sOV}, s83, s8")
        a(f"s_xor_b32 s{sXF}, s{sOK}, s{sOV}")
        a(f"s_xor_b32 s8, s9, s4\ns_and_b32 s8, s8, 1\ns_lshl_b32 s8, s8, 13\ns_or_b32 s{sOK}, s83, s8")
        a(f"s_xor_b32 s8, s{sOK}, s{sOV}\ns_lshl_b32 s8, s8, 1\ns_or_b32 s{sXF}, s{sXF}, s8")
    else:
        a(f"s_mov_b32 s{sOV}, s{sOK}\ns_mov_b32 s{sXF}, 0")

def tagbytes(a, R):
    for r in range(4): a(f"v_perm_b32 v{R+r}, v{R+r}, v{vSD+1}, s{72+r}")
def tagsel(a):
    for r in range(4): a(f"s_mov_b32 s{72+r}, {hex(0x07060500+r)}")
    a("s_mov_b32 s76, 0x0c0c0400\ns_mov_b32 s77, 0x04000c0c")
def tagbad(a, d, R, t):
    a(f"v_perm_b32 v{d}, v{R+1}, v{R}, s76\nv_perm_b32 v{t}, v{R+3}, v{R+2}, s77")
    a(f"v_or_b32 v{d}, v{d}, v{t}\nv_xor_b32 v{d}, v{d}, v{vSD+1}")

def v_body(a, refill, waits, grouped=True):
    def build(j):
        for r in range(4):
            a(f"v_and_b32_dpp v{AA+4*(j&1)+r}, v{vP}, v{MK+r} row_newbcast:{j} {FULL}")
    build(0)
    for j in range(16):
        a(f"s_waitcnt vmcnt({waits(j) - (j % GR if grouped else 0)})")
        A = AA+4*(j&1)
        a(f"v_mfma_f32_16x16x32_bf16 v[{ACC}:{ACC+3}], v[{A}:{A+3}], {ring(RA,j)}, v[{ACC}:{ACC+3}]")
        if j < 15: build(j+1)
        if j % GR == GR-1:
            for jj in range(j-GR+1, j+1): refill(jj)

def y_stores(a, D, srcfn):
    a(f"s_mov_b32 s8, s{sYA}")
    for blk in range(4):
        a(f"buffer_store_dwordx4 {srcfn(blk)}, v{vY3 if blk==3 else vY}, {SW}, s8 offen {PUBF}")
        if blk < 3: a(f"s_add_u32 s8, s8, {32*YS}")

def startup_bodies(a):
    X = 1 if K0 == 3 else 0
    W0 = "w0poll" in OPT
    if K0 == 3: a(f"buffer_load_dwordx4 v[60:63], v{11 if W0 else 17}, {SW}, s12 offen sc1")
    k_body(a, RA, lambda j: None if j < B2 else 32+X, lambda j: kvload(a, RA, j, SK))
    if "latd" not in OPT: stamp(a, 13)
    k_body(a, RB, lambda j: None if 16+j < B2 else 15-j+1+X+16, lambda j: None, False)
    if "latd" not in OPT: stamp(a, 14)
    if K0 == 3:
        a(f"s_mov_b32 s96, {SPIN}\nv_mov_b32 v40, 0")
        if W0: a("s_cmp_lg_u32 s3, 0\ns_cbranch_scc1 vt_wait")
        a("s_waitcnt vmcnt(16)")
        a("vt_chk:")
        tally(a, 32)
        a("s_cbranch_scc0 vt_spin")
        a("vt_ok:")
        if W0:
            a(f"s_or_b32 s8, s9, 8\nv_mov_b32 v41, s8\nds_write_b32 v40, v41 offset:{L_V+4}\ns_branch vt_have")
            a(f"vt_wait:\nds_read_b32 v41, v40 offset:{L_V+4}\ns_waitcnt lgkmcnt(0)\nv_readfirstlane_b32 s9, v41")
            a("s_bitcmp1_b32 s9, 3\ns_cbranch_scc1 vt_got\ns_sleep 1\ns_sub_u32 s96, s96, 1\ns_cmp_lg_u32 s96, 0\ns_cbranch_scc1 vt_wait")
            a("vt_got:\ns_and_b32 s9, s9, 7\nvt_have:")
        classes(a)

def kernel():
    a = Asm(); K = NAME + "_kernel"
    a(f".globl {K}\n.p2align 8\n.type {K},@function\n{K}:")
    a("s_cmp_ge_u32 s2, 256\ns_cbranch_scc1 main_done")
    stamp(a, 0)
    a("s_load_dwordx16 s[16:31], s[0:1], 0\ns_load_dwordx8 s[32:39], s[0:1], 64\ns_memtime s[100:101]")
    a("v_lshrrev_b32 v1, 6, v0\nv_readfirstlane_b32 s3, v1\nv_and_b32 v1, 63, v0")
    a("s_lshr_b32 s5, s2, 4\ns_and_b32 s6, s2, 15")
    a("v_lshlrev_b32 v17, 4, v1")
    a("v_lshrrev_b32 v18, 3, v1\nv_and_b32 v14, 7, v1\nv_lshlrev_b32 v14, 4, v14\nv_lshl_add_u32 v19, v18, 13, v14")
    a("v_mul_u32_u24 v47, 3584, v18\nv_add_u32 v47, v47, v14")
    a(f"v_mov_b32 v15, {hex(OOB)}\nv_cmp_gt_u32 vcc, 32, v1\nv_cndmask_b32 v14, v15, v19, vcc")
    a("v_cmp_gt_u32 vcc, 48, v1\nv_cndmask_b32 v16, v15, v47, vcc")
    if "noffn" in OPT: a("v_mov_b32 v47, v15\nv_mov_b32 v16, v15")
    if "nowq" in OPT: a("v_mov_b32 v19, v15\nv_mov_b32 v14, v15")
    a("v_lshlrev_b32 v18, 1, v18")
    a(f"v_and_b32 v{vLO}, 31, v1\nv_lshlrev_b32 v{vLO}, 4, v{vLO}\nv_lshrrev_b32 v{vHI}, 5, v1\nv_lshlrev_b32 v{vHI}, 15, v{vHI}\nv_add_u32 v{vLO}, v{vLO}, v{vHI}\nv_add_u32 v{vHI}, 0x10000, v{vLO}")
    a("s_bfe_u32 s7, s2, 0x20002\ns_mul_i32 s8, s7, 112\ns_mul_i32 s9, s3, 28\ns_add_u32 s8, s8, s9\ns_lshl_b32 s9, s8, 1")
    a("s_lshl_b32 s8, s8, 13\ns_lshl_b32 s10, s5, 9\ns_add_u32 s8, s8, s10\ns_and_b32 s10, s2, 3\ns_lshl_b32 s10, s10, 7\ns_add_u32 s8, s8, s10")
    a("s_lshr_b32 s11, s2, 3\ns_and_b32 s13, s2, 7")
    a(f"s_mul_i32 s12, s13, 56\ns_mul_i32 s14, s3, 14\ns_add_u32 s12, s12, s14\ns_mul_i32 s14, s12, 3584\ns_lshl_b32 s12, s12, 1\ns_lshl_b32 s15, s11, 7\ns_add_u32 s14, s14, s15")
    a("s_lshl_b32 s83, s11, 23\ns_and_b32 s10, s3, 1\ns_lshl_b32 s10, s10, 22\ns_or_b32 s83, s83, s10\ns_lshr_b32 s4, s3, 1\ns_lshl_b32 s10, s4, 21\ns_or_b32 s83, s83, s10")
    a("s_lshr_b32 s10, s2, 1\ns_lshr_b32 s15, s2, 7\ns_xor_b32 s10, s10, s15\ns_andn2_b32 s10, 1, s10\ns_lshl_b32 s10, s10, 12\ns_or_b32 s83, s83, s10")
    a("s_lshr_b32 s10, s2, 6\ns_xor_b32 s10, s10, s2\ns_and_b32 s10, s10, 1\ns_lshl_b32 s10, s10, 14\ns_or_b32 s83, s83, s10")
    a(f"s_bfe_u32 s10, s2, 0x10002\ns_xor_b32 s4, s4, s10\ns_lshl_b32 s10, s10, 13\ns_or_b32 s{sOK}, s83, s10")
    a("s_lshl_b32 s74, s11, 23\ns_and_b32 s75, s2, 3\ns_lshl_b32 s75, s75, 21\ns_or_b32 s74, s74, s75")
    a("s_bfe_u32 s75, s2, 0x10002\ns_lshl_b32 s75, s75, 11\ns_or_b32 s74, s74, s75\ns_or_b32 s74, s74, 0x40000")
    a("s_and_b32 s76, s3, 1\ns_lshl_b32 s75, s76, 13\ns_or_b32 s74, s74, s75")
    a("s_getreg_b32 s79, hwreg(HW_REG_XCC_ID)\ns_bfe_u32 s79, s79, 0x10002")
    a("s_xor_b32 s76, s76, s79\ns_xor_b32 s76, s76, s2\ns_and_b32 s76, s76, 1")
    a(f"s_mov_b32 s10, {EPO}\ns_cmp_lt_u32 s3, 2")
    sb_const(a, sOK, 0)
    a("s_waitcnt lgkmcnt(0)")
    a("s_cselect_b32 s72, s18, s20\ns_cselect_b32 s73, s19, s21")
    a(f"s_lshr_b32 s100, s100, 3\ns_mul_i32 s100, s100, 0x9e3779b1\ns_lshr_b32 s100, s100, 8\ns_and_b32 s100, s100, 0x1bd780\ns_or_b32 s74, s74, s100\ns_xor_b32 s75, s74, {hex(opt('WX', 0x400))}")
    a("s_load_dword s78, s[72:73], s75")
    a(f"s_load_dword s{sTAG}, s[38:39], s10\ns_load_dword s77, s[16:17], 0")
    srd(a, 52, 16, 896); srd(a, 56, 22, 448*8192); srd(a, 40, 18, 1 << 28)
    a("buffer_load_dwordx4 v[60:63], v17, s[52:55], 0 offen")
    for n in range(4):
        a(f"buffer_load_ushort v{40+n}, v18, s[52:55], s9 offen offset:{16*n}")
    for n in range(4):
        a(f"buffer_load_dwordx4 v[{160+4*n}:{163+4*n}], v{19 if n<3 else 14}, s[56:59], s8 offen nt")
        if n < 3: a(f"s_add_u32 s8, s8, {8*8192}")
    def kpre(lo, hi):
        for i in range(lo, hi):
            if i == 16: sb_const(a, sOK, 1)
            if LATE and i == LATE: a(f"buffer_load_dwordx4 v[60:63], v17, {SW}, s12 offen sc1")
            kvload(a, RA if i < 16 else RB, i % 16, SK)
    a("s_barrier")
    kpre(0, B1)
    srd(a, 60, 28, 448*3584); srd(a, 64, 30, 448*3584); srd(a, 68, 32, 1792*896)
    srd(a, 44, 20, 1 << 28); srd(a, 48, 38, WSSZ)
    a("s_waitcnt lgkmcnt(0)\ns_lshl_b32 s77, s77, 16")
    stamp(a, 1)
    a(f"s_lshl_b32 s8, s5, 13\ns_add_u32 s8, s8, {QP}\ns_lshl_b32 s9, s3, 9\ns_add_u32 s15, s8, s9")
    a("s_lshl_b32 s9, s7, 11\ns_add_u32 s8, s8, s9\ns_and_b32 s9, s2, 3\ns_lshl_b32 s9, s9, 9\ns_add_u32 s7, s8, s9")
    a(f"v_and_b32 v13, 7, v1\nv_and_b32 v10, 56, v1\nv_lshl_add_u32 v11, v13, 6, v10\nv_lshl_add_u32 v46, v13, 10, v10")
    a(f"v_mul_u32_u24 v{vRP}, {VSTR}, v1\nv_cmp_gt_u32 vcc, {NREP}, v1\nv_cndmask_b32 v{vRP}, v15, v{vRP}, vcc")
    a(f"s_cmp_eq_u32 s3, 0\ns_cselect_b64 vcc, -1, 0\nv_cndmask_b32 v{vSC}, v15, v11, vcc")
    a(f"v_mov_b32 v12, 0\nv_mov_b32 v13, 0\nds_write_b64 v12, v[12:13] offset:{L_V}")
    a(f"s_add_u32 s{sTAG}, s{sTAG}, 0x9e3779b9\nv_mov_b32 v{vSD+1}, s{sTAG}")
    a(f"s_waitcnt vmcnt({B1+8})")
    vM, vS, vR = 20, 21, 22
    ln_stats2(a, 60, 32, vM, vS, vR, 12, 13, 11, 23, 77)
    a(f"s_waitcnt vmcnt({B1+4})")
    center_rows(a, [40, 41, 42, 43], vM)
    scale_rows(a, [40, 41, 42, 43], [24, 25, 26, 27], vS, vR)
    a(f"s_waitcnt vmcnt({B1})")
    stamp(a, 8)
    for n in range(4): gemv8(a, 32, 160+4*n, 24+n, 40+n, n == 0)
    red8(a, 32)
    a(f"v_lshlrev_b32 v12, 2, v0\nds_write_b32 v12, v32 offset:{L_P}\nv_lshlrev_b32 v12, 2, v1")
    a(f"s_waitcnt lgkmcnt(0)\ns_barrier")
    a(f"ds_read2st64_b32 v[32:33], v12 offset0:{L_P//256} offset1:{L_P//256+1}\nds_read2st64_b32 v[34:35], v12 offset0:{L_P//256+2} offset1:{L_P//256+3}")
    a(f"s_waitcnt lgkmcnt(0)\nv_add_f32 v32, v32, v33\nv_add_f32 v34, v34, v35\nv_add_f32 v{vSD}, v32, v34")
    a(f"buffer_store_dwordx2 v[{vSD}:{vSD+1}], v{vSC}, {SW}, s7 offen sc1")
    stamp(a, 9)
    for n in range(2):
        a(f"buffer_load_ushort v{44+n}, v18, s[52:55], s12 offen offset:{16*n}")
    for n in range(2):
        a(f"buffer_load_dwordx4 v[{176+4*n}:{179+4*n}], v{47 if n==0 else 16}, s[60:63], s14 offen nt")
        a(f"buffer_load_dwordx4 v[{184+4*n}:{187+4*n}], v{47 if n==0 else 16}, s[64:67], s14 offen nt")
        if n == 0: a(f"s_add_u32 s14, s14, {8*3584}")
    BA, BB = opt("BA", 0), opt("BB", 0)
    kpre(B1, B2-BA-BB)
    if "latew" in OPT: a("s_xor_b32 s75, s75, 0x200\ns_load_dword s78, s[72:73], s75\ns_waitcnt lgkmcnt(0)")
    for i in range(2):
        a("s_memtime s[100:101]\ns_waitcnt lgkmcnt(0)")
        a(f"s_load_dword s78, s[72:73], s74\ns_waitcnt lgkmcnt(0)\ns_memtime s[96:97]\ns_waitcnt lgkmcnt(0)")
        a(f"s_sub_u32 s{8+i}, s96, s100")
        if i == 0:
            a("s_xor_b32 s74, s74, 0x2000"); kpre(B2-BA-BB, B2-BB)
    if "latd" in OPT: a("s_lshl_b32 s10, s76, 31\ns_or_b32 s10, s10, s8\nv_writelane_b32 v208, s10, 13\nv_writelane_b32 v208, s9, 14")
    a("s_cmp_lt_u32 s9, s8\ns_cselect_b32 s8, 1, 0\ns_xor_b32 s8, s8, s76\ns_lshl_b32 s8, s8, s3")
    a(f"s_or_b32 s8, s8, 0x100\nv_mov_b32 v12, s8\nv_mov_b32 v13, 0\ns_mov_b64 exec, 1\nds_add_rtn_u32 v13, v13, v12 offset:{L_V}\ns_mov_b64 exec, -1")
    a(f"s_lshl_b32 s10, s79, 4\ns_andn2_b32 s9, s{sTAG}, 63\ns_or_b32 s10, s10, s9\ns_lshl_b32 s9, s2, 2\ns_add_u32 s9, s9, {VOTE}")
    a("s_waitcnt lgkmcnt(0)\nv_readfirstlane_b32 s72, v13\ns_add_u32 s72, s72, s8\ns_cmp_lt_u32 s72, 0x400\ns_cbranch_scc1 novote")
    a(f"s_and_b32 s72, s72, 15\ns_or_b32 s72, s72, s10\nv_mov_b32 v12, s72\nbuffer_store_dword v12, v{vRP}, {SW}, s9 offen sc1")
    a("novote:")
    kpre(B2-BB, B2)
    a(f"s_lshl_b32 s9, s3, 10\ns_add_u32 s9, s9, {L_S}\nv_and_b32 v{vSW}, 15, v1\nv_lshl_add_u32 v{vSW}, v{vSW}, 2, s9\nv_lshl_add_u32 v{vSB}, v1, 2, s9")
    a(f"s_lshl_b32 s{sXO}, s2, 2\ns_add_u32 s{sXO}, s{sXO}, s3\ns_xor_b32 s{sXI}, s{sXO}, 16")
    a(f"v_cmp_gt_u32 vcc, 32, v1\nv_cndmask_b32 v{vSH}, 0, 16, vcc")
    a("s_mov_b32 s84, 0xcccccccc\ns_mov_b32 s85, 0xcccccccc\ns_mov_b32 s86, 0xaaaaaaaa\ns_mov_b32 s87, 0xaaaaaaaa")
    a(f"s_mov_b32 s88, {fl(CEXP)}")
    a(f"v_lshrrev_b32 v{vPO}, 5, v1\nv_lshlrev_b32 v{vPO}, 13, v{vPO}\nv_bfe_u32 v12, v1, 1, 3\nv_lshlrev_b32 v12, 10, v12\nv_add_u32 v{vPO}, v{vPO}, v12")
    a(f"v_and_b32 v12, 1, v1\nv_lshlrev_b32 v12, 5, v12\nv_add_u32 v{vPO}, v{vPO}, v12\nv_and_b32 v12, 16, v1\nv_add_u32 v{vPO}, v{vPO}, v12")
    a(f"v_cmp_eq_u32 vcc, 0, v1\nv_cndmask_b32 v{vPM}, v15, v1, vcc")
    yaddr(a, vY, vY3, 1, 12, 13, YS)
    a(f"s_lshl_b32 s{sPO}, s5, 14\ns_lshl_b32 s10, s6, 6\ns_add_u32 s{sPO}, s{sPO}, s10\ns_add_u32 s{sPO}, s{sPO}, {OIN}")
    a(f"s_lshl_b32 s{sPM}, s2, 4\ns_add_u32 s{sPM}, s{sPM}, {ML}\ns_lshl_b32 s{sYA}, s2, 4\ns_add_u32 s{sYA}, s{sYA}, {YA}")
    a("s_cmp_eq_u32 s3, 0\ns_cselect_b64 vcc, -1, 0")
    for r in (vPO, vPM, vY, vY3): a(f"v_cndmask_b32 v{r}, v15, v{r}, vcc")
    a(f"s_lshl_b32 s14, s11, 13\ns_lshl_b32 s10, s13, 6\ns_add_u32 s14, s14, s10\ns_lshl_b32 s10, s3, 9\ns_add_u32 s14, s14, s10\ns_add_u32 s14, s14, {GU-512}")
    a(f"s_cmp_lt_u32 s11, 28\ns_cselect_b32 s10, 0, {hex(OOB)}\ns_add_u32 s9, s3, 3\ns_bitcmp1_b32 s9, 1\ns_cselect_b32 s10, {hex(OOB)}, s10\nv_or_b32 v46, s10, v46")
    a(f"s_and_b32 s12, s11, {NREP-1}\ns_mul_i32 s12, s12, {VSTR}\ns_add_u32 s12, s12, {VOTE}\nv_lshlrev_b32 v17, 4, v1\nv_lshlrev_b32 v18, 3, v1")
    a("s_cmp_eq_u32 s3, 0\ns_cselect_b64 vcc, -1, 0\ns_cselect_b32 s77, -64, 0\nv_cndmask_b32 v47, v15, v17, vcc\nv_mov_b32 v11, v47")
    a(f"s_waitcnt vmcnt({B2-B1+4})")
    center_rows(a, [44, 45], vM)
    scale_rows(a, [44, 45], [12, 13], vS, vR)
    a(f"s_waitcnt vmcnt({B2-B1})")
    aG, aU = 24, 192
    for n in range(2):
        gemv8(a, aG, 176+4*n, 12+n, 44+n, n == 0)
        gemv8(a, aU, 184+4*n, 12+n, 44+n, n == 0)
    stamp(a, 10)
    def gather():
        for rb in range(4):
            if rb == 2: a("s_add_u32 s9, s15, 4096")
            a(f"buffer_load_dwordx2 v[{32+2*rb}:{33+2*rb}], v18, {SW}, s{15 if rb<2 else 9} offen offset:{2048*(rb&1)} sc1")
        if K0 == 2: a(f"buffer_load_dwordx4 v[60:63], v47, {SW}, s12 offen sc1")
    chk_n = [0]
    def check(ok):
        chk_n[0] += 1; n = chk_n[0]
        if K0 == 2:
            a(f"s_cmp_lg_u32 s3, 0\ns_cbranch_scc1 chk_q{n}")
            tally(a, 24)
            a(f"s_cbranch_scc0 chk_no{n}")
            a(f"chk_q{n}:")
        a(f"v_xor_b32 v40, s{sTAG}, v33\nv_xor_b32 v41, s{sTAG}, v35\nv_xor_b32 v42, s{sTAG}, v37\nv_xor_b32 v43, s{sTAG}, v39")
        a("v_or3_b32 v40, v40, v41, v42\nv_or_b32 v40, v40, v43")
        a(f"v_cmp_ne_u32 vcc, 0, v40\ns_cbranch_vccz {ok}")
        a(f"chk_no{n}:")
    gather(); kpre(B2, B3)
    red8(a, aG); red8(a, aU)
    a(f"v_lshlrev_b32 v12, 2, v0\nds_write_b32 v12, v{aG} offset:{L_P+1024}\nds_write_b32 v12, v{aU} offset:{L_P+2048}")
    mask1(a, MK, 1, vT0, vT1)
    a(f"s_waitcnt vmcnt({B3-B2})")
    check("g_ok1")
    gather(); kpre(B3, B4)
    a(f"s_waitcnt vmcnt({B4-B3})")
    check("g_ok2")
    gather(); kpre(B4, 32)
    a(f"s_mov_b32 s96, {SPIN}\ns_waitcnt vmcnt({32-B4+(1 if LATE else 0)})")
    a("g_spin:")
    check("g_ok3")
    a("s_sub_u32 s96, s96, 1\ns_cmp_eq_u32 s96, 0\ns_cbranch_scc1 g_ok3\ns_sleep 8")
    gather()
    a("s_waitcnt vmcnt(0)\ns_branch g_spin")
    a("g_ok1:"); kpre(B3, B4)
    a("g_ok2:"); kpre(B4, 32)
    a("g_ok3:")
    stamp(a, 11)
    a("v_add_f32 v32, v32, v34\nv_add_f32 v36, v36, v38\nv_add_f32 v32, v32, v36")
    a("v_cvt_pk_bf16_f32 v32, v32, v32\nv_lshlrev_b32 v33, 1, v0\nds_write_b16 v33, v32")
    a("v_and_b32 v34, 31, v1\nv_lshlrev_b32 v34, 4, v34")
    a("s_max_u32 s8, s3, 1\ns_min_u32 s8, s8, 2\ns_lshl_b32 s8, s8, 10\nv_lshl_add_u32 v35, v1, 2, s8")
    if K0 == 2:
        a(f"v_mov_b32 v37, 0\ns_cmp_lg_u32 s3, 0\ns_cbranch_scc1 notally\nv_mov_b32 v36, s9\nds_write_b32 v37, v36 offset:{L_V+4}\nnotally:")
    a(f"s_waitcnt lgkmcnt(0)\ns_barrier")
    if K0 == 2: a(f"ds_read_b32 v36, v37 offset:{L_V+4}")
    a(f"ds_read_b128 v[{vQ}:{vQ+3}], v34")
    a(f"ds_read2st64_b32 v[40:41], v35 offset0:{L_P//256} offset1:{L_P//256+1}\nds_read2st64_b32 v[42:43], v35 offset0:{L_P//256+2} offset1:{L_P//256+3}")
    if K0 == 2:
        a("s_waitcnt lgkmcnt(3)\nv_readfirstlane_b32 s9, v36")
        classes(a)
    a(f"s_waitcnt lgkmcnt(0)\nv_add_f32 v40, v40, v41\nv_add_f32 v42, v42, v43\nv_add_f32 v{vSD}, v40, v42")
    a(f"buffer_store_dwordx2 v[{vSD}:{vSD+1}], v46, {SW}, s14 offen sc1")
    a(f"v_mov_b32 v{vMX}, 0xff800000\nv_mov_b32 v{vLS}, 0")
    for r in range(4): a(f"v_mov_b32 v{ACC+r}, 0")
    stamp(a, 2)
    if LATE:
        assert B2 >= 16 and LATE >= B4
        k_body(a, RA, lambda j: None, lambda j: None)
        if "latd" not in OPT: stamp(a, 13)
        a(f"s_mov_b32 s96, {SPIN}\ns_waitcnt vmcnt({32-LATE+1})")
        a("vt_chk:")
        tally(a, 32)
        a("s_cbranch_scc0 vt_spin")
        a("vt_ok:")
        classes(a)
        sb_const(a, sOK, 2)
        for j in range(16): kvload(a, RA, j, SK)
        k_body(a, RB, lambda j: None if 16+j < LATE else 15-j+1+16, lambda j: None, False)
        if "latd" not in OPT: stamp(a, 14)
    else:
      sb_const(a, sOK, 2)
      startup_bodies(a)
    a(f"s_mov_b32 s{sK}, 3")
    a("k_loop:")
    sb_off(a, sOK, sK)
    k_body(a, RA, lambda j: 15, lambda j: kvload(a, RA, j, SK))
    if STAMP:
        a(f"s_cmp_lg_u32 s{sK}, 3\ns_cbranch_scc1 k_st"); stamp(a, 12); a("k_st:")
    a(f"s_cmp_lg_u32 s{sK}, 4\ns_cbranch_scc1 k_next\ns_cmp_eq_u32 s{sXF}, 0\ns_cbranch_scc1 k_next")
    a(f"s_waitcnt lgkmcnt(0)\nds_read_b32 v{vSD}, v{vSB}\ns_lshl_b32 s8, s{sXO}, 9\ns_waitcnt lgkmcnt(0)")
    a(f"buffer_store_dwordx2 v[{vSD}:{vSD+1}], v18, {SW}, s8 offen sc1")
    a("k_next:")
    a(f"s_add_u32 s{sK}, s{sK}, 1\ns_cmp_lt_u32 s{sK}, 16\ns_cbranch_scc1 k_loop")
    a(f"s_mov_b32 s{sO}, s{sOV}")
    a(f"s_cmp_eq_u32 s{sXF}, 0\ns_cbranch_scc1 t_nop1")
    xp_load(a)
    a("t_nop1:")
    k_body(a, RA, lambda j: 15, lambda j: kvload(a, RA, j, SV))
    a(f"v_subrev_u32 v{vSW}, 1024, v{vSW}")
    a(f"s_bitcmp0_b32 s{sXF}, 14\ns_cbranch_scc1 t_nor")
    a(f"s_waitcnt lgkmcnt(0)\nds_read2st64_b32 v[24:25], v{vSB} offset0:1 offset1:2\nds_read_b32 v26, v{vSB} offset:768\nv_mov_b32 v27, s{sTAG}")
    a(f"s_lshl_b32 s8, s{sXO}, 10\ns_add_u32 s8, s8, {XR}\ns_waitcnt lgkmcnt(0)")
    a(f"buffer_store_dwordx4 v[24:27], v17, {SW}, s8 offen sc1")
    a("t_nor:")
    a(f"s_cmp_eq_u32 s{sXF}, 0\ns_cbranch_scc1 t_nop2")
    a("s_waitcnt vmcnt(16)")
    x_check(a, "p", 61, xp_load)
    pm = (1 << (16*(2 if LATE else K0))) - 1
    a(f"s_mov_b32 s8, {hex(pm & 0xffffffff)}\ns_mov_b32 s9, {hex(pm >> 32)}\ns_bitcmp1_b32 s{sXF}, 13\ns_cselect_b64 s[10:11], s[8:9], 0")
    a(f"s_not_b64 s[8:9], s[8:9]\ns_bitcmp1_b32 s{sXF}, 14\ns_cselect_b64 s[8:9], s[8:9], 0\ns_or_b64 exec, s[8:9], s[10:11]")
    a(f"ds_write_b32 v{vSB}, v60\ns_mov_b64 exec, -1")
    a("t_nop2:")
    a(f"s_mov_b32 s{sK}, 1")
    stamp(a, 3)
    a("v_loop:")
    sb_off(a, sOV, sK)
    a(f"s_bitcmp0_b32 s{sXF}, 14\ns_cbranch_scc1 v_go\ns_cmp_eq_u32 s{sK}, 4\ns_cbranch_scc1 v_xr1\ns_cmp_eq_u32 s{sK}, 5\ns_cbranch_scc1 v_xr2")
    a("v_go:")
    if HELP:
        a(f"s_cmp_lt_u32 s{sK}, {KP}\ns_cbranch_scc1 v_go2")
        a(f"s_cmp_lg_u32 s{sK}, {KP}\ns_cbranch_scc1 v_go1")
        a(f"v_mov_b32 v63, {hex(OOB)}\nv_cmp_eq_u32 vcc, 0, v1\nv_cndmask_b32 v63, v63, v1, vcc")
        a(f"s_and_b32 s13, s2, 7\ns_lshl_b32 s13, s13, 10\ns_lshr_b32 s8, s2, 3\ns_lshl_b32 s8, s8, 4\ns_add_u32 s13, s13, s8\ns_lshl_b32 s8, s3, 2\ns_add_u32 s13, s13, s8\ns_add_u32 s13, s13, {PRG}")
        a("v_go1:")
        progress(a, f"s{sK}")
        a("v_go2:")
    v_head(a, None)
    v_body(a, lambda j: kvload(a, RA, j, SV), lambda j: 15)
    a(f"s_add_u32 s{sK}, s{sK}, 1\ns_cmp_lt_u32 s{sK}, 16\ns_cbranch_scc1 v_loop")
    tagsel(a)
    progress(a, "16")
    a("s_cmp_eq_u32 s3, 0\ns_cbranch_scc1 v_last0")
    v_head(a, None); ml_out(a)
    v_body(a, lambda j: None, lambda j: 15-j+HELP, False)
    a("s_branch v_end")
    a("v_last0:")
    srd(a, 52, 24, 4096*896)
    a("v_lshrrev_b32 v46, 4, v1\nv_mul_u32_u24 v19, 1792, v46\nv_and_b32 v18, 15, v1\nv_lshlrev_b32 v18, 4, v18\nv_lshl_add_u32 v46, v19, 1, v18\nv_add_u32 v19, v19, v18")
    a("v_and_b32 v18, 7, v1\nv_lshlrev_b32 v18, 6, v18\nv_and_b32 v47, 56, v1\nv_add_u32 v18, v18, v47")
    a(f"s_mul_i32 s10, s2, {16*896}\ns_min_u32 s14, s2, 223\ns_mul_i32 s14, s14, {8*896}\ns_lshl_b32 s12, s2, 10\ns_add_u32 s12, s12, {GU}")
    def wd():
        gu_load(a)
        for i in range(8):
            a(f"buffer_load_dwordx4 {ring(RB,i)}, v19, s[68:71], s14 offen offset:{(i//4)*896+(i%4)*256} nt")
    v_head(a, wd); ml_out(a)
    v_body(a, lambda j: a(f"buffer_load_dwordx4 {ring(RA,j)}, v46, s[52:55], s10 offen offset:{(j//4)*896+(j%4)*256} nt"), lambda j: 25+HELP)
    a("v_end:")
    stamp(a, 4)
    progress(a, "17")
    a(f"ds_write_b128 v{vT1}, v[{ACC}:{ACC+3}] offset:{L_O}")
    a("s_waitcnt lgkmcnt(0)\ns_barrier")
    a("s_cmp_eq_u32 s3, 0\ns_cbranch_scc1 tail0")
    if "redw1" in OPT:
        a(f"s_cmp_lg_u32 s3, 1\ns_cbranch_scc1 main_fin\ns_cmp_ge_u32 s2, 112\ns_cbranch_scc1 main_fin")
        reducer_pre(a); reducer(a)
    a("s_branch main_fin")
    a("tail0:")
    tail0(a)
    if "redw1" not in OPT:
        stamp(a, 8)
        a("s_cmp_ge_u32 s2, 112\ns_cbranch_scc1 main_fin")
        reducer(a)
    a("main_fin:")
    stamp(a, 7); stamp_out(a)
    a("main_done:\ns_endpgm")
    a("v_xr1:"); xr_load(a); a("s_branch v_go")
    a("v_xr2:\ns_waitcnt vmcnt(16)")
    x_check(a, "r", 63, xr_load)
    a(f"ds_write2st64_b32 v{vSB}, v60, v61 offset0:1 offset1:2\nds_write_b32 v{vSB}, v62 offset:768\ns_branch v_go")
    if K0 == 3 or LATE:
        a("vt_spin:\ns_sub_u32 s96, s96, 1\ns_cmp_eq_u32 s96, 0\ns_cbranch_scc1 vt_ok\ns_sleep 8")
        a(f"buffer_load_dwordx4 v[60:63], v17, {SW}, s12 offen sc1\ns_waitcnt vmcnt(0)\ns_branch vt_chk")
    return a.text(), kd(K, 216 if STAMP else 200, 102)

def ml_out(a):
    rowall(a, [vLS]); B32(a, vLS, vT0)
    a(f"s_lshl_b32 s8, s3, 2\nv_mov_b32 v{vT2}, s8\nds_write_b32 v{vT2}, v{vMX} offset:{L_M}\nds_write_b32 v{vT2}, v{vLS} offset:{L_L}")
    a(f"v_lshlrev_b32 v{vT1}, 4, v0\nv_mov_b32 v{vT2}, 0")

def gu_load(a):
    a(f"buffer_load_dwordx2 v[42:43], v18, {SW}, s12 offen sc1\nbuffer_load_dwordx2 v[32:33], v18, {SW}, s12 offen offset:512 sc1")

def red4(a, R):
    multiT(a, "v_permlane32_swap_b32", [(R, R+2), (R+1, R+3)])
    T16(a, R, R+1)
    rowall(a, [R])

def reducer_pre(a):
    srd(a, 52, 16, 896); srd(a, 56, 34, 896)
    a(f"v_mov_b32 v18, {hex(OOB)}\nv_lshlrev_b32 v17, 4, v1")
    a(f"s_mul_i32 s11, s2, {YS}\ns_add_u32 s11, s11, {YA}\ns_min_u32 s13, s2, 111\ns_lshl_b32 s13, s13, 3")
    a("v_lshrrev_b32 v2, 4, v1\nv_lshlrev_b32 v2, 1, v2\nv_and_b32 v3, 15, v1\nv_cmp_eq_u32 vcc, 0, v3\nv_cndmask_b32 v3, v18, v2, vcc")
    a("buffer_load_ushort v4, v2, s[52:55], s13 offen")
    for n in range(4): a(f"v_mov_b32 v{10+n}, v17\ns_mov_b64 s[{60+2*n}:{61+2*n}], -1")

def reducer(a):
    NS = opt("RN", 1)
    def sweep(k):
        for n in range(4):
            R = 80+16*k+4*n
            a(f"buffer_load_dwordx4 v[{R}:{R+3}], v{10+n}, {SW}, s11 offen offset:{1024*n} sc1")
    for k in range(NS):
        sweep(k)
        if k < NS-1: a(f"s_sleep {opt('RG', 6)//NS*1}")
    a(f"s_mov_b32 s96, {SPIN}")
    a("red_spin:")
    for k in range(NS):
        a(f"s_waitcnt vmcnt({4*(NS-1)})")
        for n in range(4):
            R = 80+16*k+4*n
            a(f"s_mov_b64 exec, s[{60+2*n}:{61+2*n}]\ns_cbranch_execz red_skip{k}_{n}")
            tagbad(a, 40, R, 41)
            a(f"v_cmp_eq_u32 vcc, 0, v40\ns_andn2_b64 s[{60+2*n}:{61+2*n}], exec, vcc\ns_and_b64 exec, exec, vcc")
            for r in range(4): a(f"v_and_b32 v{64+4*n+r}, 0xffffff00, v{R+r}")
            a(f"v_mov_b32 v{10+n}, v18")
            a(f"red_skip{k}_{n}:")
        a("s_mov_b64 exec, -1")
        a("s_or_b64 s[80:81], s[60:61], s[62:63]\ns_or_b64 s[82:83], s[64:65], s[66:67]\ns_or_b64 s[80:81], s[80:81], s[82:83]\ns_cbranch_scc0 red_ok")
        if opt("RS", 0): a(f"s_sleep {opt('RS', 0)}")
        sweep(k)
    a("s_sub_u32 s96, s96, 1\ns_cmp_lg_u32 s96, 0\ns_cbranch_scc1 red_spin")
    a("red_ok:")
    stamp(a, 6 if "redw1" in OPT else 1)
    for r in range(4):
        a(f"v_add_f32 v{64+r}, v{64+r}, v{68+r}\nv_add_f32 v{72+r}, v{72+r}, v{76+r}")
    for r in range(4): a(f"v_add_f32 v{64+r}, v{64+r}, v{72+r}")
    red4(a, 64)
    a("v_lshlrev_b32 v4, 16, v4\nv_add_f32 v64, v64, v4\nv_cvt_pk_bf16_f32 v64, v64, v64")
    a("buffer_store_short v64, v3, s[56:59], s13 offen")
    a("s_cmp_lg_u32 s2, 0\ns_cbranch_scc1 main_fin")
    a(f"s_mov_b32 s8, {EPO}\nv_cmp_eq_u32 vcc, 0, v1\nv_cndmask_b32 v3, v18, v1, vcc\nbuffer_store_dword v{vSD+1}, v3, {SW}, s8 offen")

def tail0(a):
    a(f"ds_read_b128 v[28:31], v{vT2} offset:{L_M}\nds_read_b128 v[36:39], v{vT2} offset:{L_L}")
    for w in range(4):
        a(f"ds_read_b128 v[{160+4*w}:{163+4*w}], v{vT1} offset:{L_O+1024*w}")
    a("v_and_b32 v44, 15, v1\nv_lshlrev_b32 v45, 4, v44\nv_lshlrev_b32 v44, 6, v44\nv_and_b32 v47, 48, v1\nv_add_u32 v44, v44, v47")
    a(f"s_lshl_b32 s15, s2, 10\ns_add_u32 s15, s15, {OIN}\ns_lshl_b32 s10, s5, 8\ns_add_u32 s10, s10, {ML}")
    a("s_waitcnt lgkmcnt(4)")
    a(f"v_max3_f32 v{vMX}, v28, v29, v30\nv_max_f32 v{vMX}, v{vMX}, v31")
    for w in range(4): a(f"v_sub_f32 v{28+w}, v{28+w}, v{vMX}")
    for w in range(4): a(f"v_mul_f32 v{28+w}, s88, v{28+w}")
    for w in range(4): a(f"v_exp_f32 v{28+w}, v{28+w}")
    a(f"v_mul_f32 v{vMX+1}, v28, v36")
    for w in range(1, 4): a(f"v_fmac_f32 v{vMX+1}, v{28+w}, v{36+w}")
    a("s_waitcnt lgkmcnt(0)")
    for r in range(4): a(f"v_mul_f32 v{48+r}, v28, v{160+r}")
    for w in range(1, 4):
        for r in range(4): a(f"v_fmac_f32 v{48+r}, v{28+w}, v{160+4*w+r}")
    tagbytes(a, 48)
    a(f"buffer_store_dwordx4 v[48:51], v{vPO}, {SW}, s{sPO} offen {PUBF}")
    a(f"buffer_store_dwordx4 v[{vMX}:{vMX+3}], v{vPM}, {SW}, s{sPM} offen {PUBF}")
    stamp(a, 5)
    SETS = [24, 144, 152][:opt("TN", 1)]
    def poll(R):
        a(f"buffer_load_dwordx4 v[{R}:{R+3}], v44, {SW}, s15 offen sc1")
        a(f"buffer_load_dwordx4 v[{R+4}:{R+7}], v45, {SW}, s10 offen sc1")
    poll(SETS[0])
    mask2(a, MK, 1, vT0, vT1)
    a("s_cmp_lt_u32 s2, 224\ns_cselect_b32 s9, -1, 0\ns_waitcnt vmcnt(4)")
    a(f"s_mov_b32 s96, {SPIN}\ngu_chk:")
    a(f"v_xor_b32 v40, s{sTAG}, v43\nv_xor_b32 v41, s{sTAG}, v33\nv_or_b32 v40, v40, v41\nv_and_b32 v40, s9, v40\nv_cmp_ne_u32 vcc, 0, v40\ns_cbranch_vccz gu_ok")
    a("s_sub_u32 s96, s96, 1\ns_cmp_eq_u32 s96, 0\ns_cbranch_scc1 gu_ok\ns_sleep 2")
    gu_load(a)
    a("s_waitcnt vmcnt(0)\ns_branch gu_chk\ngu_ok:")
    a("v_and_b32 v42, s9, v42\nv_and_b32 v32, s9, v32")
    T4(a, 176, 42, 42); T4(a, 177, 32, 32)
    for q in ("[2,3,0,1]", "[1,0,3,2]"):
        for A in (176, 177): a(f"v_add_f32_dpp v{A}, v{A}, v{A} quad_perm:{q} {FULL}")
    g, u = 176, 177
    rnd(a, g, g); rnd(a, u, u)
    a(f"v_mul_f32 v8, v{g}, v{g}\nv_mul_f32 v8, v8, v{g}")
    a(f"v_mul_f32 v8, {fl(0.044715)}, v8\nv_add_f32 v8, v8, v{g}\nv_mul_f32 v8, {fl(0.7978845608028654)}, v8")
    a(f"v_mul_f32 v8, {fl(2*LOG2E)}, v8\nv_exp_f32 v8, v8\nv_add_f32 v8, 1.0, v8\nv_rcp_f32 v8, v8")
    a(f"v_fma_f32 v8, v8, -2.0, 2.0")
    a(f"v_mul_f32 v9, 0.5, v{g}\nv_mul_f32 v8, v8, v9")
    rnd(a, 8, 8)
    a(f"v_mul_f32 v8, v8, v{u}\nv_cvt_pk_bf16_f32 v8, v8, v8")
    for n in range(2):
        for r in range(4):
            a(f"v_and_b32_dpp v{176+4*n+r}, v8, v{MK+r} row_newbcast:{8*n} {FULL}")
    Y = 160
    for n in range(2):
        for blk in range(4):
            D = f"v[{Y+4*blk}:{Y+3+4*blk}]"
            a(f"v_mfma_f32_16x16x32_bf16 {D}, v[{176+4*n}:{179+4*n}], {ring(RB, n*4+blk)}, {'0' if n==0 else D}")
    if "redw1" not in OPT: reducer_pre(a)
    for R in SETS[1:]:
        poll(R)
        if R != SETS[-1]: a(f"s_sleep {opt('TG', 2)}")
    a(f"s_mov_b32 s96, {SPIN}")
    a("t0_spin:")
    for R in SETS:
        a(f"s_waitcnt vmcnt({2*(len(SETS)-1)})")
        tagbad(a, 40, R, 41)
        a(f"v_xor_b32 v41, v{R+7}, v{vSD+1}\nv_or_b32 v40, v40, v41")
        a("v_cmp_eq_u32 vcc, 0, v40\ns_andn2_b64 s[78:79], exec, vcc\ns_and_b64 exec, exec, vcc")
        for r in range(4): a(f"v_and_b32 v{32+r}, 0xffffff00, v{R+r}")
        a(f"v_mov_b32 v36, v{R+4}\nv_mov_b32 v37, v{R+5}")
        a("s_mov_b64 exec, s[78:79]\ns_cbranch_execz t0_ok")
        if opt("TS", 0): a(f"s_sleep {opt('TS', 0)}")
        poll(R)
    a("s_sub_u32 s96, s96, 1\ns_cmp_lg_u32 s96, 0\ns_cbranch_scc1 t0_spin")
    a("t0_ok:\ns_mov_b64 exec, -1")
    stamp(a, 6)
    a(f"v_max_f32_dpp v38, v36, v36 row_ror:8 {FULL}")
    for r in (4, 2, 1): a(f"v_max_f32_dpp v38, v38, v38 row_ror:{r} {FULL}")
    a("v_sub_f32 v36, v36, v38\nv_mul_f32 v36, s88, v36\nv_exp_f32 v36, v36")
    for r in range(4): a(f"v_mul_f32 v{32+r}, v{32+r}, v36")
    a("v_mul_f32 v36, v36, v37")
    rowall(a, [36, 32, 33, 34, 35])
    a("v_rcp_f32 v37, v36")
    for r in range(4): a(f"v_mul_f32 v{40+r}, v{32+r}, v37")
    for r in range(4): a(f"v_fma_f32 v{32+r}, -v{40+r}, v36, v{32+r}")
    for r in range(4): a(f"v_fma_f32 v{32+r}, v{32+r}, v37, v{40+r}")
    for r in range(4): a(f"v_cvt_pk_bf16_f32 v{32+r}, v{32+r}, v{32+r}")
    for n in range(4):
        for r in range(4): a(f"v_and_b32 v{176+4*n+r}, v{32+n}, v{MK+r}")
    for n in range(4):
        for blk in range(4):
            D = f"v[{Y+4*blk}:{Y+3+4*blk}]"
            a(f"v_mfma_f32_16x16x32_bf16 {D}, v[{176+4*n}:{179+4*n}], {ring(RA, n*4+blk)}, {D}")
    for blk in range(4): tagbytes(a, Y+4*blk)
    y_stores(a, Y, lambda blk: f"v[{Y+4*blk}:{Y+3+4*blk}]")

if __name__ == "__main__":
    t, k = kernel()
    s = HEADER + "; @launch grid=(256,1,1) block=(256,1,1) lds=9216\n"
    s += '.amdgcn_target "amdgcn-amd-amdhsa--gfx950"\n.text\n' + t + k
    open(sys.argv[1], "w").write(s)
```

```python
import sys
from common import *

OPT = set(sys.argv[2:])
STAMP = "stamp" in OPT
MIXED = "mixed" in OPT
SPIN = 200000
WARM = "nowarm" not in OPT
def opt(name, d):
    for o in OPT:
        if o.startswith(name+"="): return int(o.split("=")[1])
    return d
PUBF = "sc0 sc1" if "pub01" in OPT else "sc1"
B1, B2, B3, B4 = opt("B1", 8), opt("B2", 20), opt("B3", 26), opt("B4", 29)
XP   = 0x000000
XR   = 0x080000
OIN  = 0x200000
ML   = 0x240000
YA   = 0x180000
QP   = 0x2C0000
VOTE = 0x2E0000
PRG  = 0x2F0000
EPO  = 0x2F8000
GU   = 0x300000
WSSZ = 0x340000
STB  = 0x390000
NREP = opt('NREP', 8)
VSTR = opt('VSTR', 4352 if NREP <= 8 else 1280)
YS = opt('YS', 4352)
OS = opt('OS', 1024)

def stamp(a, i):
    if STAMP: a(f"s_memrealtime s[98:99]\ns_waitcnt lgkmcnt(0)\nv_writelane_b32 v208, s98, {i}")
def stamp_out(a):
    if STAMP and "dbg" in OPT:
        srd(a, 52, 36, 256)
        a("v_readlane_b32 s8, v208, 0\nv_readlane_b32 s9, v208, 2\nv_readlane_b32 s10, v208, 3\nv_readlane_b32 s11, v208, 4\nv_readlane_b32 s12, v208, 7\nv_readlane_b32 s13, v208, 15\nv_readlane_b32 s14, v208, 1\nv_readlane_b32 s15, v208, 9")
        a("s_not_b32 s72, s8\ns_not_b32 s73, s11\ns_not_b32 s74, s10")
        for i, r in enumerate([72, 8, 14, 15, 9, 74, 10, 73, 11, 12, 13]): a(f"v_writelane_b32 v209, s{r}, {i}")
        a(f"v_lshlrev_b32 v210, 2, v1\nv_mov_b32 v211, {hex(OOB)}\nv_cmp_gt_u32 vcc, 11, v1\nv_cndmask_b32 v210, v211, v210, vcc\nbuffer_atomic_umax v209, v210, s[52:55], 0 offen sc1")
    elif STAMP:
        a(f"s_mov_b32 s50, 0x400000\ns_lshl_b32 s8, s2, 2\ns_add_u32 s8, s8, s3\ns_lshl_b32 s8, s8, 6\ns_add_u32 s8, s8, {STB}")
        a(f"v_lshlrev_b32 v209, 2, v1\nv_mov_b32 v210, {hex(OOB)}\nv_cmp_gt_u32 vcc, 16, v1\nv_cndmask_b32 v209, v210, v209, vcc\nbuffer_store_dword v208, v209, s[48:51], s8 offen")

RA, RB = 64, 128
P0 = 32
vLO, vHI, vQ, vSW, vSB, vSC = 2, 3, 4, 8, 9, 10
vLS, vP, vT0, vT1, vT2 = 12, 13, 14, 15, 16
MK, AA, ACC = 20, 24, 48
vMX, vSH, vSD = 52, 53, 54
vPO, vPM, vY, vY3 = 56, 57, 58, 59
vRP = 19
sOK, sOV, sO, sXF, sK, sTAG = 90, 91, 92, 93, 94, 89
sXO, sXI = 97, 7
sPO, sPM, sYA = 80, 81, 82
L_M, L_L, L_V, L_O, L_P, L_S = 512, 528, 544, 1024, 1024, 5120

def T_of(k): return (k&1)*0x101000 ^ ((k>>1)&1)*0x84000 ^ ((k>>2)&1)*0x40000 ^ (k>>3)*0x20000
def sb_off(a, base, kreg):
    a(f"s_and_b32 s95, s{kreg}, 1\ns_mul_i32 s{sO}, s95, 0x101000")
    a(f"s_bfe_u32 s95, s{kreg}, 0x10001\ns_mul_i32 s95, s95, 0x84000\ns_or_b32 s{sO}, s{sO}, s95")
    a(f"s_bfe_u32 s95, s{kreg}, 0x10002\ns_lshl_b32 s95, s95, 18\ns_or_b32 s{sO}, s{sO}, s95")
    a(f"s_bfe_u32 s95, s{kreg}, 0x10003\ns_lshl_b32 s95, s95, 17\ns_or_b32 s{sO}, s{sO}, s95")
    a(f"s_xor_b32 s{sO}, s{sO}, s{base}")
def sb_const(a, base, k, dst=sO):
    a(f"s_xor_b32 s{dst}, s{base}, {hex(T_of(k))}" if k else f"s_mov_b32 s{dst}, s{base}")
def score_off(a, dst, src=sO):
    a(f"s_lshr_b32 s95, s{src}, 17\ns_lshl_b32 s95, s95, 10\ns_bfe_u32 s{dst}, s{src}, 0x3000c\ns_lshl_b32 s{dst}, s{dst}, 7\ns_or_b32 s{dst}, s{dst}, s95")
def ring(R, j): return f"v[{R+4*j}:{R+4*j+3}]"
def kvload(a, R, j, srdname, so=sO):
    a(f"buffer_load_dwordx4 {ring(R,j)}, v{vLO if j%2==0 else vHI}, {srdname}, s{so} offen offset:{joff(j)} nt")
def joff(j):
    return (j//2)*512 if "oldord" in OPT else ((j>>1)&1)*1024 + ((j>>2)&1)*2048 + (j>>3)*512
GR = opt("GR", 16)
MLF = 1 if "mlfold" in OPT else 0
PGL = "glc" if "pglc" in OPT else ""
SK, SV, SW = "s[40:43]", "s[44:47]", "s[48:51]"

def k_body(a, R, wait, refill, grouped=True):
    for j in range(16):
        w = wait(j)
        if w is not None: a(f"s_waitcnt vmcnt({w - (j % GR if grouped else 0)})")
        r = R+4*j
        a(f"v_dot2_f32_bf16 v{P0+j}, v{r}, v{vQ}, 0")
        for i in range(1, 4): a(f"v_dot2_f32_bf16 v{P0+j}, v{r+i}, v{vQ+i}, v{P0+j}")
        if j % GR == GR-1:
            for jj in range(j-GR+1, j+1): refill(jj)
    for j in range(8):
        a(f"v_add_f32_dpp v{P0+j}, v{P0+j}, v{P0+j} row_ror:8 row_mask:0xf bank_mask:0x3")
    for j in range(8):
        a(f"v_add_f32_dpp v{P0+j}, v{P0+8+j}, v{P0+8+j} row_ror:8 row_mask:0xf bank_mask:0xc")
    for j in range(4):
        a(f"v_add_f32_dpp v{P0+j}, v{P0+j}, v{P0+j} row_shl:4 row_mask:0xf bank_mask:0x5")
    for j in range(4):
        a(f"v_add_f32_dpp v{P0+j}, v{P0+4+j}, v{P0+4+j} row_shr:4 row_mask:0xf bank_mask:0xa")
    for j in range(4):
        a(f"v_add_f32_dpp v{P0+j}, v{P0+j}, v{P0+j} quad_perm:[2,3,0,1] {FULL}")
    a(f"v_cndmask_b32 v{P0}, v{P0}, v{P0+2}, s[84:85]\nv_cndmask_b32 v{P0+1}, v{P0+1}, v{P0+3}, s[84:85]")
    for j in range(2):
        a(f"v_add_f32_dpp v{P0+j}, v{P0+j}, v{P0+j} quad_perm:[1,0,3,2] {FULL}")
    a(f"v_cndmask_b32 v{P0}, v{P0}, v{P0+1}, s[86:87]")
    B16(a, P0, P0+1)
    a(f"v_mov_b32 v{P0+1}, v{P0}\nv_permlane32_swap_b32 v{P0}, v{P0+1}\nv_cvt_pk_bf16_f32 v{vSD}, v{P0}, v{P0+1}")
    a(f"ds_write_b32 v{vSW}, v{vSD}\nv_add_u32 v{vSW}, 64, v{vSW}")

def v_head(a, extra):
    a(f"ds_read_b32 v{vSC}, v{vSW}\nv_add_u32 v{vSW}, 64, v{vSW}")
    if extra: extra()
    a("s_waitcnt lgkmcnt(0)")
    a(f"v_lshlrev_b32 v{vT2}, v{vSH}, v{vSC}\nv_and_b32 v{vT2}, 0xffff0000, v{vT2}")
    a(f"v_max_f32_dpp v{vT0}, v{vT2}, v{vT2} row_ror:8 {FULL}")
    for r in (4, 2, 1): a(f"v_max_f32_dpp v{vT0}, v{vT0}, v{vT0} row_ror:{r} {FULL}")
    B32(a, vT0, vT1, "v_max_f32")
    a(f"v_max_f32 v{vT0}, v{vT0}, v{vMX}")
    a(f"v_sub_f32 v{vT1}, v{vMX}, v{vT0}\nv_sub_f32 v{vT2}, v{vT2}, v{vT0}")
    a(f"v_mov_b32 v{vMX}, v{vT0}")
    a(f"v_mul_f32 v{vT1}, s88, v{vT1}\nv_mul_f32 v{vT2}, s88, v{vT2}")
    a(f"v_exp_f32 v{vT1}, v{vT1}\nv_exp_f32 v{vT2}, v{vT2}")
    a(f"v_cvt_pk_bf16_f32 v{vP}, v{vT2}, v{vT2}")
    a(f"v_fma_f32 v{vLS}, v{vLS}, v{vT1}, v{vT2}")
    for r in range(4): a(f"v_mul_f32 v{ACC+r}, v{ACC+r}, v{vT1}")

def xp_load(a):
    a(f"s_lshl_b32 s8, s{sXI}, 9\nbuffer_load_dwordx2 v[60:61], v18, {SW}, s8 offen sc1")
def xr_load(a):
    a(f"s_lshl_b32 s8, s{sXI}, 10\ns_add_u32 s8, s8, {XR}\nbuffer_load_dwordx4 v[60:63], v17, {SW}, s8 offen sc1")
def x_check(a, tag, tagreg, load):
    a(f"s_mov_b32 s96, {SPIN}")
    a(f"x_chk_{tag}:")
    a(f"v_cmp_ne_u32 vcc, s{sTAG}, v{tagreg}\ns_cbranch_vccz x_ok_{tag}")
    a(f"s_sub_u32 s96, s96, 1\ns_cmp_eq_u32 s96, 0\ns_cbranch_scc1 x_ok_{tag}\ns_sleep 4")
    load(a)
    a(f"s_waitcnt vmcnt(0)\ns_branch x_chk_{tag}")
    a(f"x_ok_{tag}:")

HELP = "help" in OPT
K0 = opt("K0", 3)
LATE = opt("BV", 0)
if LATE: K0 = 22
KP = opt("KP", 13)
HFL = {0: "nt", 1: "", 2: "sc0", 3: "sc1"}[opt("HF", 0)]
def progress(a, kexpr):
    if not HELP: return
    a(f"s_andn2_b32 s79, s{sTAG}, 31\ns_or_b32 s79, s79, {kexpr}\ns_atomic_swap s79, s[38:39], s13")

def helper(a):
    a(f"s_and_b32 s12, s2, 7\ns_lshl_b32 s12, s12, 10\ns_add_u32 s12, s12, {PRG}")
    a(f"s_andn2_b32 s14, s{sTAG}, 31\ns_mov_b32 s96, {opt('HN', 40)}\nv_lshlrev_b32 v18, 3, v1")
    a(f"s_lshr_b32 s10, s{sXO}, 5\ns_lshl_b32 s10, s10, 2\ns_or_b32 s10, s10, s3")
    a("s_waitcnt lgkmcnt(0)\ns_mul_i32 s15, s10, 37\ns_mov_b32 s79, 0")
    if STAMP: a("v_writelane_b32 v208, s79, 13")
    a("h_loop:")
    a(f"buffer_load_dwordx2 v[32:33], v18, {SW}, s12 offen sc1\nbuffer_load_dwordx2 v[34:35], v18, {SW}, s12 offen offset:512 sc1")
    a("s_waitcnt vmcnt(0)")
    for r in range(4): a(f"v_xor_b32 v{32+r}, s14, v{32+r}")
    for r in range(2):
        a(f"v_cmp_gt_u32 vcc, 32, v{32+r}\nv_cndmask_b32 v{32+r}, 0, v{32+r}, vcc")
    for r in range(2):
        a(f"v_min_u32 v{34+r}, 16, v{34+r}\nv_add_u32 v{34+r}, -1, v{34+r}")
    for r in range(2):
        a(f"v_min_u32 v{36+r}, 15, v{32+r}\nv_add_u32 v{38+r}, {opt('HD', 2)}, v{32+r}")
        a(f"v_cmp_ge_i32 s[{60+4*r}:{61+4*r}], v{34+r}, v{36+r}\nv_cmp_le_i32 s[{62+4*r}:{63+4*r}], v{34+r}, v{38+r}\nv_cmp_gt_u32 vcc, {opt('HM', 17)}, v{32+r}")
        a(f"s_and_b64 s[{60+4*r}:{61+4*r}], s[{60+4*r}:{61+4*r}], s[{62+4*r}:{63+4*r}]\ns_and_b64 s[{60+4*r}:{61+4*r}], s[{60+4*r}:{61+4*r}], vcc")
    a("s_or_b64 s[62:63], s[60:61], s[64:65]\ns_cbranch_scc1 h_work")
    a(f"v_min_u32 v36, v32, v33\nv_cmp_gt_u32 vcc, {opt('HM', 17)}, v36\ns_cbranch_vccz main_fin")
    a("s_sleep 8\ns_sub_u32 s96, s96, 1\ns_cmp_lg_u32 s96, 0\ns_cbranch_scc1 h_loop\ns_branch main_fin")
    a("h_work:")
    if STAMP: a("s_add_u32 s79, s79, 1\nv_writelane_b32 v208, s79, 13")
    a("s_and_b32 s9, s15, 63\ns_lshr_b64 s[66:67], s[62:63], s9\ns_ff1_i32_b64 s8, s[66:67]\ns_add_u32 s9, s9, s8\ns_ff1_i32_b64 s11, s[62:63]\ns_cmp_lt_i32 s8, 0\ns_cselect_b32 s9, s11, s9")
    a("s_bitcmp1_b64 s[60:61], s9\ns_cselect_b32 s8, 0, 1")
    a("v_readlane_b32 s72, v34, s9\nv_readlane_b32 s73, v35, s9")
    a("s_cselect_b32 s72, s72, s73\ns_lshl_b32 s9, s9, 1\ns_or_b32 s9, s9, s8")
    a(f"s_or_b32 s8, s14, s72\nv_mov_b32 v36, s8\ns_lshl_b32 s8, s9, 2\ns_add_u32 s8, s8, s12\nbuffer_store_dword v36, v63, {SW}, s8 offen offset:512 sc1")
    a("s_xor_b32 s9, s9, s10")
    a("s_lshr_b32 s8, s9, 2\ns_lshl_b32 s73, s8, 23\ns_and_b32 s8, s9, 1\ns_lshl_b32 s8, s8, 22\ns_or_b32 s73, s73, s8")
    a("s_bfe_u32 s8, s9, 0x10001\ns_mul_i32 s8, s8, 0x202000\ns_or_b32 s73, s73, s8")
    a("s_bfe_u32 s8, s9, 0x10006\ns_lshl_b32 s8, s8, 12\ns_or_b32 s73, s73, s8\ns_bfe_u32 s8, s9, 0x10005\ns_lshl_b32 s8, s8, 14\ns_or_b32 s73, s73, s8")
    a(f"s_xor_b32 s73, s73, s{sOV}")
    sb_off(a, 73, 72)
    for j in range(16):
        a(f"buffer_load_dwordx4 {ring(RA,j)}, v{vLO if j%2==0 else vHI}, {SV}, s{sO} offen offset:{(j//2)*512} {HFL}")
    a(f"s_add_u32 s15, s15, 23\ns_waitcnt vmcnt({opt('HW', 4)})\ns_sub_u32 s96, s96, 1\ns_cmp_lg_u32 s96, 0\ns_cbranch_scc1 h_loop")

def tally(a, T):
    for r in range(4): a(f"v_xor_b32 v{T+r}, s{sTAG}, v{60+r}")
    for r in range(4): a(f"v_cmp_gt_u32 s[{60+2*r}:{61+2*r}], 64, v{T+r}")
    for r in range(4): a(f"v_and_b32 v{T+r}, 3, v{60+r}\nv_and_b32 v{T+4+r}, 12, v{60+r}")
    for r in range(4): a(f"v_bcnt_u32_b32 v{T+r}, v{T+r}, 0\nv_bcnt_u32_b32 v{T+4+r}, v{T+4+r}, 0")
    for r in range(4): a(f"v_lshl_add_u32 v{T+r}, v{T+4+r}, 10, v{T+r}")
    for r in range(4): a(f"v_or_b32 v{T+r}, 0x200000, v{T+r}")
    for r in range(4): a(f"v_cndmask_b32 v{T+r}, 0, v{T+r}, s[{60+2*r}:{61+2*r}]")
    a(f"v_add3_u32 v{T}, v{T}, v{T+1}, v{T+2}\nv_add_u32 v{T}, v{T}, v{T+3}")
    a("s_andn2_b32 s8, s2, 4\ns_lshr_b32 s8, s8, 2")
    for r in range(4): a(f"v_readlane_b32 s{72+r}, v{60+r}, s8")
    waveall(a, T, T+1, "v_add_u32")
    a("s_bitcmp1_b32 s2, 0\ns_cselect_b32 s72, s73, s72\ns_cselect_b32 s74, s75, s74\ns_bitcmp1_b32 s2, 1\ns_cselect_b32 s72, s74, s72")
    a(f"v_readfirstlane_b32 s8, v{T}")
    if STAMP: a("v_writelane_b32 v208, s8, 15")
    a("s_lshr_b32 s73, s8, 20\ns_and_b32 s74, s8, 0x3ff\ns_bfe_u32 s75, s8, 0xa000a")
    a("s_bfe_u32 s9, s72, 0x10004\ns_lshl_b32 s9, s9, 2")
    a("s_cmp_gt_u32 s74, 256\ns_cselect_b32 s8, 1, 0\ns_or_b32 s9, s9, s8\ns_cmp_gt_u32 s75, 256\ns_cselect_b32 s8, 2, 0\ns_or_b32 s9, s9, s8")
    a("s_sub_u32 s8, s73, s74\ns_add_u32 s8, s8, 1\ns_max_u32 s74, s74, s8\ns_sub_u32 s8, s73, s75\ns_add_u32 s8, s8, 1\ns_max_u32 s75, s75, s8\ns_min_u32 s74, s74, s75")
    a(f"s_xor_b32 s72, s72, s{sTAG}\ns_cmp_lt_u32 s72, 64\ns_cselect_b32 s74, s74, 0\ns_cmp_gt_u32 s74, 256")

def classes(a):
    a("s_lshr_b32 s8, s9, 2\ns_xor_b32 s4, s4, s8")
    if not MIXED:
        a(f"s_lshr_b32 s8, s9, 1\ns_xor_b32 s8, s8, s4\ns_and_b32 s8, s8, 1\ns_lshl_b32 s8, s8, 13\ns_or_b32 s{sOV}, s83, s8")
        a(f"s_xor_b32 s{sXF}, s{sOK}, s{sOV}")
        a(f"s_xor_b32 s8, s9, s4\ns_and_b32 s8, s8, 1\ns_lshl_b32 s8, s8, 13\ns_or_b32 s{sOK}, s83, s8")
        a(f"s_xor_b32 s8, s{sOK}, s{sOV}\ns_lshl_b32 s8, s8, 1\ns_or_b32 s{sXF}, s{sXF}, s8")
    else:
        a(f"s_mov_b32 s{sOV}, s{sOK}\ns_mov_b32 s{sXF}, 0")

def tagbytes(a, R):
    for r in range(4): a(f"v_perm_b32 v{R+r}, v{R+r}, v{vSD+1}, s{72+r}")
def tagsel(a):
    for r in range(4): a(f"s_mov_b32 s{72+r}, {hex(0x07060500+r)}")
    a("s_mov_b32 s76, 0x0c0c0400\ns_mov_b32 s77, 0x04000c0c")
def tagbad(a, d, R, t):
    a(f"v_perm_b32 v{d}, v{R+1}, v{R}, s76\nv_perm_b32 v{t}, v{R+3}, v{R+2}, s77")
    a(f"v_or_b32 v{d}, v{d}, v{t}\nv_xor_b32 v{d}, v{d}, v{vSD+1}")

def v_body(a, refill, waits, grouped=True):
    def build(j):
        for r in range(4):
            a(f"v_and_b32_dpp v{AA+4*(j&1)+r}, v{vP}, v{MK+r} row_newbcast:{j} {FULL}")
    build(0)
    for j in range(16):
        a(f"s_waitcnt vmcnt({waits(j) - (j % GR if grouped else 0)})")
        A = AA+4*(j&1)
        a(f"v_mfma_f32_16x16x32_bf16 v[{ACC}:{ACC+3}], v[{A}:{A+3}], {ring(RA,j)}, v[{ACC}:{ACC+3}]")
        if j < 15: build(j+1)
        if j % GR == GR-1:
            for jj in range(j-GR+1, j+1): refill(jj)

def y_stores(a, D, srcfn):
    a(f"s_mov_b32 s8, s{sYA}")
    for blk in range(4):
        a(f"buffer_store_dwordx4 {srcfn(blk)}, v{vY3 if blk==3 else vY}, {SW}, s8 offen {PUBF}")
        if blk < 3: a(f"s_add_u32 s8, s8, {32*YS}")

def startup_bodies(a):
    X = 1 if K0 == 3 else 0
    W0 = "w0poll" in OPT
    if K0 == 3: a(f"buffer_load_dwordx4 v[60:63], v{11 if W0 else 17}, {SW}, s12 offen sc1")
    k_body(a, RA, lambda j: None if j < B2 else 32+X, lambda j: kvload(a, RA, j, SK))
    if "latd" not in OPT: stamp(a, 13)
    k_body(a, RB, lambda j: None if 16+j < B2 else 15-j+1+X+16, lambda j: None, False)
    if "latd" not in OPT: stamp(a, 14)
    if "vtouch" in OPT:
        a(f"v_mov_b32 v47, {hex(OOB)}\nv_lshlrev_b32 v46, 17, v1\nv_cmp_gt_u32 vcc, {opt('VT', 1)}, v1\nv_cndmask_b32 v47, v47, v46, vcc\nbuffer_load_dword v46, v47, {SV}, s83 offen nt")
    if K0 == 3:
        a(f"s_mov_b32 s96, {SPIN}\nv_mov_b32 v40, 0")
        if W0: a("s_cmp_lg_u32 s3, 0\ns_cbranch_scc1 vt_wait")
        a(f"s_waitcnt vmcnt({17 if 'vtouch' in OPT else 16})")
        a("vt_chk:")
        tally(a, 32)
        a("s_cbranch_scc0 vt_spin")
        a("vt_ok:")
        if W0:
            a(f"s_or_b32 s8, s9, 8\nv_mov_b32 v41, s8\nds_write_b32 v40, v41 offset:{L_V+4}\ns_branch vt_have")
            a(f"vt_wait:\nds_read_b32 v41, v40 offset:{L_V+4}\ns_waitcnt lgkmcnt(0)\nv_readfirstlane_b32 s9, v41")
            a("s_bitcmp1_b32 s9, 3\ns_cbranch_scc1 vt_got\ns_sleep 1\ns_sub_u32 s96, s96, 1\ns_cmp_lg_u32 s96, 0\ns_cbranch_scc1 vt_wait")
            a("vt_got:\ns_and_b32 s9, s9, 7\nvt_have:")
        classes(a)

def kernel():
    a = Asm(); K = NAME + "_kernel"
    a(f".globl {K}\n.p2align 8\n.type {K},@function\n{K}:")
    a("s_cmp_ge_u32 s2, 256\ns_cbranch_scc1 main_done")
    stamp(a, 0)
    a("s_load_dwordx16 s[16:31], s[0:1], 0\ns_load_dwordx8 s[32:39], s[0:1], 64\ns_memtime s[100:101]")
    a("v_lshrrev_b32 v1, 6, v0\nv_readfirstlane_b32 s3, v1\nv_and_b32 v1, 63, v0")
    a("s_lshr_b32 s5, s2, 4\ns_and_b32 s6, s2, 15")
    a("v_lshlrev_b32 v17, 4, v1")
    a("v_lshrrev_b32 v18, 3, v1\nv_and_b32 v14, 7, v1\nv_lshlrev_b32 v14, 4, v14\nv_lshl_add_u32 v19, v18, 13, v14")
    a("v_mul_u32_u24 v47, 3584, v18\nv_add_u32 v47, v47, v14")
    a(f"v_mov_b32 v15, {hex(OOB)}\nv_cmp_gt_u32 vcc, 32, v1\nv_cndmask_b32 v14, v15, v19, vcc")
    a("v_cmp_gt_u32 vcc, 48, v1\nv_cndmask_b32 v16, v15, v47, vcc")
    if "noffn" in OPT: a("v_mov_b32 v47, v15\nv_mov_b32 v16, v15")
    if "nowq" in OPT: a("v_mov_b32 v19, v15\nv_mov_b32 v14, v15")
    a("v_lshlrev_b32 v18, 1, v18")
    a(f"v_and_b32 v{vLO}, 31, v1\nv_lshlrev_b32 v{vLO}, 4, v{vLO}\nv_lshrrev_b32 v{vHI}, 5, v1\nv_lshlrev_b32 v{vHI}, 15, v{vHI}\nv_add_u32 v{vLO}, v{vLO}, v{vHI}\nv_add_u32 v{vHI}, 0x10000, v{vLO}")
    a("s_bfe_u32 s7, s2, 0x20002\ns_mul_i32 s8, s7, 112\ns_mul_i32 s9, s3, 28\ns_add_u32 s8, s8, s9\ns_lshl_b32 s9, s8, 1")
    a("s_lshl_b32 s8, s8, 13\ns_lshl_b32 s10, s5, 9\ns_add_u32 s8, s8, s10\ns_and_b32 s10, s2, 3\ns_lshl_b32 s10, s10, 7\ns_add_u32 s8, s8, s10")
    a("s_lshr_b32 s11, s2, 3\ns_and_b32 s13, s2, 7")
    a(f"s_mul_i32 s12, s13, 56\ns_mul_i32 s14, s3, 14\ns_add_u32 s12, s12, s14\ns_mul_i32 s14, s12, 3584\ns_lshl_b32 s12, s12, 1\ns_lshl_b32 s15, s11, 7\ns_add_u32 s14, s14, s15")
    a("s_lshl_b32 s83, s11, 23\ns_and_b32 s10, s3, 1\ns_lshl_b32 s10, s10, 22\ns_or_b32 s83, s83, s10\ns_lshr_b32 s4, s3, 1\ns_lshl_b32 s10, s4, 21\ns_or_b32 s83, s83, s10")
    a("s_lshr_b32 s10, s2, 1\ns_lshr_b32 s15, s2, 7\ns_xor_b32 s10, s10, s15\ns_andn2_b32 s10, 1, s10\ns_lshl_b32 s10, s10, 12\ns_or_b32 s83, s83, s10")
    a("s_lshr_b32 s10, s2, 6\ns_xor_b32 s10, s10, s2\ns_and_b32 s10, s10, 1\ns_lshl_b32 s10, s10, 14\ns_or_b32 s83, s83, s10")
    a(f"s_bfe_u32 s10, s2, 0x10002\ns_xor_b32 s4, s4, s10\ns_lshl_b32 s10, s10, 13\ns_or_b32 s{sOK}, s83, s10")
    a("s_lshl_b32 s74, s11, 23\ns_and_b32 s75, s2, 3\ns_lshl_b32 s75, s75, 21\ns_or_b32 s74, s74, s75")
    a("s_bfe_u32 s75, s2, 0x10002\ns_lshl_b32 s75, s75, 11\ns_or_b32 s74, s74, s75\ns_or_b32 s74, s74, 0x40000")
    a("s_and_b32 s76, s3, 1\ns_lshl_b32 s75, s76, 13\ns_or_b32 s74, s74, s75")
    a("s_getreg_b32 s79, hwreg(HW_REG_XCC_ID)\ns_bfe_u32 s79, s79, 0x10002")
    a("s_xor_b32 s76, s76, s79\ns_xor_b32 s76, s76, s2\ns_and_b32 s76, s76, 1")
    a(f"s_mov_b32 s10, {EPO}\ns_cmp_lt_u32 s3, 2")
    sb_const(a, sOK, 0)
    a("s_waitcnt lgkmcnt(0)")
    a("s_cselect_b32 s72, s18, s20\ns_cselect_b32 s73, s19, s21")
    a(f"s_lshr_b32 s100, s100, 3\ns_mul_i32 s100, s100, 0x9e3779b1\ns_lshr_b32 s100, s100, 8\ns_and_b32 s100, s100, {0 if 'pglc' in OPT else 0x1bd780}\ns_or_b32 s74, s74, s100\ns_xor_b32 s75, s74, {hex(opt('WX', 0x400))}")
    a(f"s_load_dword s78, s[72:73], s75 {PGL}")
    a(f"s_load_dword s{sTAG}, s[38:39], s10\ns_load_dword s77, s[16:17], 0")
    srd(a, 52, 16, 896); srd(a, 56, 22, 448*8192); srd(a, 40, 18, 1 << 28)
    a("buffer_load_dwordx4 v[60:63], v17, s[52:55], 0 offen")
    for n in range(4):
        a(f"buffer_load_ushort v{40+n}, v18, s[52:55], s9 offen offset:{16*n}")
    for n in range(4):
        a(f"buffer_load_dwordx4 v[{160+4*n}:{163+4*n}], v{19 if n<3 else 14}, s[56:59], s8 offen nt")
        if n < 3: a(f"s_add_u32 s8, s8, {8*8192}")
    def kpre(lo, hi):
        for i in range(lo, hi):
            if i == 16: sb_const(a, sOK, 1)
            if LATE and i == LATE: a(f"buffer_load_dwordx4 v[60:63], v17, {SW}, s12 offen sc1")
            kvload(a, RA if i < 16 else RB, i % 16, SK)
    a("s_barrier")
    kpre(0, B1)
    srd(a, 60, 28, 448*3584); srd(a, 64, 30, 448*3584); srd(a, 68, 32, 1792*896)
    srd(a, 44, 20, 1 << 28); srd(a, 48, 38, WSSZ)
    a("s_waitcnt lgkmcnt(0)\ns_lshl_b32 s77, s77, 16")
    stamp(a, 1)
    a(f"s_lshl_b32 s8, s5, 13\ns_add_u32 s8, s8, {QP}\ns_lshl_b32 s9, s3, 9\ns_add_u32 s15, s8, s9")
    a("s_lshl_b32 s9, s7, 11\ns_add_u32 s8, s8, s9\ns_and_b32 s9, s2, 3\ns_lshl_b32 s9, s9, 9\ns_add_u32 s7, s8, s9")
    a(f"v_and_b32 v13, 7, v1\nv_and_b32 v10, 56, v1\nv_lshl_add_u32 v11, v13, 6, v10\nv_lshl_add_u32 v46, v13, 10, v10")
    a(f"v_mul_u32_u24 v{vRP}, {VSTR}, v1\nv_cmp_gt_u32 vcc, {NREP}, v1\nv_cndmask_b32 v{vRP}, v15, v{vRP}, vcc")
    a(f"s_cmp_eq_u32 s3, 0\ns_cselect_b64 vcc, -1, 0\nv_cndmask_b32 v{vSC}, v15, v11, vcc")
    a(f"v_mov_b32 v12, 0\nv_mov_b32 v13, 0\nds_write_b64 v12, v[12:13] offset:{L_V}")
    a(f"s_add_u32 s{sTAG}, s{sTAG}, 0x9e3779b9\nv_mov_b32 v{vSD+1}, s{sTAG}")
    a(f"s_waitcnt vmcnt({B1+8})")
    vM, vS, vR = 20, 21, 22
    ln_stats2(a, 60, 32, vM, vS, vR, 12, 13, 11, 23, 77)
    a(f"s_waitcnt vmcnt({B1+4})")
    center_rows(a, [40, 41, 42, 43], vM)
    scale_rows(a, [40, 41, 42, 43], [24, 25, 26, 27], vS, vR)
    a(f"s_waitcnt vmcnt({B1})")
    stamp(a, 8)
    for n in range(4): gemv8(a, 32, 160+4*n, 24+n, 40+n, n == 0)
    red8(a, 32)
    a(f"v_lshlrev_b32 v12, 2, v0\nds_write_b32 v12, v32 offset:{L_P}\nv_lshlrev_b32 v12, 2, v1")
    a(f"s_waitcnt lgkmcnt(0)\ns_barrier")
    a(f"ds_read2st64_b32 v[32:33], v12 offset0:{L_P//256} offset1:{L_P//256+1}\nds_read2st64_b32 v[34:35], v12 offset0:{L_P//256+2} offset1:{L_P//256+3}")
    a(f"s_waitcnt lgkmcnt(0)\nv_add_f32 v32, v32, v33\nv_add_f32 v34, v34, v35\nv_add_f32 v{vSD}, v32, v34")
    a(f"buffer_store_dwordx2 v[{vSD}:{vSD+1}], v{vSC}, {SW}, s7 offen sc1")
    stamp(a, 9)
    for n in range(2):
        a(f"buffer_load_ushort v{44+n}, v18, s[52:55], s12 offen offset:{16*n}")
    for n in range(2):
        a(f"buffer_load_dwordx4 v[{176+4*n}:{179+4*n}], v{47 if n==0 else 16}, s[60:63], s14 offen nt")
        a(f"buffer_load_dwordx4 v[{184+4*n}:{187+4*n}], v{47 if n==0 else 16}, s[64:67], s14 offen nt")
        if n == 0: a(f"s_add_u32 s14, s14, {8*3584}")
    BA, BB = opt("BA", 4), opt("BB", 4)
    kpre(B1, B2-BA-BB)
    if "latew" in OPT: a("s_xor_b32 s75, s75, 0x200\ns_load_dword s78, s[72:73], s75\ns_waitcnt lgkmcnt(0)")
    for i in range(2):
        a("s_memtime s[100:101]\ns_waitcnt lgkmcnt(0)")
        a(f"s_load_dword s78, s[72:73], s74 {PGL}\ns_waitcnt lgkmcnt(0)\ns_memtime s[96:97]\ns_waitcnt lgkmcnt(0)")
        a(f"s_sub_u32 s{8+i}, s96, s100")
        if i == 0:
            a("s_xor_b32 s74, s74, 0x2000"); kpre(B2-BA-BB, B2-BB)
    if "latd" in OPT: a("s_lshl_b32 s10, s76, 31\ns_or_b32 s10, s10, s8\nv_writelane_b32 v208, s10, 13\nv_writelane_b32 v208, s9, 14")
    a("s_sub_i32 s8, s8, s9\ns_sub_i32 s9, 0, s8\ns_cmp_eq_u32 s76, 0\ns_cselect_b32 s8, s8, s9")
    a("s_max_i32 s8, s8, -2047\ns_min_i32 s8, s8, 2047\ns_add_i32 s8, s8, 2048\ns_lshr_b32 s9, s3, 1\ns_mul_i32 s9, s9, 13\ns_lshl_b32 s8, s8, s9")
    a(f"s_or_b32 s8, s8, 0x20000000\nv_mov_b32 v12, s8\nv_mov_b32 v13, 0\ns_mov_b64 exec, 1\nds_add_rtn_u32 v13, v13, v12 offset:{L_V}\ns_mov_b64 exec, -1")
    a(f"s_lshl_b32 s10, s79, 4\ns_andn2_b32 s9, s{sTAG}, 63\ns_or_b32 s10, s10, s9\ns_lshl_b32 s9, s2, 2\ns_add_u32 s9, s9, {VOTE}")
    a("s_waitcnt lgkmcnt(0)\nv_readfirstlane_b32 s72, v13\ns_add_u32 s72, s72, s8\ns_bitcmp0_b32 s72, 31\ns_cbranch_scc1 novote")
    a("s_and_b32 s73, s72, 0x1fff\ns_cmp_gt_u32 s73, 4096\ns_cselect_b32 s73, 3, 0\ns_or_b32 s10, s10, s73")
    a("s_bfe_u32 s73, s72, 0xd000d\ns_cmp_gt_u32 s73, 4096\ns_cselect_b32 s73, 12, 0\ns_or_b32 s10, s10, s73")
    a(f"v_mov_b32 v12, s10\nbuffer_store_dword v12, v{vRP}, {SW}, s9 offen sc1")
    a("novote:")
    kpre(B2-BB, B2)
    a(f"s_lshl_b32 s9, s3, 10\ns_add_u32 s9, s9, {L_S}\nv_and_b32 v{vSW}, 15, v1\nv_lshl_add_u32 v{vSW}, v{vSW}, 2, s9\nv_lshl_add_u32 v{vSB}, v1, 2, s9")
    a(f"s_lshl_b32 s{sXO}, s2, 2\ns_add_u32 s{sXO}, s{sXO}, s3\ns_xor_b32 s{sXI}, s{sXO}, 16")
    a(f"v_cmp_gt_u32 vcc, 32, v1\nv_cndmask_b32 v{vSH}, 0, 16, vcc")
    a("s_mov_b32 s84, 0xcccccccc\ns_mov_b32 s85, 0xcccccccc\ns_mov_b32 s86, 0xaaaaaaaa\ns_mov_b32 s87, 0xaaaaaaaa")
    a(f"s_mov_b32 s88, {fl(CEXP)}")
    a(f"v_lshrrev_b32 v{vPO}, 5, v1\nv_lshlrev_b32 v{vPO}, {13+MLF}, v{vPO}\nv_bfe_u32 v12, v1, 1, 3\nv_lshlrev_b32 v12, {10+MLF}, v12\nv_add_u32 v{vPO}, v{vPO}, v12")
    a(f"v_and_b32 v12, 1, v1\nv_lshlrev_b32 v12, 5, v12\nv_add_u32 v{vPO}, v{vPO}, v12\nv_and_b32 v12, 16, v1\nv_add_u32 v{vPO}, v{vPO}, v12")
    if MLF: a(f"v_lshlrev_b32 v12, 11, v1\nv_cmp_gt_u32 vcc, 16, v1\nv_cndmask_b32 v{vPM}, v15, v12, vcc")
    else: a(f"v_cmp_eq_u32 vcc, 0, v1\nv_cndmask_b32 v{vPM}, v15, v1, vcc")
    yaddr(a, vY, vY3, 1, 12, 13, YS)
    a(f"s_lshl_b32 s{sPO}, s5, {14+MLF}\ns_lshl_b32 s10, s6, {6+MLF}\ns_add_u32 s{sPO}, s{sPO}, s10\ns_add_u32 s{sPO}, s{sPO}, {OIN}")
    a(f"s_lshl_b32 s{sPM}, s2, 4\ns_add_u32 s{sPM}, s{sPM}, {ML}\ns_lshl_b32 s{sYA}, s2, 4\ns_add_u32 s{sYA}, s{sYA}, {YA}")
    if MLF: a(f"s_add_u32 s{sPM}, s{sPO}, 64")
    a("s_cmp_eq_u32 s3, 0\ns_cselect_b64 vcc, -1, 0")
    for r in (vPO, vPM, vY, vY3): a(f"v_cndmask_b32 v{r}, v15, v{r}, vcc")
    a(f"s_lshl_b32 s14, s11, 13\ns_lshl_b32 s10, s13, 6\ns_add_u32 s14, s14, s10\ns_lshl_b32 s10, s3, 9\ns_add_u32 s14, s14, s10\ns_add_u32 s14, s14, {GU-512}")
    a(f"s_cmp_lt_u32 s11, 28\ns_cselect_b32 s10, 0, {hex(OOB)}\ns_add_u32 s9, s3, 3\ns_bitcmp1_b32 s9, 1\ns_cselect_b32 s10, {hex(OOB)}, s10\nv_or_b32 v46, s10, v46")
    a(f"s_and_b32 s12, s11, {NREP-1}\ns_mul_i32 s12, s12, {VSTR}\ns_add_u32 s12, s12, {VOTE}\nv_lshlrev_b32 v17, 4, v1\nv_lshlrev_b32 v18, 3, v1")
    a("s_cmp_eq_u32 s3, 0\ns_cselect_b64 vcc, -1, 0\ns_cselect_b32 s77, -64, 0\nv_cndmask_b32 v47, v15, v17, vcc\nv_mov_b32 v11, v47")
    a(f"s_waitcnt vmcnt({B2-B1+4})")
    center_rows(a, [44, 45], vM)
    scale_rows(a, [44, 45], [12, 13], vS, vR)
    a(f"s_waitcnt vmcnt({B2-B1})")
    aG, aU = 24, 192
    for n in range(2):
        gemv8(a, aG, 176+4*n, 12+n, 44+n, n == 0)
        gemv8(a, aU, 184+4*n, 12+n, 44+n, n == 0)
    stamp(a, 10)
    if "cnt" in OPT: a("s_mov_b32 s77, 0")
    def gather():
        if "cnt" in OPT: a("s_add_u32 s77, s77, 1\nv_writelane_b32 v208, s77, 1")
        for rb in range(4):
            if rb == 2: a("s_add_u32 s9, s15, 4096")
            a(f"buffer_load_dwordx2 v[{32+2*rb}:{33+2*rb}], v18, {SW}, s{15 if rb<2 else 9} offen offset:{2048*(rb&1)} sc1")
        if K0 == 2: a(f"buffer_load_dwordx4 v[60:63], v47, {SW}, s12 offen sc1")
    chk_n = [0]
    def check(ok):
        chk_n[0] += 1; n = chk_n[0]
        if K0 == 2:
            a(f"s_cmp_lg_u32 s3, 0\ns_cbranch_scc1 chk_q{n}")
            tally(a, 24)
            a(f"s_cbranch_scc0 chk_no{n}")
            a(f"chk_q{n}:")
        a(f"v_xor_b32 v40, s{sTAG}, v33\nv_xor_b32 v41, s{sTAG}, v35\nv_xor_b32 v42, s{sTAG}, v37\nv_xor_b32 v43, s{sTAG}, v39")
        a("v_or3_b32 v40, v40, v41, v42\nv_or_b32 v40, v40, v43")
        a(f"v_cmp_ne_u32 vcc, 0, v40\ns_cbranch_vccz {ok}")
        a(f"chk_no{n}:")
    gather(); kpre(B2, B3)
    red8(a, aG); red8(a, aU)
    a(f"v_lshlrev_b32 v12, 2, v0\nds_write_b32 v12, v{aG} offset:{L_P+1024}\nds_write_b32 v12, v{aU} offset:{L_P+2048}")
    mask1(a, MK, 1, vT0, vT1)
    a(f"s_waitcnt vmcnt({B3-B2})")
    check("g_ok1")
    gather(); kpre(B3, B4)
    a(f"s_waitcnt vmcnt({B4-B3})")
    check("g_ok2")
    gather(); kpre(B4, 32)
    a(f"s_mov_b32 s96, {SPIN}\ns_waitcnt vmcnt({32-B4+(1 if LATE else 0)})")
    a("g_spin:")
    check("g_ok3")
    a("s_sub_u32 s96, s96, 1\ns_cmp_eq_u32 s96, 0\ns_cbranch_scc1 g_ok3\ns_sleep 8")
    gather()
    a("s_waitcnt vmcnt(0)\ns_branch g_spin")
    a("g_ok1:"); kpre(B3, B4)
    a("g_ok2:"); kpre(B4, 32)
    a("g_ok3:")
    stamp(a, 11)
    a("v_add_f32 v32, v32, v34\nv_add_f32 v36, v36, v38\nv_add_f32 v32, v32, v36")
    a("v_cvt_pk_bf16_f32 v32, v32, v32\nv_lshlrev_b32 v33, 1, v0\nds_write_b16 v33, v32")
    a("v_and_b32 v34, 31, v1\nv_lshlrev_b32 v34, 4, v34")
    a("s_max_u32 s8, s3, 1\ns_min_u32 s8, s8, 2\ns_lshl_b32 s8, s8, 10\nv_lshl_add_u32 v35, v1, 2, s8")
    if K0 == 2:
        a(f"v_mov_b32 v37, 0\ns_cmp_lg_u32 s3, 0\ns_cbranch_scc1 notally\nv_mov_b32 v36, s9\nds_write_b32 v37, v36 offset:{L_V+4}\nnotally:")
    a(f"s_waitcnt lgkmcnt(0)\ns_barrier")
    if K0 == 2: a(f"ds_read_b32 v36, v37 offset:{L_V+4}")
    a(f"ds_read_b128 v[{vQ}:{vQ+3}], v34")
    a(f"ds_read2st64_b32 v[40:41], v35 offset0:{L_P//256} offset1:{L_P//256+1}\nds_read2st64_b32 v[42:43], v35 offset0:{L_P//256+2} offset1:{L_P//256+3}")
    if K0 == 2:
        a("s_waitcnt lgkmcnt(3)\nv_readfirstlane_b32 s9, v36")
        classes(a)
    a(f"s_waitcnt lgkmcnt(0)\nv_add_f32 v40, v40, v41\nv_add_f32 v42, v42, v43\nv_add_f32 v{vSD}, v40, v42")
    a(f"buffer_store_dwordx2 v[{vSD}:{vSD+1}], v46, {SW}, s14 offen sc1")
    a(f"v_mov_b32 v{vMX}, 0xff800000\nv_mov_b32 v{vLS}, 0")
    for r in range(4): a(f"v_mov_b32 v{ACC+r}, 0")
    stamp(a, 2)
    if LATE:
        assert B2 >= 16 and LATE >= B4
        k_body(a, RA, lambda j: None, lambda j: None)
        if "latd" not in OPT: stamp(a, 13)
        a(f"s_mov_b32 s96, {SPIN}\ns_waitcnt vmcnt({32-LATE+1})")
        a("vt_chk:")
        tally(a, 32)
        a("s_cbranch_scc0 vt_spin")
        a("vt_ok:")
        classes(a)
        sb_const(a, sOK, 2)
        for j in range(16): kvload(a, RA, j, SK)
        k_body(a, RB, lambda j: None if 16+j < LATE else 15-j+1+16, lambda j: None, False)
        if "latd" not in OPT: stamp(a, 14)
    else:
      sb_const(a, sOK, 2)
      startup_bodies(a)
    a(f"s_mov_b32 s{sK}, 3")
    a("k_loop:")
    sb_off(a, sOK, sK)
    k_body(a, RA, lambda j: 15, lambda j: kvload(a, RA, j, SK))
    if STAMP:
        a(f"s_cmp_lg_u32 s{sK}, 3\ns_cbranch_scc1 k_st"); stamp(a, 12); a("k_st:")
    a(f"s_cmp_lg_u32 s{sK}, 4\ns_cbranch_scc1 k_next\ns_cmp_eq_u32 s{sXF}, 0\ns_cbranch_scc1 k_next")
    a(f"s_waitcnt lgkmcnt(0)\nds_read_b32 v{vSD}, v{vSB}\ns_lshl_b32 s8, s{sXO}, 9\ns_waitcnt lgkmcnt(0)")
    a(f"buffer_store_dwordx2 v[{vSD}:{vSD+1}], v18, {SW}, s8 offen sc1")
    a("k_next:")
    a(f"s_add_u32 s{sK}, s{sK}, 1\ns_cmp_lt_u32 s{sK}, 16\ns_cbranch_scc1 k_loop")
    a(f"s_mov_b32 s{sO}, s{sOV}")
    a(f"s_cmp_eq_u32 s{sXF}, 0\ns_cbranch_scc1 t_nop1")
    xp_load(a)
    a("t_nop1:")
    k_body(a, RA, lambda j: 15, lambda j: kvload(a, RA, j, SV))
    a(f"v_subrev_u32 v{vSW}, 1024, v{vSW}")
    a(f"s_bitcmp0_b32 s{sXF}, 14\ns_cbranch_scc1 t_nor")
    a(f"s_waitcnt lgkmcnt(0)\nds_read2st64_b32 v[24:25], v{vSB} offset0:1 offset1:2\nds_read_b32 v26, v{vSB} offset:768\nv_mov_b32 v27, s{sTAG}")
    a(f"s_lshl_b32 s8, s{sXO}, 10\ns_add_u32 s8, s8, {XR}\ns_waitcnt lgkmcnt(0)")
    a(f"buffer_store_dwordx4 v[24:27], v17, {SW}, s8 offen sc1")
    a("t_nor:")
    a(f"s_cmp_eq_u32 s{sXF}, 0\ns_cbranch_scc1 t_nop2")
    a("s_waitcnt vmcnt(16)")
    x_check(a, "p", 61, xp_load)
    pm = (1 << (16*(2 if LATE else K0))) - 1
    a(f"s_mov_b32 s8, {hex(pm & 0xffffffff)}\ns_mov_b32 s9, {hex(pm >> 32)}\ns_bitcmp1_b32 s{sXF}, 13\ns_cselect_b64 s[10:11], s[8:9], 0")
    a(f"s_not_b64 s[8:9], s[8:9]\ns_bitcmp1_b32 s{sXF}, 14\ns_cselect_b64 s[8:9], s[8:9], 0\ns_or_b64 exec, s[8:9], s[10:11]")
    a(f"ds_write_b32 v{vSB}, v60\ns_mov_b64 exec, -1")
    a("t_nop2:")
    a(f"s_mov_b32 s{sK}, 1")
    stamp(a, 3)
    a("v_loop:")
    sb_off(a, sOV, sK)
    a(f"s_bitcmp0_b32 s{sXF}, 14\ns_cbranch_scc1 v_go\ns_cmp_eq_u32 s{sK}, 4\ns_cbranch_scc1 v_xr1\ns_cmp_eq_u32 s{sK}, 5\ns_cbranch_scc1 v_xr2")
    a("v_go:")
    if HELP:
        a(f"s_cmp_lt_u32 s{sK}, {KP}\ns_cbranch_scc1 v_go2")
        a(f"s_cmp_lg_u32 s{sK}, {KP}\ns_cbranch_scc1 v_go1")
        a(f"v_mov_b32 v63, {hex(OOB)}\nv_cmp_eq_u32 vcc, 0, v1\nv_cndmask_b32 v63, v63, v1, vcc")
        a(f"s_and_b32 s13, s2, 7\ns_lshl_b32 s13, s13, 10\ns_lshr_b32 s8, s2, 3\ns_lshl_b32 s8, s8, 4\ns_add_u32 s13, s13, s8\ns_lshl_b32 s8, s3, 2\ns_add_u32 s13, s13, s8\ns_add_u32 s13, s13, {PRG}")
        a("v_go1:")
        v_head(a, None)
        progress(a, f"s{sK}")
        a("s_branch v_go3")
        a("v_go2:")
    v_head(a, None)
    a("v_go3:")
    v_body(a, lambda j: kvload(a, RA, j, SV), lambda j: 15)
    a(f"s_add_u32 s{sK}, s{sK}, 1\ns_cmp_lt_u32 s{sK}, 16\ns_cbranch_scc1 v_loop")
    tagsel(a)
    a("s_cmp_eq_u32 s3, 0\ns_cbranch_scc1 v_last0")
    v_head(a, None); ml_out(a)
    v_body(a, lambda j: None, lambda j: 15-j, False)
    a("s_branch v_end")
    a("v_last0:")
    srd(a, 52, 24, 4096*896)
    a("v_lshrrev_b32 v46, 4, v1\nv_mul_u32_u24 v19, 1792, v46\nv_and_b32 v18, 15, v1\nv_lshlrev_b32 v18, 4, v18\nv_lshl_add_u32 v46, v19, 1, v18\nv_add_u32 v19, v19, v18")
    a("v_and_b32 v18, 7, v1\nv_lshlrev_b32 v18, 6, v18\nv_and_b32 v47, 56, v1\nv_add_u32 v18, v18, v47")
    a(f"s_mul_i32 s10, s2, {16*896}\ns_min_u32 s14, s2, 223\ns_mul_i32 s14, s14, {8*896}\ns_lshl_b32 s12, s2, 10\ns_add_u32 s12, s12, {GU}")
    def wd():
        if "ttouch" in OPT:
            a(f"v_mov_b32 v47, {hex(OOB)}\nv_mul_u32_u24 v45, {opt('TT', 16384)}, v1\nv_cmp_gt_u32 vcc, {(112*YS)//opt('TT', 16384)+1}, v1\nv_cndmask_b32 v47, v47, v45, vcc\ns_mov_b32 s8, {YA}\nbuffer_load_dword v45, v47, {SW}, s8 offen sc1")
        gu_load(a)
        for i in range(8):
            a(f"buffer_load_dwordx4 {ring(RB,i)}, v19, s[68:71], s14 offen offset:{(i//4)*896+(i%4)*256} nt")
    v_head(a, wd); ml_out(a)
    v_body(a, lambda j: a(f"buffer_load_dwordx4 {ring(RA,j)}, v46, s[52:55], s10 offen offset:{(j//4)*896+(j%4)*256} nt"), lambda j: 25 + ("ttouch" in OPT))
    a("v_end:")
    stamp(a, 4)
    progress(a, "17")
    a(f"ds_write_b128 v{vT1}, v[{ACC}:{ACC+3}] offset:{L_O}")
    a("s_waitcnt lgkmcnt(0)\ns_barrier")
    a("s_cmp_eq_u32 s3, 0\ns_cbranch_scc1 tail0")
    hl = "h_go" if HELP else "main_fin"
    if "redw1" in OPT:
        a(f"s_cmp_lg_u32 s3, 1\ns_cbranch_scc1 {hl}\ns_cmp_ge_u32 s2, 112\ns_cbranch_scc1 {hl}")
        reducer_pre(a); reducer(a)
    a("s_branch main_fin")
    if HELP:
        a("h_go:"); helper(a); a("s_branch main_fin")
    a("tail0:")
    tail0(a)
    if "redw1" not in OPT:
        stamp(a, 8)
        a("s_cmp_ge_u32 s2, 112\ns_cbranch_scc1 main_fin")
        reducer(a)
    a("main_fin:")
    stamp(a, 7); stamp_out(a)
    a("main_done:\ns_endpgm")
    a("v_xr1:"); xr_load(a); a("s_branch v_go")
    a("v_xr2:\ns_waitcnt vmcnt(16)")
    x_check(a, "r", 63, xr_load)
    a(f"ds_write2st64_b32 v{vSB}, v60, v61 offset0:1 offset1:2\nds_write_b32 v{vSB}, v62 offset:768\ns_branch v_go")
    if K0 == 3 or LATE:
        a("vt_spin:\ns_sub_u32 s96, s96, 1\ns_cmp_eq_u32 s96, 0\ns_cbranch_scc1 vt_ok\ns_sleep 8")
        a(f"buffer_load_dwordx4 v[60:63], v17, {SW}, s12 offen sc1\ns_waitcnt vmcnt(0)\ns_branch vt_chk")
    return a.text(), kd(K, 216 if STAMP else 200, 102)

def ml_out(a):
    progress(a, "16")
    rowall(a, [vLS]); B32(a, vLS, vT0)
    a(f"s_lshl_b32 s8, s3, 2\nv_mov_b32 v{vT2}, s8\nds_write_b32 v{vT2}, v{vMX} offset:{L_M}\nds_write_b32 v{vT2}, v{vLS} offset:{L_L}")
    a(f"v_lshlrev_b32 v{vT1}, 4, v0\nv_mov_b32 v{vT2}, 0")

def gu_load(a):
    a(f"buffer_load_dwordx2 v[42:43], v18, {SW}, s12 offen sc1\nbuffer_load_dwordx2 v[32:33], v18, {SW}, s12 offen offset:512 sc1")

def red4(a, R):
    multiT(a, "v_permlane32_swap_b32", [(R, R+2), (R+1, R+3)])
    T16(a, R, R+1)
    rowall(a, [R])

def reducer_pre(a):
    srd(a, 52, 16, 896); srd(a, 56, 34, 896)
    a(f"v_mov_b32 v18, {hex(OOB)}\nv_lshlrev_b32 v17, 4, v1")
    a(f"s_mul_i32 s11, s2, {YS}\ns_add_u32 s11, s11, {YA}\ns_min_u32 s13, s2, 111\ns_lshl_b32 s13, s13, 3")
    a("v_lshrrev_b32 v2, 4, v1\nv_lshlrev_b32 v2, 1, v2\nv_and_b32 v3, 15, v1\nv_cmp_eq_u32 vcc, 0, v3\nv_cndmask_b32 v3, v18, v2, vcc")
    a("buffer_load_ushort v4, v2, s[52:55], s13 offen")
    for n in range(4): a(f"v_mov_b32 v{10+n}, v17\ns_mov_b64 s[{60+2*n}:{61+2*n}], -1")

def reducer(a):
    NS = opt("RN", 1)
    def sweep(k):
        for n in range(4):
            R = 80+16*k+4*n
            a(f"buffer_load_dwordx4 v[{R}:{R+3}], v{10+n}, {SW}, s11 offen offset:{1024*n} sc1")
    for k in range(NS):
        sweep(k)
        if k < NS-1: a(f"s_sleep {opt('RG', 6)//NS*1}")
    a(f"s_mov_b32 s96, {SPIN}")
    a("red_spin:")
    for k in range(NS):
        a(f"s_waitcnt vmcnt({4*(NS-1)})")
        for n in range(4):
            R = 80+16*k+4*n
            a(f"s_mov_b64 exec, s[{60+2*n}:{61+2*n}]\ns_cbranch_execz red_skip{k}_{n}")
            tagbad(a, 40, R, 41)
            a(f"v_cmp_eq_u32 vcc, 0, v40\ns_andn2_b64 s[{60+2*n}:{61+2*n}], exec, vcc\ns_and_b64 exec, exec, vcc")
            for r in range(4): a(f"v_and_b32 v{64+4*n+r}, 0xffffff00, v{R+r}")
            a(f"v_mov_b32 v{10+n}, v18")
            a(f"red_skip{k}_{n}:")
        a("s_mov_b64 exec, -1")
        a("s_or_b64 s[80:81], s[60:61], s[62:63]\ns_or_b64 s[82:83], s[64:65], s[66:67]\ns_or_b64 s[80:81], s[80:81], s[82:83]\ns_cbranch_scc0 red_ok")
        if opt("RS", 0): a(f"s_sleep {opt('RS', 0)}")
        sweep(k)
    a("s_sub_u32 s96, s96, 1\ns_cmp_lg_u32 s96, 0\ns_cbranch_scc1 red_spin")
    a("red_ok:")
    stamp(a, 6 if "redw1" in OPT else 1)
    for r in range(4):
        a(f"v_add_f32 v{64+r}, v{64+r}, v{68+r}\nv_add_f32 v{72+r}, v{72+r}, v{76+r}")
    for r in range(4): a(f"v_add_f32 v{64+r}, v{64+r}, v{72+r}")
    red4(a, 64)
    a("v_lshlrev_b32 v4, 16, v4\nv_add_f32 v64, v64, v4\nv_cvt_pk_bf16_f32 v64, v64, v64")
    a("buffer_store_short v64, v3, s[56:59], s13 offen")
    a("s_cmp_lg_u32 s2, 0\ns_cbranch_scc1 main_fin")
    a(f"s_mov_b32 s8, {EPO}\nv_cmp_eq_u32 vcc, 0, v1\nv_cndmask_b32 v3, v18, v1, vcc\nbuffer_store_dword v{vSD+1}, v3, {SW}, s8 offen")

def tail0(a):
    a(f"ds_read_b128 v[28:31], v{vT2} offset:{L_M}\nds_read_b128 v[36:39], v{vT2} offset:{L_L}")
    for w in range(4):
        a(f"ds_read_b128 v[{160+4*w}:{163+4*w}], v{vT1} offset:{L_O+1024*w}")
    a(f"v_and_b32 v44, 15, v1\nv_lshlrev_b32 v45, {7 if MLF else 4}, v44\nv_lshlrev_b32 v44, {6+MLF}, v44\nv_and_b32 v47, 48, v1\nv_add_u32 v44, v44, v47")
    a(f"s_lshl_b32 s15, s2, {10+MLF}\ns_add_u32 s15, s15, {OIN}")
    a("s_add_u32 s10, s15, 64" if MLF else f"s_lshl_b32 s10, s5, 8\ns_add_u32 s10, s10, {ML}")
    a("s_waitcnt lgkmcnt(4)")
    a(f"v_max3_f32 v{vMX}, v28, v29, v30\nv_max_f32 v{vMX}, v{vMX}, v31")
    for w in range(4): a(f"v_sub_f32 v{28+w}, v{28+w}, v{vMX}")
    for w in range(4): a(f"v_mul_f32 v{28+w}, s88, v{28+w}")
    for w in range(4): a(f"v_exp_f32 v{28+w}, v{28+w}")
    a(f"v_mul_f32 v{vMX+1}, v28, v36")
    for w in range(1, 4): a(f"v_fmac_f32 v{vMX+1}, v{28+w}, v{36+w}")
    a("s_waitcnt lgkmcnt(0)")
    for r in range(4): a(f"v_mul_f32 v{48+r}, v28, v{160+r}")
    for w in range(1, 4):
        for r in range(4): a(f"v_fmac_f32 v{48+r}, v{28+w}, v{160+4*w+r}")
    tagbytes(a, 48)
    a(f"buffer_store_dwordx4 v[48:51], v{vPO}, {SW}, s{sPO} offen {PUBF}")
    a(f"buffer_store_dwordx4 v[{vMX}:{vMX+3}], v{vPM}, {SW}, s{sPM} offen {PUBF}")
    stamp(a, 5)
    SETS = [24, 144, 152][:opt("TN", 1)]
    def poll(R):
        a(f"buffer_load_dwordx4 v[{R}:{R+3}], v44, {SW}, s15 offen sc1")
        a(f"buffer_load_dwordx4 v[{R+4}:{R+7}], v45, {SW}, s10 offen sc1")
    poll(SETS[0])
    mask2(a, MK, 1, vT0, vT1)
    a("s_cmp_lt_u32 s2, 224\ns_cselect_b32 s9, -1, 0\ns_waitcnt vmcnt(4)")
    a(f"s_mov_b32 s96, {SPIN}\ngu_chk:")
    a(f"v_xor_b32 v40, s{sTAG}, v43\nv_xor_b32 v41, s{sTAG}, v33\nv_or_b32 v40, v40, v41\nv_and_b32 v40, s9, v40\nv_cmp_ne_u32 vcc, 0, v40\ns_cbranch_vccz gu_ok")
    a("s_sub_u32 s96, s96, 1\ns_cmp_eq_u32 s96, 0\ns_cbranch_scc1 gu_ok\ns_sleep 2")
    gu_load(a)
    a("s_waitcnt vmcnt(0)\ns_branch gu_chk\ngu_ok:")
    a("v_and_b32 v42, s9, v42\nv_and_b32 v32, s9, v32")
    T4(a, 176, 42, 42); T4(a, 177, 32, 32)
    for q in ("[2,3,0,1]", "[1,0,3,2]"):
        for A in (176, 177): a(f"v_add_f32_dpp v{A}, v{A}, v{A} quad_perm:{q} {FULL}")
    g, u = 176, 177
    rnd(a, g, g); rnd(a, u, u)
    a(f"v_mul_f32 v8, v{g}, v{g}\nv_mul_f32 v8, v8, v{g}")
    a(f"v_mul_f32 v8, {fl(0.044715)}, v8\nv_add_f32 v8, v8, v{g}\nv_mul_f32 v8, {fl(0.7978845608028654)}, v8")
    a(f"v_mul_f32 v8, {fl(2*LOG2E)}, v8\nv_exp_f32 v8, v8\nv_add_f32 v8, 1.0, v8\nv_rcp_f32 v8, v8")
    a(f"v_fma_f32 v8, v8, -2.0, 2.0")
    a(f"v_mul_f32 v9, 0.5, v{g}\nv_mul_f32 v8, v8, v9")
    rnd(a, 8, 8)
    a(f"v_mul_f32 v8, v8, v{u}\nv_cvt_pk_bf16_f32 v8, v8, v8")
    for n in range(2):
        for r in range(4):
            a(f"v_and_b32_dpp v{176+4*n+r}, v8, v{MK+r} row_newbcast:{8*n} {FULL}")
    Y = 160
    for n in range(2):
        for blk in range(4):
            D = f"v[{Y+4*blk}:{Y+3+4*blk}]"
            a(f"v_mfma_f32_16x16x32_bf16 {D}, v[{176+4*n}:{179+4*n}], {ring(RB, n*4+blk)}, {'0' if n==0 else D}")
    if "redw1" not in OPT: reducer_pre(a)
    for R in SETS[1:]:
        poll(R)
        if R != SETS[-1]: a(f"s_sleep {opt('TG', 2)}")
    a(f"s_mov_b32 s96, {SPIN}")
    a("t0_spin:")
    for R in SETS:
        a(f"s_waitcnt vmcnt({2*(len(SETS)-1)})")
        tagbad(a, 40, R, 41)
        a(f"v_xor_b32 v41, v{R+7}, v{vSD+1}\nv_or_b32 v40, v40, v41")
        a("v_cmp_eq_u32 vcc, 0, v40\ns_andn2_b64 s[78:79], exec, vcc\ns_and_b64 exec, exec, vcc")
        for r in range(4): a(f"v_and_b32 v{32+r}, 0xffffff00, v{R+r}")
        a(f"v_mov_b32 v36, v{R+4}\nv_mov_b32 v37, v{R+5}")
        a("s_mov_b64 exec, s[78:79]\ns_cbranch_execz t0_ok")
        if opt("TS", 0): a(f"s_sleep {opt('TS', 0)}")
        poll(R)
    a("s_sub_u32 s96, s96, 1\ns_cmp_lg_u32 s96, 0\ns_cbranch_scc1 t0_spin")
    a("t0_ok:\ns_mov_b64 exec, -1")
    stamp(a, 6)
    a(f"v_max_f32_dpp v38, v36, v36 row_ror:8 {FULL}")
    for r in (4, 2, 1): a(f"v_max_f32_dpp v38, v38, v38 row_ror:{r} {FULL}")
    a("v_sub_f32 v36, v36, v38\nv_mul_f32 v36, s88, v36\nv_exp_f32 v36, v36")
    for r in range(4): a(f"v_mul_f32 v{32+r}, v{32+r}, v36")
    a("v_mul_f32 v36, v36, v37")
    rowall(a, [36, 32, 33, 34, 35])
    a("v_rcp_f32 v37, v36")
    if "fastg" in OPT:
        for r in range(4): a(f"v_mul_f32 v{32+r}, v{32+r}, v37")
        for r in range(4): a(f"v_cvt_pk_bf16_f32 v{32+r}, v{32+r}, v{32+r}")
        def bld(n):
            for r in range(4): a(f"v_and_b32 v{176+4*n+r}, v{32+n}, v{MK+r}")
        def mm(n, blk):
            D = f"v[{Y+4*blk}:{Y+3+4*blk}]"
            a(f"v_mfma_f32_16x16x32_bf16 {D}, v[{176+4*n}:{179+4*n}], {ring(RA, n*4+blk)}, {D}")
        bld(0); bld(1)
        mm(0, 0); mm(0, 1); bld(2); mm(0, 2); mm(0, 3); bld(3)
        a(f"s_mov_b32 s8, s{sYA}")
        for blk in range(4):
            for n in range(1, 4): mm(n, blk)
            if blk:
                tagbytes(a, Y+4*(blk-1))
                a(f"buffer_store_dwordx4 v[{Y+4*(blk-1)}:{Y+4*(blk-1)+3}], v{vY}, {SW}, s8 offen {PUBF}\ns_add_u32 s8, s8, {32*YS}")
        tagbytes(a, Y+12)
        a(f"buffer_store_dwordx4 v[{Y+12}:{Y+15}], v{vY3}, {SW}, s8 offen {PUBF}")
        return
    for r in range(4): a(f"v_mul_f32 v{40+r}, v{32+r}, v37")
    for r in range(4): a(f"v_fma_f32 v{32+r}, -v{40+r}, v36, v{32+r}")
    for r in range(4): a(f"v_fma_f32 v{32+r}, v{32+r}, v37, v{40+r}")
    for r in range(4): a(f"v_cvt_pk_bf16_f32 v{32+r}, v{32+r}, v{32+r}")
    for n in range(4):
        for r in range(4): a(f"v_and_b32 v{176+4*n+r}, v{32+n}, v{MK+r}")
    for n in range(4):
        for blk in range(4):
            D = f"v[{Y+4*blk}:{Y+3+4*blk}]"
            a(f"v_mfma_f32_16x16x32_bf16 {D}, v[{176+4*n}:{179+4*n}], {ring(RA, n*4+blk)}, {D}")
    for blk in range(4): tagbytes(a, Y+4*blk)
    y_stores(a, Y, lambda blk: f"v[{Y+4*blk}:{Y+3+4*blk}]")

if __name__ == "__main__":
    t, k = kernel()
    s = HEADER + "; @launch grid=(256,1,1) block=(256,1,1) lds=9216\n"
    s += '.amdgcn_target "amdgcn-amd-amdhsa--gfx950"\n.text\n' + t + k
    open(sys.argv[1], "w").write(s)
```

```python
import sys
from common import *

OPT = set(sys.argv[2:])
STAMP = "stamp" in OPT
MIXED = "mixed" in OPT
SPIN = 200000
WARM = "nowarm" not in OPT
def opt(name, d):
    for o in OPT:
        if o.startswith(name+"="): return int(o.split("=")[1])
    return d
PUBF = "sc0 sc1" if "pub01" in OPT else "sc1"
B1, B2, B3, B4 = opt("B1", 8), opt("B2", 16), opt("B3", 26), opt("B4", 29)
XP   = 0x000000
XR   = 0x080000
OIN  = 0x200000
ML   = 0x240000
YA   = 0x180000
QP   = 0x2C0000
VOTE = 0x2E0000
PRG  = 0x2F0000
EPO  = 0x2F8000
GU   = 0x300000
WSSZ = 0x340000
STB  = 0x390000
NREP = opt('NREP', 8)
VSTR = opt('VSTR', 4352 if NREP <= 8 else 1280)
YS = opt('YS', 4352)
OS = opt('OS', 1024)

def stamp(a, i):
    if STAMP: a(f"s_memrealtime s[98:99]\ns_waitcnt lgkmcnt(0)\nv_writelane_b32 v208, s98, {i}")
def stamp_out(a):
    if STAMP and "dbg" in OPT:
        srd(a, 52, 36, 256)
        a("v_readlane_b32 s8, v208, 0\nv_readlane_b32 s9, v208, 2\nv_readlane_b32 s10, v208, 3\nv_readlane_b32 s11, v208, 4\nv_readlane_b32 s12, v208, 7\nv_readlane_b32 s13, v208, 15\nv_readlane_b32 s14, v208, 1\nv_readlane_b32 s15, v208, 9")
        a("s_not_b32 s72, s8\ns_not_b32 s73, s11\ns_not_b32 s74, s10")
        for i, r in enumerate([72, 8, 14, 15, 9, 74, 10, 73, 11, 12, 13]): a(f"v_writelane_b32 v209, s{r}, {i}")
        a(f"v_lshlrev_b32 v210, 2, v1\nv_mov_b32 v211, {hex(OOB)}\nv_cmp_gt_u32 vcc, 11, v1\nv_cndmask_b32 v210, v211, v210, vcc\nbuffer_atomic_umax v209, v210, s[52:55], 0 offen sc1")
    elif STAMP:
        a(f"s_mov_b32 s50, 0x400000\ns_lshl_b32 s8, s2, 2\ns_add_u32 s8, s8, s3\ns_lshl_b32 s8, s8, 6\ns_add_u32 s8, s8, {STB}")
        a(f"v_lshlrev_b32 v209, 2, v1\nv_mov_b32 v210, {hex(OOB)}\nv_cmp_gt_u32 vcc, 16, v1\nv_cndmask_b32 v209, v210, v209, vcc\nbuffer_store_dword v208, v209, s[48:51], s8 offen")

RA, RB = 64, 128
P0 = 32
vLO, vHI, vQ, vSW, vSB, vSC = 2, 3, 4, 8, 9, 10
vLS, vP, vT0, vT1, vT2 = 12, 13, 14, 15, 16
MK, AA, ACC = 20, 24, 48
vMX, vSH, vSD = 52, 53, 54
vPO, vPM, vY, vY3 = 56, 57, 58, 59
vRP = 19
sOK, sOV, sO, sXF, sK, sTAG = 90, 91, 92, 93, 94, 89
sXO, sXI = 97, 7
sPO, sPM, sYA = 80, 81, 82
L_M, L_L, L_V, L_O, L_P, L_S = 512, 528, 544, 1024, 1024, 5120

def T_of(k): return (k&1)*0x101000 ^ ((k>>1)&1)*0x84000 ^ ((k>>2)&1)*0x40000 ^ (k>>3)*0x20000
def sb_off(a, base, kreg):
    a(f"s_and_b32 s95, s{kreg}, 1\ns_mul_i32 s{sO}, s95, 0x101000")
    a(f"s_bfe_u32 s95, s{kreg}, 0x10001\ns_mul_i32 s95, s95, 0x84000\ns_or_b32 s{sO}, s{sO}, s95")
    a(f"s_bfe_u32 s95, s{kreg}, 0x10002\ns_lshl_b32 s95, s95, 18\ns_or_b32 s{sO}, s{sO}, s95")
    a(f"s_bfe_u32 s95, s{kreg}, 0x10003\ns_lshl_b32 s95, s95, 17\ns_or_b32 s{sO}, s{sO}, s95")
    a(f"s_xor_b32 s{sO}, s{sO}, s{base}")
def sb_const(a, base, k, dst=sO):
    a(f"s_xor_b32 s{dst}, s{base}, {hex(T_of(k))}" if k else f"s_mov_b32 s{dst}, s{base}")
def score_off(a, dst, src=sO):
    a(f"s_lshr_b32 s95, s{src}, 17\ns_lshl_b32 s95, s95, 10\ns_bfe_u32 s{dst}, s{src}, 0x3000c\ns_lshl_b32 s{dst}, s{dst}, 7\ns_or_b32 s{dst}, s{dst}, s95")
def ring(R, j): return f"v[{R+4*j}:{R+4*j+3}]"
def kvload(a, R, j, srdname, so=sO):
    a(f"buffer_load_dwordx4 {ring(R,j)}, v{vLO if j%2==0 else vHI}, {srdname}, s{so} offen offset:{joff(j)} nt")
def joff(j):
    return (j//2)*512 if "oldord" in OPT else ((j>>1)&1)*1024 + ((j>>2)&1)*2048 + (j>>3)*512
GR = opt("GR", 16)
MLF = 1 if "mlfold" in OPT else 0
PGL = "glc" if "pglc" in OPT else ""
SK, SV, SW = "s[40:43]", "s[44:47]", "s[48:51]"

def k_body(a, R, wait, refill, grouped=True):
    for j in range(16):
        w = wait(j)
        if w is not None: a(f"s_waitcnt vmcnt({w - (j % GR if grouped else 0)})")
        r = R+4*j
        a(f"v_dot2_f32_bf16 v{P0+j}, v{r}, v{vQ}, 0")
        for i in range(1, 4): a(f"v_dot2_f32_bf16 v{P0+j}, v{r+i}, v{vQ+i}, v{P0+j}")
        if j % GR == GR-1:
            for jj in range(j-GR+1, j+1): refill(jj)
    for j in range(8):
        a(f"v_add_f32_dpp v{P0+j}, v{P0+j}, v{P0+j} row_ror:8 row_mask:0xf bank_mask:0x3")
    for j in range(8):
        a(f"v_add_f32_dpp v{P0+j}, v{P0+8+j}, v{P0+8+j} row_ror:8 row_mask:0xf bank_mask:0xc")
    for j in range(4):
        a(f"v_add_f32_dpp v{P0+j}, v{P0+j}, v{P0+j} row_shl:4 row_mask:0xf bank_mask:0x5")
    for j in range(4):
        a(f"v_add_f32_dpp v{P0+j}, v{P0+4+j}, v{P0+4+j} row_shr:4 row_mask:0xf bank_mask:0xa")
    for j in range(4):
        a(f"v_add_f32_dpp v{P0+j}, v{P0+j}, v{P0+j} quad_perm:[2,3,0,1] {FULL}")
    a(f"v_cndmask_b32 v{P0}, v{P0}, v{P0+2}, s[84:85]\nv_cndmask_b32 v{P0+1}, v{P0+1}, v{P0+3}, s[84:85]")
    for j in range(2):
        a(f"v_add_f32_dpp v{P0+j}, v{P0+j}, v{P0+j} quad_perm:[1,0,3,2] {FULL}")
    a(f"v_cndmask_b32 v{P0}, v{P0}, v{P0+1}, s[86:87]")
    B16(a, P0, P0+1)
    a(f"v_mov_b32 v{P0+1}, v{P0}\nv_permlane32_swap_b32 v{P0}, v{P0+1}\nv_cvt_pk_bf16_f32 v{vSD}, v{P0}, v{P0+1}")
    a(f"ds_write_b32 v{vSW}, v{vSD}\nv_add_u32 v{vSW}, 64, v{vSW}")

def v_head(a, extra):
    a(f"ds_read_b32 v{vSC}, v{vSW}\nv_add_u32 v{vSW}, 64, v{vSW}")
    if extra: extra()
    a("s_waitcnt lgkmcnt(0)")
    a(f"v_lshlrev_b32 v{vT2}, v{vSH}, v{vSC}\nv_and_b32 v{vT2}, 0xffff0000, v{vT2}")
    a(f"v_max_f32_dpp v{vT0}, v{vT2}, v{vT2} row_ror:8 {FULL}")
    for r in (4, 2, 1): a(f"v_max_f32_dpp v{vT0}, v{vT0}, v{vT0} row_ror:{r} {FULL}")
    B32(a, vT0, vT1, "v_max_f32")
    a(f"v_max_f32 v{vT0}, v{vT0}, v{vMX}")
    a(f"v_sub_f32 v{vT1}, v{vMX}, v{vT0}\nv_sub_f32 v{vT2}, v{vT2}, v{vT0}")
    a(f"v_mov_b32 v{vMX}, v{vT0}")
    a(f"v_mul_f32 v{vT1}, s88, v{vT1}\nv_mul_f32 v{vT2}, s88, v{vT2}")
    a(f"v_exp_f32 v{vT1}, v{vT1}\nv_exp_f32 v{vT2}, v{vT2}")
    a(f"v_cvt_pk_bf16_f32 v{vP}, v{vT2}, v{vT2}")
    a(f"v_fma_f32 v{vLS}, v{vLS}, v{vT1}, v{vT2}")
    for r in range(4): a(f"v_mul_f32 v{ACC+r}, v{ACC+r}, v{vT1}")

def xp_load(a):
    a(f"s_lshl_b32 s8, s{sXI}, 9\nbuffer_load_dwordx2 v[60:61], v18, {SW}, s8 offen sc1")
def xr_load(a):
    a(f"s_lshl_b32 s8, s{sXI}, 10\ns_add_u32 s8, s8, {XR}\nbuffer_load_dwordx4 v[60:63], v17, {SW}, s8 offen sc1")
def x_check(a, tag, tagreg, load):
    a(f"s_mov_b32 s96, {SPIN}")
    a(f"x_chk_{tag}:")
    a(f"v_cmp_ne_u32 vcc, s{sTAG}, v{tagreg}\ns_cbranch_vccz x_ok_{tag}")
    a(f"s_sub_u32 s96, s96, 1\ns_cmp_eq_u32 s96, 0\ns_cbranch_scc1 x_ok_{tag}\ns_sleep 4")
    load(a)
    a(f"s_waitcnt vmcnt(0)\ns_branch x_chk_{tag}")
    a(f"x_ok_{tag}:")

HELP = "help" in OPT
K0 = opt("K0", 3)
LATE = opt("BV", 0)
if LATE: K0 = 22
KP = opt("KP", 13)
HFL = {0: "nt", 1: "", 2: "sc0", 3: "sc1"}[opt("HF", 0)]
def progress(a, kexpr):
    if not HELP: return
    a(f"s_andn2_b32 s79, s{sTAG}, 31\ns_or_b32 s79, s79, {kexpr}\ns_atomic_swap s79, s[38:39], s13")

def helper(a):
    a(f"s_and_b32 s12, s2, 7\ns_lshl_b32 s12, s12, 10\ns_add_u32 s12, s12, {PRG}")
    a(f"s_andn2_b32 s14, s{sTAG}, 31\ns_mov_b32 s96, {opt('HN', 40)}\nv_lshlrev_b32 v18, 3, v1")
    a(f"s_lshr_b32 s10, s{sXO}, 5\ns_lshl_b32 s10, s10, 2\ns_or_b32 s10, s10, s3")
    a("s_waitcnt lgkmcnt(0)\ns_mul_i32 s15, s10, 37\ns_mov_b32 s79, 0")
    if STAMP: a("v_writelane_b32 v208, s79, 13")
    a("h_loop:")
    a(f"buffer_load_dwordx2 v[32:33], v18, {SW}, s12 offen sc1\nbuffer_load_dwordx2 v[34:35], v18, {SW}, s12 offen offset:512 sc1")
    a("s_waitcnt vmcnt(0)")
    for r in range(4): a(f"v_xor_b32 v{32+r}, s14, v{32+r}")
    for r in range(2):
        a(f"v_cmp_gt_u32 vcc, 32, v{32+r}\nv_cndmask_b32 v{32+r}, 0, v{32+r}, vcc")
    for r in range(2):
        a(f"v_min_u32 v{34+r}, 16, v{34+r}\nv_add_u32 v{34+r}, -1, v{34+r}")
    for r in range(2):
        a(f"v_min_u32 v{36+r}, 15, v{32+r}\nv_add_u32 v{38+r}, {opt('HD', 2)}, v{32+r}")
        a(f"v_cmp_ge_i32 s[{60+4*r}:{61+4*r}], v{34+r}, v{36+r}\nv_cmp_le_i32 s[{62+4*r}:{63+4*r}], v{34+r}, v{38+r}\nv_cmp_gt_u32 vcc, {opt('HM', 17)}, v{32+r}")
        a(f"s_and_b64 s[{60+4*r}:{61+4*r}], s[{60+4*r}:{61+4*r}], s[{62+4*r}:{63+4*r}]\ns_and_b64 s[{60+4*r}:{61+4*r}], s[{60+4*r}:{61+4*r}], vcc")
    a("s_or_b64 s[62:63], s[60:61], s[64:65]\ns_cbranch_scc1 h_work")
    a(f"v_min_u32 v36, v32, v33\nv_cmp_gt_u32 vcc, {opt('HM', 17)}, v36\ns_cbranch_vccz main_fin")
    a("s_sleep 8\ns_sub_u32 s96, s96, 1\ns_cmp_lg_u32 s96, 0\ns_cbranch_scc1 h_loop\ns_branch main_fin")
    a("h_work:")
    if STAMP: a("s_add_u32 s79, s79, 1\nv_writelane_b32 v208, s79, 13")
    a("s_and_b32 s9, s15, 63\ns_lshr_b64 s[66:67], s[62:63], s9\ns_ff1_i32_b64 s8, s[66:67]\ns_add_u32 s9, s9, s8\ns_ff1_i32_b64 s11, s[62:63]\ns_cmp_lt_i32 s8, 0\ns_cselect_b32 s9, s11, s9")
    a("s_bitcmp1_b64 s[60:61], s9\ns_cselect_b32 s8, 0, 1")
    a("v_readlane_b32 s72, v34, s9\nv_readlane_b32 s73, v35, s9")
    a("s_cselect_b32 s72, s72, s73\ns_lshl_b32 s9, s9, 1\ns_or_b32 s9, s9, s8")
    a(f"s_or_b32 s8, s14, s72\nv_mov_b32 v36, s8\ns_lshl_b32 s8, s9, 2\ns_add_u32 s8, s8, s12\nbuffer_store_dword v36, v63, {SW}, s8 offen offset:512 sc1")
    a("s_xor_b32 s9, s9, s10")
    a("s_lshr_b32 s8, s9, 2\ns_lshl_b32 s73, s8, 23\ns_and_b32 s8, s9, 1\ns_lshl_b32 s8, s8, 22\ns_or_b32 s73, s73, s8")
    a("s_bfe_u32 s8, s9, 0x10001\ns_mul_i32 s8, s8, 0x202000\ns_or_b32 s73, s73, s8")
    a("s_bfe_u32 s8, s9, 0x10006\ns_lshl_b32 s8, s8, 12\ns_or_b32 s73, s73, s8\ns_bfe_u32 s8, s9, 0x10005\ns_lshl_b32 s8, s8, 14\ns_or_b32 s73, s73, s8")
    a(f"s_xor_b32 s73, s73, s{sOV}")
    sb_off(a, 73, 72)
    for j in range(16):
        a(f"buffer_load_dwordx4 {ring(RA,j)}, v{vLO if j%2==0 else vHI}, {SV}, s{sO} offen offset:{(j//2)*512} {HFL}")
    a(f"s_add_u32 s15, s15, 23\ns_waitcnt vmcnt({opt('HW', 4)})\ns_sub_u32 s96, s96, 1\ns_cmp_lg_u32 s96, 0\ns_cbranch_scc1 h_loop")

def tally(a, T):
    for r in range(4): a(f"v_xor_b32 v{T+r}, s{sTAG}, v{60+r}")
    for r in range(4): a(f"v_cmp_gt_u32 s[{60+2*r}:{61+2*r}], 64, v{T+r}")
    for r in range(4): a(f"v_and_b32 v{T+r}, 3, v{60+r}\nv_and_b32 v{T+4+r}, 12, v{60+r}")
    for r in range(4): a(f"v_bcnt_u32_b32 v{T+r}, v{T+r}, 0\nv_bcnt_u32_b32 v{T+4+r}, v{T+4+r}, 0")
    for r in range(4): a(f"v_lshl_add_u32 v{T+r}, v{T+4+r}, 10, v{T+r}")
    for r in range(4): a(f"v_or_b32 v{T+r}, 0x200000, v{T+r}")
    for r in range(4): a(f"v_cndmask_b32 v{T+r}, 0, v{T+r}, s[{60+2*r}:{61+2*r}]")
    a(f"v_add3_u32 v{T}, v{T}, v{T+1}, v{T+2}\nv_add_u32 v{T}, v{T}, v{T+3}")
    a("s_andn2_b32 s8, s2, 4\ns_lshr_b32 s8, s8, 2")
    for r in range(4): a(f"v_readlane_b32 s{72+r}, v{60+r}, s8")
    waveall(a, T, T+1, "v_add_u32")
    a("s_bitcmp1_b32 s2, 0\ns_cselect_b32 s72, s73, s72\ns_cselect_b32 s74, s75, s74\ns_bitcmp1_b32 s2, 1\ns_cselect_b32 s72, s74, s72")
    a(f"v_readfirstlane_b32 s8, v{T}")
    if STAMP: a("v_writelane_b32 v208, s8, 15")
    a("s_lshr_b32 s73, s8, 20\ns_and_b32 s74, s8, 0x3ff\ns_bfe_u32 s75, s8, 0xa000a")
    a("s_bfe_u32 s9, s72, 0x10004\ns_lshl_b32 s9, s9, 2")
    a("s_cmp_gt_u32 s74, 256\ns_cselect_b32 s8, 1, 0\ns_or_b32 s9, s9, s8\ns_cmp_gt_u32 s75, 256\ns_cselect_b32 s8, 2, 0\ns_or_b32 s9, s9, s8")
    a("s_sub_u32 s8, s73, s74\ns_add_u32 s8, s8, 1\ns_max_u32 s74, s74, s8\ns_sub_u32 s8, s73, s75\ns_add_u32 s8, s8, 1\ns_max_u32 s75, s75, s8\ns_min_u32 s74, s74, s75")
    a(f"s_xor_b32 s72, s72, s{sTAG}\ns_cmp_lt_u32 s72, 64\ns_cselect_b32 s74, s74, 0\ns_cmp_gt_u32 s74, 256")

def classes(a):
    a("s_lshr_b32 s8, s9, 2\ns_xor_b32 s4, s4, s8")
    if not MIXED:
        a(f"s_lshr_b32 s8, s9, 1\ns_xor_b32 s8, s8, s4\ns_and_b32 s8, s8, 1\ns_lshl_b32 s8, s8, 13\ns_or_b32 s{sOV}, s83, s8")
        a(f"s_xor_b32 s{sXF}, s{sOK}, s{sOV}")
        a(f"s_xor_b32 s8, s9, s4\ns_and_b32 s8, s8, 1\ns_lshl_b32 s8, s8, 13\ns_or_b32 s{sOK}, s83, s8")
        a(f"s_xor_b32 s8, s{sOK}, s{sOV}\ns_lshl_b32 s8, s8, 1\ns_or_b32 s{sXF}, s{sXF}, s8")
    else:
        a(f"s_mov_b32 s{sOV}, s{sOK}\ns_mov_b32 s{sXF}, 0")

def tagbytes(a, R):
    for r in range(4): a(f"v_perm_b32 v{R+r}, v{R+r}, v{vSD+1}, s{72+r}")
def tagsel(a):
    for r in range(4): a(f"s_mov_b32 s{72+r}, {hex(0x07060500+r)}")
    a("s_mov_b32 s76, 0x0c0c0400\ns_mov_b32 s77, 0x04000c0c")
def tagbad(a, d, R, t):
    a(f"v_perm_b32 v{d}, v{R+1}, v{R}, s76\nv_perm_b32 v{t}, v{R+3}, v{R+2}, s77")
    a(f"v_or_b32 v{d}, v{d}, v{t}\nv_xor_b32 v{d}, v{d}, v{vSD+1}")

def v_body(a, refill, waits, grouped=True):
    def build(j):
        for r in range(4):
            a(f"v_and_b32_dpp v{AA+4*(j&1)+r}, v{vP}, v{MK+r} row_newbcast:{j} {FULL}")
    build(0)
    for j in range(16):
        a(f"s_waitcnt vmcnt({waits(j) - (j % GR if grouped else 0)})")
        A = AA+4*(j&1)
        a(f"v_mfma_f32_16x16x32_bf16 v[{ACC}:{ACC+3}], v[{A}:{A+3}], {ring(RA,j)}, v[{ACC}:{ACC+3}]")
        if j < 15: build(j+1)
        if j % GR == GR-1:
            for jj in range(j-GR+1, j+1): refill(jj)

def y_stores(a, D, srcfn):
    a(f"s_mov_b32 s8, s{sYA}")
    for blk in range(4):
        a(f"buffer_store_dwordx4 {srcfn(blk)}, v{vY3 if blk==3 else vY}, {SW}, s8 offen {PUBF}")
        if blk < 3: a(f"s_add_u32 s8, s8, {32*YS}")

def startup_bodies(a):
    X = 1 if K0 == 3 else 0
    W0 = "w0poll" in OPT
    if K0 == 3: a(f"buffer_load_dwordx4 v[60:63], v{11 if W0 else 17}, {SW}, s12 offen sc1")
    k_body(a, RA, lambda j: None if j < B2 else 32+X, lambda j: kvload(a, RA, j, SK))
    if "latd" not in OPT: stamp(a, 13)
    k_body(a, RB, lambda j: None if 16+j < B2 else 15-j+1+X+16, lambda j: None, False)
    if "latd" not in OPT: stamp(a, 14)
    if "vtouch" in OPT:
        a(f"v_mov_b32 v47, {hex(OOB)}\nv_lshlrev_b32 v46, 17, v1\nv_cmp_gt_u32 vcc, {opt('VT', 1)}, v1\nv_cndmask_b32 v47, v47, v46, vcc\nbuffer_load_dword v46, v47, {SV}, s83 offen nt")
    if K0 == 3:
        a(f"s_mov_b32 s96, {SPIN}\nv_mov_b32 v40, 0")
        if W0: a("s_cmp_lg_u32 s3, 0\ns_cbranch_scc1 vt_wait")
        a(f"s_waitcnt vmcnt({17 if 'vtouch' in OPT else 16})")
        a("vt_chk:")
        tally(a, 32)
        a("s_cbranch_scc0 vt_spin")
        a("vt_ok:")
        if W0:
            a(f"s_or_b32 s8, s9, 8\nv_mov_b32 v41, s8\nds_write_b32 v40, v41 offset:{L_V+4}\ns_branch vt_have")
            a(f"vt_wait:\nds_read_b32 v41, v40 offset:{L_V+4}\ns_waitcnt lgkmcnt(0)\nv_readfirstlane_b32 s9, v41")
            a("s_bitcmp1_b32 s9, 3\ns_cbranch_scc1 vt_got\ns_sleep 1\ns_sub_u32 s96, s96, 1\ns_cmp_lg_u32 s96, 0\ns_cbranch_scc1 vt_wait")
            a("vt_got:\ns_and_b32 s9, s9, 7\nvt_have:")
        classes(a)

def kernel():
    a = Asm(); K = NAME + "_kernel"
    a(f".globl {K}\n.p2align 8\n.type {K},@function\n{K}:")
    a("s_cmp_ge_u32 s2, 256\ns_cbranch_scc1 main_done")
    stamp(a, 0)
    a("s_load_dwordx16 s[16:31], s[0:1], 0\ns_load_dwordx8 s[32:39], s[0:1], 64\ns_memtime s[100:101]")
    a("v_lshrrev_b32 v1, 6, v0\nv_readfirstlane_b32 s3, v1\nv_and_b32 v1, 63, v0")
    if "ipf" in OPT:
        a("s_getpc_b64 s[98:99]\nipf_pc:\ns_lshr_b32 s5, s2, 3\ns_lshl_b32 s5, s5, 10\ns_min_u32 s5, s5, code_end-ipf_pc-1024\nv_lshl_add_u32 v63, v1, 4, s5")
        a("s_cmp_lg_u32 s3, 3\ns_cbranch_scc1 noipf\nglobal_load_dwordx4 v[28:31], v63, s[98:99]\nnoipf:")
    a("s_lshr_b32 s5, s2, 4\ns_and_b32 s6, s2, 15")
    a("v_lshlrev_b32 v17, 4, v1")
    a("v_lshrrev_b32 v18, 3, v1\nv_and_b32 v14, 7, v1\nv_lshlrev_b32 v14, 4, v14\nv_lshl_add_u32 v19, v18, 13, v14")
    a("v_mul_u32_u24 v47, 3584, v18\nv_add_u32 v47, v47, v14")
    a(f"v_mov_b32 v15, {hex(OOB)}\nv_cmp_gt_u32 vcc, 32, v1\nv_cndmask_b32 v14, v15, v19, vcc")
    a("v_cmp_gt_u32 vcc, 48, v1\nv_cndmask_b32 v16, v15, v47, vcc")
    if "noffn" in OPT: a("v_mov_b32 v47, v15\nv_mov_b32 v16, v15")
    if "nowq" in OPT: a("v_mov_b32 v19, v15\nv_mov_b32 v14, v15")
    a("v_lshlrev_b32 v18, 1, v18")
    a(f"v_and_b32 v{vLO}, 31, v1\nv_lshlrev_b32 v{vLO}, 4, v{vLO}\nv_lshrrev_b32 v{vHI}, 5, v1\nv_lshlrev_b32 v{vHI}, 15, v{vHI}\nv_add_u32 v{vLO}, v{vLO}, v{vHI}\nv_add_u32 v{vHI}, 0x10000, v{vLO}")
    a("s_bfe_u32 s7, s2, 0x20002\ns_mul_i32 s8, s7, 112\ns_mul_i32 s9, s3, 28\ns_add_u32 s8, s8, s9\ns_lshl_b32 s9, s8, 1")
    a("s_lshl_b32 s8, s8, 13\ns_lshl_b32 s10, s5, 9\ns_add_u32 s8, s8, s10\ns_and_b32 s10, s2, 3\ns_lshl_b32 s10, s10, 7\ns_add_u32 s8, s8, s10")
    a("s_lshr_b32 s11, s2, 3\ns_and_b32 s13, s2, 7")
    a(f"s_mul_i32 s12, s13, 56\ns_mul_i32 s14, s3, 14\ns_add_u32 s12, s12, s14\ns_mul_i32 s14, s12, 3584\ns_lshl_b32 s12, s12, 1\ns_lshl_b32 s15, s11, 7\ns_add_u32 s14, s14, s15")
    a("s_lshl_b32 s83, s11, 23\ns_and_b32 s10, s3, 1\ns_lshl_b32 s10, s10, 22\ns_or_b32 s83, s83, s10\ns_lshr_b32 s4, s3, 1\ns_lshl_b32 s10, s4, 21\ns_or_b32 s83, s83, s10")
    a("s_lshr_b32 s10, s2, 1\ns_lshr_b32 s15, s2, 7\ns_xor_b32 s10, s10, s15\ns_andn2_b32 s10, 1, s10\ns_lshl_b32 s10, s10, 12\ns_or_b32 s83, s83, s10")
    a("s_lshr_b32 s10, s2, 6\ns_xor_b32 s10, s10, s2\ns_and_b32 s10, s10, 1\ns_lshl_b32 s10, s10, 14\ns_or_b32 s83, s83, s10")
    a(f"s_bfe_u32 s10, s2, 0x10002\ns_xor_b32 s4, s4, s10")
    if "pfxwg" in OPT: a("s_xor_b32 s10, s4, s11\ns_and_b32 s10, s10, 1")
    if "pfxx" in OPT: a("s_xor_b32 s10, s4, s2\ns_and_b32 s10, s10, 1")
    a(f"s_lshl_b32 s10, s10, 13\ns_or_b32 s{sOK}, s83, s10")
    a("s_lshl_b32 s74, s11, 23\ns_and_b32 s75, s2, 3\ns_lshl_b32 s75, s75, 21\ns_or_b32 s74, s74, s75")
    a("s_bfe_u32 s75, s2, 0x10002\ns_lshl_b32 s75, s75, 11\ns_or_b32 s74, s74, s75\ns_or_b32 s74, s74, 0x40000")
    a("s_and_b32 s76, s3, 1\ns_lshl_b32 s75, s76, 13\ns_or_b32 s74, s74, s75")
    a("s_getreg_b32 s79, hwreg(HW_REG_XCC_ID)\ns_bfe_u32 s79, s79, 0x10002")
    a("s_xor_b32 s76, s76, s79\ns_xor_b32 s76, s76, s2\ns_and_b32 s76, s76, 1")
    a(f"s_mov_b32 s10, {EPO}\ns_cmp_lt_u32 s3, 2")
    sb_const(a, sOK, 0)
    a("s_waitcnt lgkmcnt(0)")
    a("s_cselect_b32 s72, s18, s20\ns_cselect_b32 s73, s19, s21")
    a(f"s_lshr_b32 s100, s100, 3\ns_mul_i32 s100, s100, 0x9e3779b1\ns_lshr_b32 s100, s100, 8\ns_and_b32 s100, s100, {0 if 'pglc' in OPT else 0x1bd780}\ns_or_b32 s74, s74, s100\ns_xor_b32 s75, s74, {hex(opt('WX', 0x400))}")
    a(f"s_load_dword s78, s[72:73], s75 {PGL}")
    a(f"s_load_dword s{sTAG}, s[38:39], s10")
    srd(a, 40, 18, 1 << 28); srd(a, 52, 16, 896); srd(a, 56, 22, 448*8192)
    B0 = opt("B0", 0)
    for i in range(B0): kvload(a, RA, i, SK)
    a("buffer_load_dwordx4 v[60:63], v17, s[52:55], 0 offen")
    for n in range(4):
        a(f"buffer_load_ushort v{40+n}, v18, s[52:55], s9 offen offset:{16*n}")
    for n in range(4):
        a(f"buffer_load_dwordx4 v[{160+4*n}:{163+4*n}], v{19 if n<3 else 14}, s[56:59], s8 offen nt")
        if n < 3: a(f"s_add_u32 s8, s8, {8*8192}")
    def kpre(lo, hi):
        for i in range(lo, hi):
            if i == 16: sb_const(a, sOK, 1)
            if LATE and i == LATE: a(f"buffer_load_dwordx4 v[60:63], v17, {SW}, s12 offen sc1")
            kvload(a, RA if i < 16 else RB, i % 16, SK)
    a("s_barrier")
    kpre(B0, B1)
    srd(a, 60, 28, 448*3584); srd(a, 64, 30, 448*3584); srd(a, 68, 32, 1792*896)
    srd(a, 44, 20, 1 << 28); srd(a, 48, 38, WSSZ)
    stamp(a, 1)
    a(f"s_lshl_b32 s8, s5, 13\ns_add_u32 s8, s8, {QP}\ns_lshl_b32 s9, s3, 9\ns_add_u32 s15, s8, s9")
    a("s_lshl_b32 s9, s7, 11\ns_add_u32 s8, s8, s9\ns_and_b32 s9, s2, 3\ns_lshl_b32 s9, s9, 9\ns_add_u32 s7, s8, s9")
    a(f"v_and_b32 v13, 7, v1\nv_and_b32 v10, 56, v1\nv_lshl_add_u32 v11, v13, 6, v10\nv_lshl_add_u32 v46, v13, 10, v10")
    a(f"v_mul_u32_u24 v{vRP}, {VSTR}, v1\nv_cmp_gt_u32 vcc, {NREP}, v1\nv_cndmask_b32 v{vRP}, v15, v{vRP}, vcc")
    a(f"s_cmp_eq_u32 s3, 0\ns_cselect_b64 vcc, -1, 0\nv_cndmask_b32 v{vSC}, v15, v11, vcc")
    a(f"v_mov_b32 v12, 0\nv_mov_b32 v13, 0\nds_write_b64 v12, v[12:13] offset:{L_V}")
    a(f"s_waitcnt vmcnt({B1-B0+8})\nv_readfirstlane_b32 s77, v60\ns_lshl_b32 s77, s77, 16")
    vM, vS, vR = 20, 21, 22
    ln_stats2(a, 60, 32, vM, vS, vR, 12, 13, 11, 23, 77)
    a(f"s_waitcnt vmcnt({B1-B0+4})")
    center_rows(a, [40, 41, 42, 43], vM)
    scale_rows(a, [40, 41, 42, 43], [24, 25, 26, 27], vS, vR)
    a(f"s_waitcnt vmcnt({B1-B0})")
    stamp(a, 8)
    for n in range(4): gemv8(a, 32, 160+4*n, 24+n, 40+n, n == 0)
    red8(a, 32)
    a(f"v_lshlrev_b32 v12, 2, v0\nds_write_b32 v12, v32 offset:{L_P}\nv_lshlrev_b32 v12, 2, v1")
    a(f"s_waitcnt lgkmcnt(0)\ns_barrier")
    a(f"ds_read2st64_b32 v[32:33], v12 offset0:{L_P//256} offset1:{L_P//256+1}\nds_read2st64_b32 v[34:35], v12 offset0:{L_P//256+2} offset1:{L_P//256+3}")
    a(f"s_add_u32 s{sTAG}, s{sTAG}, 0x9e3779b9\nv_mov_b32 v{vSD+1}, s{sTAG}")
    a(f"s_waitcnt lgkmcnt(0)\nv_add_f32 v32, v32, v33\nv_add_f32 v34, v34, v35\nv_add_f32 v{vSD}, v32, v34")
    a(f"buffer_store_dwordx2 v[{vSD}:{vSD+1}], v{vSC}, {SW}, s7 offen sc1")
    stamp(a, 9)
    for n in range(2):
        a(f"buffer_load_ushort v{44+n}, v18, s[52:55], s12 offen offset:{16*n}")
    for n in range(2):
        a(f"buffer_load_dwordx4 v[{176+4*n}:{179+4*n}], v{47 if n==0 else 16}, s[60:63], s14 offen nt")
        a(f"buffer_load_dwordx4 v[{184+4*n}:{187+4*n}], v{47 if n==0 else 16}, s[64:67], s14 offen nt")
        if n == 0: a(f"s_add_u32 s14, s14, {8*3584}")
    BA, BB = opt("BA", 4), opt("BB", 0)
    kpre(B1, B2-BA-BB)
    if "latew" in OPT: a("s_xor_b32 s75, s75, 0x200\ns_load_dword s78, s[72:73], s75\ns_waitcnt lgkmcnt(0)")
    for i in range(2):
        a("s_memtime s[100:101]\ns_waitcnt lgkmcnt(0)")
        a(f"s_load_dword s78, s[72:73], s74 {PGL}\ns_waitcnt lgkmcnt(0)\ns_memtime s[96:97]\ns_waitcnt lgkmcnt(0)")
        a(f"s_sub_u32 s{8+i}, s96, s100")
        if i == 0:
            a("s_xor_b32 s74, s74, 0x2000"); kpre(B2-BA-BB, B2-BB)
    if "latd" in OPT: a("s_lshl_b32 s10, s76, 31\ns_or_b32 s10, s10, s8\nv_writelane_b32 v208, s10, 13\nv_writelane_b32 v208, s9, 14")
    a("s_sub_i32 s8, s8, s9\ns_sub_i32 s9, 0, s8\ns_cmp_eq_u32 s76, 0\ns_cselect_b32 s8, s8, s9")
    a("s_max_i32 s8, s8, -2047\ns_min_i32 s8, s8, 2047\ns_add_i32 s8, s8, 2048\ns_lshr_b32 s9, s3, 1\ns_mul_i32 s9, s9, 13\ns_lshl_b32 s8, s8, s9")
    a(f"s_or_b32 s8, s8, 0x20000000\nv_mov_b32 v12, s8\nv_mov_b32 v13, 0\ns_mov_b64 exec, 1\nds_add_rtn_u32 v13, v13, v12 offset:{L_V}\ns_mov_b64 exec, -1")
    a(f"s_lshl_b32 s10, s79, 4\ns_andn2_b32 s9, s{sTAG}, 63\ns_or_b32 s10, s10, s9\ns_lshl_b32 s9, s2, 2\ns_add_u32 s9, s9, {VOTE}")
    a("s_waitcnt lgkmcnt(0)\nv_readfirstlane_b32 s72, v13\ns_add_u32 s72, s72, s8\ns_bitcmp0_b32 s72, 31\ns_cbranch_scc1 novote")
    a("s_and_b32 s73, s72, 0x1fff\ns_cmp_gt_u32 s73, 4096\ns_cselect_b32 s73, 3, 0\ns_or_b32 s10, s10, s73")
    a("s_bfe_u32 s73, s72, 0xd000d\ns_cmp_gt_u32 s73, 4096\ns_cselect_b32 s73, 12, 0\ns_or_b32 s10, s10, s73")
    a(f"v_mov_b32 v12, s10\nbuffer_store_dword v12, v{vRP}, {SW}, s9 offen sc1")
    a("novote:")
    kpre(B2-BB, B2)
    def gather():
        if "cnt" in OPT: a("s_add_u32 s77, s77, 1\nv_writelane_b32 v208, s77, 1")
        for rb in range(4):
            if rb == 2: a("s_add_u32 s9, s15, 4096")
            a(f"buffer_load_dwordx2 v[{32+2*rb}:{33+2*rb}], v18, {SW}, s{15 if rb<2 else 9} offen offset:{2048*(rb&1)} sc1")
        if K0 == 2: a(f"buffer_load_dwordx4 v[60:63], v47, {SW}, s12 offen sc1")
    if "cnt" in OPT: a("s_mov_b32 s77, 0")
    EG = "lateg" not in OPT
    if EG:
        a("v_lshlrev_b32 v18, 3, v1"); gather(); kpre(B2, B3)
    a(f"s_lshl_b32 s9, s3, 10\ns_add_u32 s9, s9, {L_S}\nv_and_b32 v{vSW}, 15, v1\nv_lshl_add_u32 v{vSW}, v{vSW}, 2, s9\nv_lshl_add_u32 v{vSB}, v1, 2, s9")
    a(f"s_lshl_b32 s{sXO}, s2, 2\ns_add_u32 s{sXO}, s{sXO}, s3\ns_xor_b32 s{sXI}, s{sXO}, 16")
    a(f"v_cmp_gt_u32 vcc, 32, v1\nv_cndmask_b32 v{vSH}, 0, 16, vcc")
    a("s_mov_b32 s84, 0xcccccccc\ns_mov_b32 s85, 0xcccccccc\ns_mov_b32 s86, 0xaaaaaaaa\ns_mov_b32 s87, 0xaaaaaaaa")
    a(f"s_mov_b32 s88, {fl(CEXP)}")
    a(f"v_lshrrev_b32 v{vPO}, 5, v1\nv_lshlrev_b32 v{vPO}, {13+MLF}, v{vPO}\nv_bfe_u32 v12, v1, 1, 3\nv_lshlrev_b32 v12, {10+MLF}, v12\nv_add_u32 v{vPO}, v{vPO}, v12")
    a(f"v_and_b32 v12, 1, v1\nv_lshlrev_b32 v12, 5, v12\nv_add_u32 v{vPO}, v{vPO}, v12\nv_and_b32 v12, 16, v1\nv_add_u32 v{vPO}, v{vPO}, v12")
    if MLF: a(f"v_lshlrev_b32 v12, 11, v1\nv_cmp_gt_u32 vcc, 16, v1\nv_cndmask_b32 v{vPM}, v15, v12, vcc")
    else: a(f"v_cmp_eq_u32 vcc, 0, v1\nv_cndmask_b32 v{vPM}, v15, v1, vcc")
    yaddr(a, vY, vY3, 1, 12, 13, YS)
    a(f"s_lshl_b32 s{sPO}, s5, {14+MLF}\ns_lshl_b32 s10, s6, {6+MLF}\ns_add_u32 s{sPO}, s{sPO}, s10\ns_add_u32 s{sPO}, s{sPO}, {OIN}")
    a(f"s_lshl_b32 s{sPM}, s2, 4\ns_add_u32 s{sPM}, s{sPM}, {ML}\ns_lshl_b32 s{sYA}, s2, 4\ns_add_u32 s{sYA}, s{sYA}, {YA}")
    if "ytr" in OPT: a(f"s_lshl_b32 s{sYA}, s6, 4\ns_add_u32 s{sYA}, s{sYA}, s5\ns_lshl_b32 s{sYA}, s{sYA}, 4\ns_add_u32 s{sYA}, s{sYA}, {YA}")
    if "ytr2" in OPT: a(f"s_and_b32 s10, s2, 3\ns_lshl_b32 s10, s10, 6\ns_bfe_u32 s{sYA}, s2, 0x20002\ns_add_u32 s10, s10, s{sYA}\ns_lshl_b32 s{sYA}, s5, 2\ns_add_u32 s{sYA}, s{sYA}, s10\ns_lshl_b32 s{sYA}, s{sYA}, 4\ns_add_u32 s{sYA}, s{sYA}, {YA}")
    if MLF: a(f"s_add_u32 s{sPM}, s{sPO}, 64")
    a("s_cmp_eq_u32 s3, 0\ns_cselect_b64 vcc, -1, 0")
    for r in (vPO, vPM, vY, vY3): a(f"v_cndmask_b32 v{r}, v15, v{r}, vcc")
    a(f"s_lshl_b32 s14, s11, 13\ns_lshl_b32 s10, s13, 6\ns_add_u32 s14, s14, s10\ns_lshl_b32 s10, s3, 9\ns_add_u32 s14, s14, s10\ns_add_u32 s14, s14, {GU-512}")
    a(f"s_cmp_lt_u32 s11, 28\ns_cselect_b32 s10, 0, {hex(OOB)}\ns_add_u32 s9, s3, 3\ns_bitcmp1_b32 s9, 1\ns_cselect_b32 s10, {hex(OOB)}, s10\nv_or_b32 v46, s10, v46")
    a(f"s_and_b32 s12, s11, {NREP-1}\ns_mul_i32 s12, s12, {VSTR}\ns_add_u32 s12, s12, {VOTE}\nv_lshlrev_b32 v17, 4, v1\nv_lshlrev_b32 v18, 3, v1")
    a("s_cmp_eq_u32 s3, 0\ns_cselect_b64 vcc, -1, 0\ns_cselect_b32 s77, -64, 0\nv_cndmask_b32 v47, v15, v17, vcc\nv_mov_b32 v11, v47")
    a(f"s_waitcnt vmcnt({B2-B1+4 + (4+B3-B2 if EG else 0)})")
    center_rows(a, [44, 45], vM)
    scale_rows(a, [44, 45], [12, 13], vS, vR)
    a(f"s_waitcnt vmcnt({B2-B1 + (4+B3-B2 if EG else 0)})")
    aG, aU = 24, 192
    for n in range(2):
        gemv8(a, aG, 176+4*n, 12+n, 44+n, n == 0)
        gemv8(a, aU, 184+4*n, 12+n, 44+n, n == 0)
    stamp(a, 10)
    chk_n = [0]
    def check(ok):
        chk_n[0] += 1; n = chk_n[0]
        if K0 == 2:
            a(f"s_cmp_lg_u32 s3, 0\ns_cbranch_scc1 chk_q{n}")
            tally(a, 24)
            a(f"s_cbranch_scc0 chk_no{n}")
            a(f"chk_q{n}:")
        a(f"v_xor_b32 v40, s{sTAG}, v33\nv_xor_b32 v41, s{sTAG}, v35\nv_xor_b32 v42, s{sTAG}, v37\nv_xor_b32 v43, s{sTAG}, v39")
        a("v_or3_b32 v40, v40, v41, v42\nv_or_b32 v40, v40, v43")
        a(f"v_cmp_ne_u32 vcc, 0, v40\ns_cbranch_vccz {ok}")
        a(f"chk_no{n}:")
    if not EG: gather(); kpre(B2, B3)
    red8(a, aG); red8(a, aU)
    a(f"v_lshlrev_b32 v12, 2, v0\nds_write_b32 v12, v{aG} offset:{L_P+1024}\nds_write_b32 v12, v{aU} offset:{L_P+2048}")
    mask1(a, MK, 1, vT0, vT1)
    a(f"s_waitcnt vmcnt({B3-B2})")
    a("s_mov_b32 s78, 0")
    check("g_ok3")
    a("s_mov_b32 s78, 1")
    gather(); kpre(B3, B4)
    a(f"s_waitcnt vmcnt({B4-B3})")
    check("g_ok3")
    a("s_mov_b32 s78, 2")
    gather(); kpre(B4, 32)
    a(f"s_mov_b32 s96, {SPIN}\ns_waitcnt vmcnt({32-B4+(1 if LATE else 0)})")
    a("g_spin:")
    check("g_ok3")
    a("s_sub_u32 s96, s96, 1\ns_cmp_eq_u32 s96, 0\ns_cbranch_scc1 g_ok3\ns_sleep 8")
    gather()
    a("s_waitcnt vmcnt(0)\ns_branch g_spin")
    a("g_ok3:")
    stamp(a, 11)
    a("v_add_f32 v32, v32, v34\nv_add_f32 v36, v36, v38\nv_add_f32 v32, v32, v36")
    a("v_cvt_pk_bf16_f32 v32, v32, v32\nv_lshlrev_b32 v33, 1, v0\nds_write_b16 v33, v32")
    a("v_and_b32 v34, 31, v1\nv_lshlrev_b32 v34, 4, v34")
    a("s_max_u32 s8, s3, 1\ns_min_u32 s8, s8, 2\ns_lshl_b32 s8, s8, 10\nv_lshl_add_u32 v35, v1, 2, s8")
    if K0 == 2:
        a(f"v_mov_b32 v37, 0\ns_cmp_lg_u32 s3, 0\ns_cbranch_scc1 notally\nv_mov_b32 v36, s9\nds_write_b32 v37, v36 offset:{L_V+4}\nnotally:")
    a(f"s_waitcnt lgkmcnt(0)\ns_barrier")
    if K0 == 2: a(f"ds_read_b32 v36, v37 offset:{L_V+4}")
    a(f"ds_read_b128 v[{vQ}:{vQ+3}], v34")
    a(f"ds_read2st64_b32 v[40:41], v35 offset0:{L_P//256} offset1:{L_P//256+1}\nds_read2st64_b32 v[42:43], v35 offset0:{L_P//256+2} offset1:{L_P//256+3}")
    if K0 == 2:
        a("s_waitcnt lgkmcnt(3)\nv_readfirstlane_b32 s9, v36")
        classes(a)
    a("s_cmp_eq_u32 s78, 2\ns_cbranch_scc1 g_p2\ns_cmp_eq_u32 s78, 1\ns_cbranch_scc1 g_p1")
    kpre(B3, B4)
    a("g_p1:"); kpre(B4, 32)
    a("g_p2:")
    a(f"s_waitcnt lgkmcnt(0)\nv_add_f32 v40, v40, v41\nv_add_f32 v42, v42, v43\nv_add_f32 v{vSD}, v40, v42")
    a(f"buffer_store_dwordx2 v[{vSD}:{vSD+1}], v46, {SW}, s14 offen sc1")
    a(f"v_mov_b32 v{vMX}, 0xff800000\nv_mov_b32 v{vLS}, 0")
    for r in range(4): a(f"v_mov_b32 v{ACC+r}, 0")
    stamp(a, 2)
    if LATE:
        assert B2 >= 16 and LATE >= B4
        k_body(a, RA, lambda j: None, lambda j: None)
        if "latd" not in OPT: stamp(a, 13)
        a(f"s_mov_b32 s96, {SPIN}\ns_waitcnt vmcnt({32-LATE+1})")
        a("vt_chk:")
        tally(a, 32)
        a("s_cbranch_scc0 vt_spin")
        a("vt_ok:")
        classes(a)
        sb_const(a, sOK, 2)
        for j in range(16): kvload(a, RA, j, SK)
        k_body(a, RB, lambda j: None if 16+j < LATE else 15-j+1+16, lambda j: None, False)
        if "latd" not in OPT: stamp(a, 14)
    else:
      sb_const(a, sOK, 2)
      startup_bodies(a)
    a(f"s_mov_b32 s{sK}, 3")
    a("k_loop:")
    sb_off(a, sOK, sK)
    k_body(a, RA, lambda j: 15, lambda j: kvload(a, RA, j, SK))
    if STAMP:
        a(f"s_cmp_lg_u32 s{sK}, 3\ns_cbranch_scc1 k_st"); stamp(a, 12); a("k_st:")
    a(f"s_cmp_lg_u32 s{sK}, 4\ns_cbranch_scc1 k_next\ns_cmp_eq_u32 s{sXF}, 0\ns_cbranch_scc1 k_next")
    a(f"s_waitcnt lgkmcnt(0)\nds_read_b32 v{vSD}, v{vSB}\ns_lshl_b32 s8, s{sXO}, 9\ns_waitcnt lgkmcnt(0)")
    a(f"buffer_store_dwordx2 v[{vSD}:{vSD+1}], v18, {SW}, s8 offen sc1")
    a("k_next:")
    a(f"s_add_u32 s{sK}, s{sK}, 1\ns_cmp_lt_u32 s{sK}, 16\ns_cbranch_scc1 k_loop")
    a(f"s_mov_b32 s{sO}, s{sOV}")
    a(f"s_cmp_eq_u32 s{sXF}, 0\ns_cbranch_scc1 t_nop1")
    xp_load(a)
    a("t_nop1:")
    k_body(a, RA, lambda j: 15, lambda j: kvload(a, RA, j, SV))
    a(f"v_subrev_u32 v{vSW}, 1024, v{vSW}")
    a(f"s_bitcmp0_b32 s{sXF}, 14\ns_cbranch_scc1 t_nor")
    a(f"s_waitcnt lgkmcnt(0)\nds_read2st64_b32 v[24:25], v{vSB} offset0:1 offset1:2\nds_read_b32 v26, v{vSB} offset:768\nv_mov_b32 v27, s{sTAG}")
    a(f"s_lshl_b32 s8, s{sXO}, 10\ns_add_u32 s8, s8, {XR}\ns_waitcnt lgkmcnt(0)")
    a(f"buffer_store_dwordx4 v[24:27], v17, {SW}, s8 offen sc1")
    a("t_nor:")
    a(f"s_cmp_eq_u32 s{sXF}, 0\ns_cbranch_scc1 t_nop2")
    a("s_waitcnt vmcnt(16)")
    x_check(a, "p", 61, xp_load)
    pm = (1 << (16*(2 if LATE else K0))) - 1
    a(f"s_mov_b32 s8, {hex(pm & 0xffffffff)}\ns_mov_b32 s9, {hex(pm >> 32)}\ns_bitcmp1_b32 s{sXF}, 13\ns_cselect_b64 s[10:11], s[8:9], 0")
    a(f"s_not_b64 s[8:9], s[8:9]\ns_bitcmp1_b32 s{sXF}, 14\ns_cselect_b64 s[8:9], s[8:9], 0\ns_or_b64 exec, s[8:9], s[10:11]")
    a(f"ds_write_b32 v{vSB}, v60\ns_mov_b64 exec, -1")
    a("t_nop2:")
    a(f"s_mov_b32 s{sK}, 1")
    stamp(a, 3)
    a("v_loop:")
    sb_off(a, sOV, sK)
    a(f"s_bitcmp0_b32 s{sXF}, 14\ns_cbranch_scc1 v_go\ns_cmp_eq_u32 s{sK}, 4\ns_cbranch_scc1 v_xr1\ns_cmp_eq_u32 s{sK}, 5\ns_cbranch_scc1 v_xr2")
    a("v_go:")
    if HELP:
        a(f"s_cmp_lt_u32 s{sK}, {KP}\ns_cbranch_scc1 v_go2")
        a(f"s_cmp_lg_u32 s{sK}, {KP}\ns_cbranch_scc1 v_go1")
        a(f"v_mov_b32 v63, {hex(OOB)}\nv_cmp_eq_u32 vcc, 0, v1\nv_cndmask_b32 v63, v63, v1, vcc")
        a(f"s_and_b32 s13, s2, 7\ns_lshl_b32 s13, s13, 10\ns_lshr_b32 s8, s2, 3\ns_lshl_b32 s8, s8, 4\ns_add_u32 s13, s13, s8\ns_lshl_b32 s8, s3, 2\ns_add_u32 s13, s13, s8\ns_add_u32 s13, s13, {PRG}")
        a("v_go1:")
        v_head(a, None)
        progress(a, f"s{sK}")
        a("s_branch v_go3")
        a("v_go2:")
    v_head(a, None)
    a("v_go3:")
    v_body(a, lambda j: kvload(a, RA, j, SV), lambda j: 15)
    a(f"s_add_u32 s{sK}, s{sK}, 1\ns_cmp_lt_u32 s{sK}, 16\ns_cbranch_scc1 v_loop")
    tagsel(a)
    a("s_cmp_eq_u32 s3, 0\ns_cbranch_scc1 v_last0")
    v_head(a, None); ml_out(a)
    v_body(a, lambda j: None, lambda j: 15-j, False)
    a("s_branch v_end")
    a("v_last0:")
    srd(a, 52, 24, 4096*896)
    a("v_lshrrev_b32 v46, 4, v1\nv_mul_u32_u24 v19, 1792, v46\nv_and_b32 v18, 15, v1\nv_lshlrev_b32 v18, 4, v18\nv_lshl_add_u32 v46, v19, 1, v18\nv_add_u32 v19, v19, v18")
    a("v_and_b32 v18, 7, v1\nv_lshlrev_b32 v18, 6, v18\nv_and_b32 v47, 56, v1\nv_add_u32 v18, v18, v47")
    a(f"s_mul_i32 s10, s2, {16*896}\ns_min_u32 s14, s2, 223\ns_mul_i32 s14, s14, {8*896}\ns_lshl_b32 s12, s2, 10\ns_add_u32 s12, s12, {GU}")
    def wd():
        if "ttouch" in OPT:
            a(f"v_mov_b32 v47, {hex(OOB)}\nv_mul_u32_u24 v45, {opt('TT', 16384)}, v1\nv_cmp_gt_u32 vcc, {(112*YS)//opt('TT', 16384)+1}, v1\nv_cndmask_b32 v47, v47, v45, vcc\ns_mov_b32 s8, {YA}\nbuffer_load_dword v45, v47, {SW}, s8 offen sc1")
        gu_load(a)
        for i in range(8):
            a(f"buffer_load_dwordx4 {ring(RB,i)}, v19, s[68:71], s14 offen offset:{(i//4)*896+(i%4)*256} nt")
    v_head(a, wd); ml_out(a)
    v_body(a, lambda j: a(f"buffer_load_dwordx4 {ring(RA,j)}, v46, s[52:55], s10 offen offset:{(j//4)*896+(j%4)*256} nt"), lambda j: 25 + ("ttouch" in OPT))
    a("v_end:")
    stamp(a, 4)
    progress(a, "17")
    a(f"ds_write_b128 v{vT1}, v[{ACC}:{ACC+3}] offset:{L_O}")
    a("s_waitcnt lgkmcnt(0)\ns_barrier")
    a("s_cmp_eq_u32 s3, 0\ns_cbranch_scc1 tail0")
    hl = "h_go" if HELP else "main_fin"
    if "redw1" in OPT:
        a(f"s_cmp_lg_u32 s3, 1\ns_cbranch_scc1 {hl}\ns_cmp_ge_u32 s2, 112\ns_cbranch_scc1 {hl}")
        reducer_pre(a); reducer(a)
    a("s_branch main_fin")
    if HELP:
        a("h_go:"); helper(a); a("s_branch main_fin")
    a("tail0:")
    tail0(a)
    if "redw1" not in OPT:
        stamp(a, 8)
        a("s_cmp_ge_u32 s2, 112\ns_cbranch_scc1 main_fin")
        reducer(a)
    a("main_fin:")
    stamp(a, 7); stamp_out(a)
    a("main_done:\ns_endpgm")
    a("v_xr1:"); xr_load(a); a("s_branch v_go")
    a("v_xr2:\ns_waitcnt vmcnt(16)")
    x_check(a, "r", 63, xr_load)
    a(f"ds_write2st64_b32 v{vSB}, v60, v61 offset0:1 offset1:2\nds_write_b32 v{vSB}, v62 offset:768\ns_branch v_go")
    if K0 == 3 or LATE:
        a("vt_spin:\ns_sub_u32 s96, s96, 1\ns_cmp_eq_u32 s96, 0\ns_cbranch_scc1 vt_ok\ns_sleep 8")
        a(f"buffer_load_dwordx4 v[60:63], v17, {SW}, s12 offen sc1\ns_waitcnt vmcnt(0)\ns_branch vt_chk")
    return a.text(), kd(K, 216 if STAMP else 200, 102)

def ml_out(a):
    progress(a, "16")
    rowall(a, [vLS]); B32(a, vLS, vT0)
    a(f"s_lshl_b32 s8, s3, 2\nv_mov_b32 v{vT2}, s8\nds_write_b32 v{vT2}, v{vMX} offset:{L_M}\nds_write_b32 v{vT2}, v{vLS} offset:{L_L}")
    a(f"v_lshlrev_b32 v{vT1}, 4, v0\nv_mov_b32 v{vT2}, 0")

def gu_load(a):
    a(f"buffer_load_dwordx2 v[42:43], v18, {SW}, s12 offen sc1\nbuffer_load_dwordx2 v[32:33], v18, {SW}, s12 offen offset:512 sc1")

def red4(a, R):
    multiT(a, "v_permlane32_swap_b32", [(R, R+2), (R+1, R+3)])
    T16(a, R, R+1)
    rowall(a, [R])

def reducer_pre(a):
    srd(a, 52, 16, 896); srd(a, 56, 34, 896)
    a(f"v_mov_b32 v18, {hex(OOB)}\nv_lshlrev_b32 v17, 4, v1")
    a(f"s_mul_i32 s11, s2, {YS}\ns_add_u32 s11, s11, {YA}\ns_min_u32 s13, s2, 111\ns_lshl_b32 s13, s13, 3")
    a("v_lshrrev_b32 v2, 4, v1\nv_lshlrev_b32 v2, 1, v2\nv_and_b32 v3, 15, v1\nv_cmp_eq_u32 vcc, 0, v3\nv_cndmask_b32 v3, v18, v2, vcc")
    a("buffer_load_ushort v4, v2, s[52:55], s13 offen")
    for n in range(4): a(f"v_mov_b32 v{10+n}, v17\ns_mov_b64 s[{60+2*n}:{61+2*n}], -1")

def reducer(a):
    NS = opt("RN", 1)
    def sweep(k):
        for n in range(4):
            R = 80+16*k+4*n
            a(f"buffer_load_dwordx4 v[{R}:{R+3}], v{10+n}, {SW}, s11 offen offset:{1024*n} sc1")
    for k in range(NS):
        sweep(k)
        if k < NS-1: a(f"s_sleep {opt('RG', 6)//NS*1}")
    a(f"s_mov_b32 s96, {SPIN}")
    a("red_spin:")
    for k in range(NS):
        a(f"s_waitcnt vmcnt({4*(NS-1)})")
        for n in range(4):
            R = 80+16*k+4*n
            a(f"s_mov_b64 exec, s[{60+2*n}:{61+2*n}]\ns_cbranch_execz red_skip{k}_{n}")
            tagbad(a, 40, R, 41)
            a(f"v_cmp_eq_u32 vcc, 0, v40\ns_andn2_b64 s[{60+2*n}:{61+2*n}], exec, vcc\ns_and_b64 exec, exec, vcc")
            for r in range(4): a(f"v_and_b32 v{64+4*n+r}, 0xffffff00, v{R+r}")
            a(f"v_mov_b32 v{10+n}, v18")
            a(f"red_skip{k}_{n}:")
        a("s_mov_b64 exec, -1")
        a("s_or_b64 s[80:81], s[60:61], s[62:63]\ns_or_b64 s[82:83], s[64:65], s[66:67]\ns_or_b64 s[80:81], s[80:81], s[82:83]\ns_cbranch_scc0 red_ok")
        if opt("RS", 0): a(f"s_sleep {opt('RS', 0)}")
        sweep(k)
    a("s_sub_u32 s96, s96, 1\ns_cmp_lg_u32 s96, 0\ns_cbranch_scc1 red_spin")
    a("red_ok:")
    stamp(a, 6 if "redw1" in OPT else 1)
    for r in range(4):
        a(f"v_add_f32 v{64+r}, v{64+r}, v{68+r}\nv_add_f32 v{72+r}, v{72+r}, v{76+r}")
    for r in range(4): a(f"v_add_f32 v{64+r}, v{64+r}, v{72+r}")
    red4(a, 64)
    a("v_lshlrev_b32 v4, 16, v4\nv_add_f32 v64, v64, v4\nv_cvt_pk_bf16_f32 v64, v64, v64")
    a("buffer_store_short v64, v3, s[56:59], s13 offen")
    a("s_cmp_lg_u32 s2, 0\ns_cbranch_scc1 main_fin")
    a(f"s_mov_b32 s8, {EPO}\nv_cmp_eq_u32 vcc, 0, v1\nv_cndmask_b32 v3, v18, v1, vcc\nbuffer_store_dword v{vSD+1}, v3, {SW}, s8 offen")

def tail0(a):
    a(f"ds_read_b128 v[28:31], v{vT2} offset:{L_M}\nds_read_b128 v[36:39], v{vT2} offset:{L_L}")
    for w in range(4):
        a(f"ds_read_b128 v[{160+4*w}:{163+4*w}], v{vT1} offset:{L_O+1024*w}")
    a(f"v_and_b32 v44, 15, v1\nv_lshlrev_b32 v45, {7 if MLF else 4}, v44\nv_lshlrev_b32 v44, {6+MLF}, v44\nv_and_b32 v47, 48, v1\nv_add_u32 v44, v44, v47")
    a(f"s_lshl_b32 s15, s2, {10+MLF}\ns_add_u32 s15, s15, {OIN}")
    a("s_add_u32 s10, s15, 64" if MLF else f"s_lshl_b32 s10, s5, 8\ns_add_u32 s10, s10, {ML}")
    a("s_waitcnt lgkmcnt(4)")
    a(f"v_max3_f32 v{vMX}, v28, v29, v30\nv_max_f32 v{vMX}, v{vMX}, v31")
    for w in range(4): a(f"v_sub_f32 v{28+w}, v{28+w}, v{vMX}")
    for w in range(4): a(f"v_mul_f32 v{28+w}, s88, v{28+w}")
    for w in range(4): a(f"v_exp_f32 v{28+w}, v{28+w}")
    a(f"v_mul_f32 v{vMX+1}, v28, v36")
    for w in range(1, 4): a(f"v_fmac_f32 v{vMX+1}, v{28+w}, v{36+w}")
    a("s_waitcnt lgkmcnt(0)")
    for r in range(4): a(f"v_mul_f32 v{48+r}, v28, v{160+r}")
    for w in range(1, 4):
        for r in range(4): a(f"v_fmac_f32 v{48+r}, v{28+w}, v{160+4*w+r}")
    tagbytes(a, 48)
    a(f"buffer_store_dwordx4 v[48:51], v{vPO}, {SW}, s{sPO} offen {PUBF}")
    a(f"buffer_store_dwordx4 v[{vMX}:{vMX+3}], v{vPM}, {SW}, s{sPM} offen {PUBF}")
    stamp(a, 5)
    SETS = [24, 144, 152][:opt("TN", 1)]
    def poll(R):
        a(f"buffer_load_dwordx4 v[{R}:{R+3}], v44, {SW}, s15 offen sc1")
        a(f"buffer_load_dwordx4 v[{R+4}:{R+7}], v45, {SW}, s10 offen sc1")
    poll(SETS[0])
    mask2(a, MK, 1, vT0, vT1)
    a("s_cmp_lt_u32 s2, 224\ns_cselect_b32 s9, -1, 0\ns_waitcnt vmcnt(4)")
    a(f"s_mov_b32 s96, {SPIN}\ngu_chk:")
    a(f"v_xor_b32 v40, s{sTAG}, v43\nv_xor_b32 v41, s{sTAG}, v33\nv_or_b32 v40, v40, v41\nv_and_b32 v40, s9, v40\nv_cmp_ne_u32 vcc, 0, v40\ns_cbranch_vccz gu_ok")
    a("s_sub_u32 s96, s96, 1\ns_cmp_eq_u32 s96, 0\ns_cbranch_scc1 gu_ok\ns_sleep 2")
    gu_load(a)
    a("s_waitcnt vmcnt(0)\ns_branch gu_chk\ngu_ok:")
    a("v_and_b32 v42, s9, v42\nv_and_b32 v32, s9, v32")
    T4(a, 176, 42, 42); T4(a, 177, 32, 32)
    for q in ("[2,3,0,1]", "[1,0,3,2]"):
        for A in (176, 177): a(f"v_add_f32_dpp v{A}, v{A}, v{A} quad_perm:{q} {FULL}")
    g, u = 176, 177
    rnd(a, g, g); rnd(a, u, u)
    a(f"v_mul_f32 v8, v{g}, v{g}\nv_mul_f32 v8, v8, v{g}")
    a(f"v_mul_f32 v8, {fl(0.044715)}, v8\nv_add_f32 v8, v8, v{g}\nv_mul_f32 v8, {fl(0.7978845608028654)}, v8")
    a(f"v_mul_f32 v8, {fl(2*LOG2E)}, v8\nv_exp_f32 v8, v8\nv_add_f32 v8, 1.0, v8\nv_rcp_f32 v8, v8")
    a(f"v_fma_f32 v8, v8, -2.0, 2.0")
    a(f"v_mul_f32 v9, 0.5, v{g}\nv_mul_f32 v8, v8, v9")
    rnd(a, 8, 8)
    a(f"v_mul_f32 v8, v8, v{u}\nv_cvt_pk_bf16_f32 v8, v8, v8")
    for n in range(2):
        for r in range(4):
            a(f"v_and_b32_dpp v{176+4*n+r}, v8, v{MK+r} row_newbcast:{8*n} {FULL}")
    Y = 160
    for n in range(2):
        for blk in range(4):
            D = f"v[{Y+4*blk}:{Y+3+4*blk}]"
            a(f"v_mfma_f32_16x16x32_bf16 {D}, v[{176+4*n}:{179+4*n}], {ring(RB, n*4+blk)}, {'0' if n==0 else D}")
    if "redw1" not in OPT: reducer_pre(a)
    for R in SETS[1:]:
        poll(R)
        if R != SETS[-1]: a(f"s_sleep {opt('TG', 2)}")
    a(f"s_mov_b32 s96, {SPIN}")
    a("t0_spin:")
    for R in SETS:
        a(f"s_waitcnt vmcnt({2*(len(SETS)-1)})")
        tagbad(a, 40, R, 41)
        a(f"v_xor_b32 v41, v{R+7}, v{vSD+1}\nv_or_b32 v40, v40, v41")
        a("v_cmp_eq_u32 vcc, 0, v40\ns_andn2_b64 s[78:79], exec, vcc\ns_and_b64 exec, exec, vcc")
        for r in range(4): a(f"v_and_b32 v{32+r}, 0xffffff00, v{R+r}")
        a(f"v_mov_b32 v36, v{R+4}\nv_mov_b32 v37, v{R+5}")
        a("s_mov_b64 exec, s[78:79]\ns_cbranch_execz t0_ok")
        if opt("TS", 0): a(f"s_sleep {opt('TS', 0)}")
        poll(R)
    a("s_sub_u32 s96, s96, 1\ns_cmp_lg_u32 s96, 0\ns_cbranch_scc1 t0_spin")
    a("t0_ok:\ns_mov_b64 exec, -1")
    stamp(a, 6)
    a(f"v_max_f32_dpp v38, v36, v36 row_ror:8 {FULL}")
    for r in (4, 2, 1): a(f"v_max_f32_dpp v38, v38, v38 row_ror:{r} {FULL}")
    a("v_sub_f32 v36, v36, v38\nv_mul_f32 v36, s88, v36\nv_exp_f32 v36, v36")
    for r in range(4): a(f"v_mul_f32 v{32+r}, v{32+r}, v36")
    a("v_mul_f32 v36, v36, v37")
    rowall(a, [36, 32, 33, 34, 35])
    a("v_rcp_f32 v37, v36")
    if "fastg" in OPT:
        for r in range(4): a(f"v_mul_f32 v{32+r}, v{32+r}, v37")
        for r in range(4): a(f"v_cvt_pk_bf16_f32 v{32+r}, v{32+r}, v{32+r}")
        def bld(n):
            for r in range(4): a(f"v_and_b32 v{176+4*n+r}, v{32+n}, v{MK+r}")
        def mm(n, blk):
            D = f"v[{Y+4*blk}:{Y+3+4*blk}]"
            a(f"v_mfma_f32_16x16x32_bf16 {D}, v[{176+4*n}:{179+4*n}], {ring(RA, n*4+blk)}, {D}")
        bld(0); bld(1)
        mm(0, 0); mm(0, 1); bld(2); mm(0, 2); mm(0, 3); bld(3)
        a(f"s_mov_b32 s8, s{sYA}")
        for blk in range(4):
            for n in range(1, 4): mm(n, blk)
            if blk:
                tagbytes(a, Y+4*(blk-1))
                a(f"buffer_store_dwordx4 v[{Y+4*(blk-1)}:{Y+4*(blk-1)+3}], v{vY}, {SW}, s8 offen {PUBF}\ns_add_u32 s8, s8, {32*YS}")
        tagbytes(a, Y+12)
        a(f"buffer_store_dwordx4 v[{Y+12}:{Y+15}], v{vY3}, {SW}, s8 offen {PUBF}")
        return
    for r in range(4): a(f"v_mul_f32 v{40+r}, v{32+r}, v37")
    for r in range(4): a(f"v_fma_f32 v{32+r}, -v{40+r}, v36, v{32+r}")
    for r in range(4): a(f"v_fma_f32 v{32+r}, v{32+r}, v37, v{40+r}")
    for r in range(4): a(f"v_cvt_pk_bf16_f32 v{32+r}, v{32+r}, v{32+r}")
    for n in range(4):
        for r in range(4): a(f"v_and_b32 v{176+4*n+r}, v{32+n}, v{MK+r}")
    for n in range(4):
        for blk in range(4):
            D = f"v[{Y+4*blk}:{Y+3+4*blk}]"
            a(f"v_mfma_f32_16x16x32_bf16 {D}, v[{176+4*n}:{179+4*n}], {ring(RA, n*4+blk)}, {D}")
    for blk in range(4): tagbytes(a, Y+4*blk)
    y_stores(a, Y, lambda blk: f"v[{Y+4*blk}:{Y+3+4*blk}]")

if __name__ == "__main__":
    t, k = kernel()
    t += "code_end:\n"
    s = HEADER + "; @launch grid=(256,1,1) block=(256,1,1) lds=9216\n"
    s += '.amdgcn_target "amdgcn-amd-amdhsa--gfx950"\n.text\n' + t + k
    open(sys.argv[1], "w").write(s)
```

```python
import sys
from common import *

OPT = set(sys.argv[2:])
STAMP = "stamp" in OPT
MIXED = "mixed" in OPT
SPIN = 200000
WARM = "nowarm" not in OPT
def opt(name, d):
    for o in OPT:
        if o.startswith(name+"="): return int(o.split("=")[1])
    return d
PUBF = "sc0 sc1" if "pub01" in OPT else "sc1"
B1, B2, B3, B4 = opt("B1", 8), opt("B2", 16), opt("B3", 26), opt("B4", 29)
XP   = 0x000000
XR   = 0x080000
OIN  = 0x200000
ML   = 0x240000
YA   = 0x180000
QP   = 0x2C0000
VOTE = 0x2E0000
PRG  = 0x2F0000
EPO  = 0x2F8000
GU   = 0x300000
WSSZ = 0x340000
STB  = 0x390000
NREP = opt('NREP', 8)
VSTR = opt('VSTR', 4352 if NREP <= 8 else 1280)
YS = opt('YS', 4352)
OS = opt('OS', 1024)

def stamp(a, i):
    if STAMP: a(f"s_memrealtime s[98:99]\ns_waitcnt lgkmcnt(0)\nv_writelane_b32 v208, s98, {i}")
def stamp_out(a):
    if STAMP and "dbg" in OPT:
        srd(a, 52, 36, 256)
        a("v_readlane_b32 s8, v208, 0\nv_readlane_b32 s9, v208, 2\nv_readlane_b32 s10, v208, 3\nv_readlane_b32 s11, v208, 4\nv_readlane_b32 s12, v208, 7\nv_readlane_b32 s13, v208, 15\nv_readlane_b32 s14, v208, 1\nv_readlane_b32 s15, v208, 9")
        a("s_not_b32 s72, s8\ns_not_b32 s73, s11\ns_not_b32 s74, s10")
        for i, r in enumerate([72, 8, 14, 15, 9, 74, 10, 73, 11, 12, 13]): a(f"v_writelane_b32 v209, s{r}, {i}")
        a(f"v_lshlrev_b32 v210, 2, v1\nv_mov_b32 v211, {hex(OOB)}\nv_cmp_gt_u32 vcc, 11, v1\nv_cndmask_b32 v210, v211, v210, vcc\nbuffer_atomic_umax v209, v210, s[52:55], 0 offen sc1")
    elif STAMP:
        a(f"s_mov_b32 s50, 0x400000\ns_lshl_b32 s8, s2, 2\ns_add_u32 s8, s8, s3\ns_lshl_b32 s8, s8, 6\ns_add_u32 s8, s8, {STB}")
        a(f"v_lshlrev_b32 v209, 2, v1\nv_mov_b32 v210, {hex(OOB)}\nv_cmp_gt_u32 vcc, 16, v1\nv_cndmask_b32 v209, v210, v209, vcc\nbuffer_store_dword v208, v209, s[48:51], s8 offen")

RA, RB = 64, 128
P0 = 32
vLO, vHI, vQ, vSW, vSB, vSC = 2, 3, 4, 8, 9, 10
vLS, vP, vT0, vT1, vT2 = 12, 13, 14, 15, 16
MK, AA, ACC = 20, 24, 48
vMX, vSH, vSD = 52, 53, 54
vPO, vPM, vY, vY3 = 56, 57, 58, 59
vRP = 19
sOK, sOV, sO, sXF, sK, sTAG = 90, 91, 92, 93, 94, 89
sXO, sXI = 97, 7
sPO, sPM, sYA = 80, 81, 82
L_M, L_L, L_V, L_O, L_P, L_S = 512, 528, 544, 1024, 1024, 5120

def T_of(k): return (k&1)*0x101000 ^ ((k>>1)&1)*0x84000 ^ ((k>>2)&1)*0x40000 ^ (k>>3)*0x20000
def sb_off(a, base, kreg):
    a(f"s_and_b32 s95, s{kreg}, 1\ns_mul_i32 s{sO}, s95, 0x101000")
    a(f"s_bfe_u32 s95, s{kreg}, 0x10001\ns_mul_i32 s95, s95, 0x84000\ns_or_b32 s{sO}, s{sO}, s95")
    a(f"s_bfe_u32 s95, s{kreg}, 0x10002\ns_lshl_b32 s95, s95, 18\ns_or_b32 s{sO}, s{sO}, s95")
    a(f"s_bfe_u32 s95, s{kreg}, 0x10003\ns_lshl_b32 s95, s95, 17\ns_or_b32 s{sO}, s{sO}, s95")
    a(f"s_xor_b32 s{sO}, s{sO}, s{base}")
def sb_const(a, base, k, dst=sO):
    a(f"s_xor_b32 s{dst}, s{base}, {hex(T_of(k))}" if k else f"s_mov_b32 s{dst}, s{base}")
def score_off(a, dst, src=sO):
    a(f"s_lshr_b32 s95, s{src}, 17\ns_lshl_b32 s95, s95, 10\ns_bfe_u32 s{dst}, s{src}, 0x3000c\ns_lshl_b32 s{dst}, s{dst}, 7\ns_or_b32 s{dst}, s{dst}, s95")
def ring(R, j): return f"v[{R+4*j}:{R+4*j+3}]"
def kvload(a, R, j, srdname, so=sO):
    a(f"buffer_load_dwordx4 {ring(R,j)}, v{vLO if j%2==0 else vHI}, {srdname}, s{so} offen offset:{joff(j)} nt")
def joff(j):
    return (j//2)*512 if "oldord" in OPT else ((j>>1)&1)*1024 + ((j>>2)&1)*2048 + (j>>3)*512
GR = opt("GR", 16)
MLF = 1 if "mlfold" in OPT else 0
PGL = "glc" if "pglc" in OPT else ""
SK, SV, SW = "s[40:43]", "s[44:47]", "s[48:51]"

def k_body(a, R, wait, refill, grouped=True):
    for j in range(16):
        w = wait(j)
        if w is not None: a(f"s_waitcnt vmcnt({w - (j % GR if grouped else 0)})")
        r = R+4*j
        a(f"v_dot2_f32_bf16 v{P0+j}, v{r}, v{vQ}, 0")
        for i in range(1, 4): a(f"v_dot2_f32_bf16 v{P0+j}, v{r+i}, v{vQ+i}, v{P0+j}")
        if j % GR == GR-1:
            for jj in range(j-GR+1, j+1): refill(jj)
    for j in range(8):
        a(f"v_add_f32_dpp v{P0+j}, v{P0+j}, v{P0+j} row_ror:8 row_mask:0xf bank_mask:0x3")
    for j in range(8):
        a(f"v_add_f32_dpp v{P0+j}, v{P0+8+j}, v{P0+8+j} row_ror:8 row_mask:0xf bank_mask:0xc")
    for j in range(4):
        a(f"v_add_f32_dpp v{P0+j}, v{P0+j}, v{P0+j} row_shl:4 row_mask:0xf bank_mask:0x5")
    for j in range(4):
        a(f"v_add_f32_dpp v{P0+j}, v{P0+4+j}, v{P0+4+j} row_shr:4 row_mask:0xf bank_mask:0xa")
    for j in range(4):
        a(f"v_add_f32_dpp v{P0+j}, v{P0+j}, v{P0+j} quad_perm:[2,3,0,1] {FULL}")
    a(f"v_cndmask_b32 v{P0}, v{P0}, v{P0+2}, s[84:85]\nv_cndmask_b32 v{P0+1}, v{P0+1}, v{P0+3}, s[84:85]")
    for j in range(2):
        a(f"v_add_f32_dpp v{P0+j}, v{P0+j}, v{P0+j} quad_perm:[1,0,3,2] {FULL}")
    a(f"v_cndmask_b32 v{P0}, v{P0}, v{P0+1}, s[86:87]")
    B16(a, P0, P0+1)
    a(f"v_mov_b32 v{P0+1}, v{P0}\nv_permlane32_swap_b32 v{P0}, v{P0+1}\nv_cvt_pk_bf16_f32 v{vSD}, v{P0}, v{P0+1}")
    a(f"ds_write_b32 v{vSW}, v{vSD}\nv_add_u32 v{vSW}, 64, v{vSW}")

def v_head(a, extra):
    a(f"ds_read_b32 v{vSC}, v{vSW}\nv_add_u32 v{vSW}, 64, v{vSW}")
    if extra: extra()
    a("s_waitcnt lgkmcnt(0)")
    a(f"v_lshlrev_b32 v{vT2}, v{vSH}, v{vSC}\nv_and_b32 v{vT2}, 0xffff0000, v{vT2}")
    a(f"v_max_f32_dpp v{vT0}, v{vT2}, v{vT2} row_ror:8 {FULL}")
    for r in (4, 2, 1): a(f"v_max_f32_dpp v{vT0}, v{vT0}, v{vT0} row_ror:{r} {FULL}")
    B32(a, vT0, vT1, "v_max_f32")
    a(f"v_max_f32 v{vT0}, v{vT0}, v{vMX}")
    a(f"v_sub_f32 v{vT1}, v{vMX}, v{vT0}\nv_sub_f32 v{vT2}, v{vT2}, v{vT0}")
    a(f"v_mov_b32 v{vMX}, v{vT0}")
    a(f"v_mul_f32 v{vT1}, s88, v{vT1}\nv_mul_f32 v{vT2}, s88, v{vT2}")
    a(f"v_exp_f32 v{vT1}, v{vT1}\nv_exp_f32 v{vT2}, v{vT2}")
    a(f"v_cvt_pk_bf16_f32 v{vP}, v{vT2}, v{vT2}")
    a(f"v_fma_f32 v{vLS}, v{vLS}, v{vT1}, v{vT2}")
    for r in range(4): a(f"v_mul_f32 v{ACC+r}, v{ACC+r}, v{vT1}")

def xp_load(a):
    a(f"s_lshl_b32 s8, s{sXI}, 9\nbuffer_load_dwordx2 v[60:61], v18, {SW}, s8 offen sc1")
def xr_load(a):
    a(f"s_lshl_b32 s8, s{sXI}, 10\ns_add_u32 s8, s8, {XR}\nbuffer_load_dwordx4 v[60:63], v17, {SW}, s8 offen sc1")
def x_check(a, tag, tagreg, load):
    a(f"s_mov_b32 s96, {SPIN}")
    a(f"x_chk_{tag}:")
    a(f"v_cmp_ne_u32 vcc, s{sTAG}, v{tagreg}\ns_cbranch_vccz x_ok_{tag}")
    a(f"s_sub_u32 s96, s96, 1\ns_cmp_eq_u32 s96, 0\ns_cbranch_scc1 x_ok_{tag}\ns_sleep 4")
    load(a)
    a(f"s_waitcnt vmcnt(0)\ns_branch x_chk_{tag}")
    a(f"x_ok_{tag}:")

HELP = "help" in OPT
K0 = opt("K0", 3)
LATE = opt("BV", 0)
if LATE: K0 = 22
KP = opt("KP", 13)
HFL = {0: "nt", 1: "", 2: "sc0", 3: "sc1"}[opt("HF", 0)]
def progress(a, kexpr):
    if not HELP: return
    a(f"s_andn2_b32 s79, s{sTAG}, 31\ns_or_b32 s79, s79, {kexpr}\ns_atomic_swap s79, s[38:39], s13")

def helper(a):
    a(f"s_and_b32 s12, s2, 7\ns_lshl_b32 s12, s12, 10\ns_add_u32 s12, s12, {PRG}")
    a(f"s_andn2_b32 s14, s{sTAG}, 31\ns_mov_b32 s96, {opt('HN', 40)}\nv_lshlrev_b32 v18, 3, v1")
    a(f"s_lshr_b32 s10, s{sXO}, 5\ns_lshl_b32 s10, s10, 2\ns_or_b32 s10, s10, s3")
    a("s_waitcnt lgkmcnt(0)\ns_mul_i32 s15, s10, 37\ns_mov_b32 s79, 0")
    if STAMP: a("v_writelane_b32 v208, s79, 13")
    a("h_loop:")
    a(f"buffer_load_dwordx2 v[32:33], v18, {SW}, s12 offen sc1\nbuffer_load_dwordx2 v[34:35], v18, {SW}, s12 offen offset:512 sc1")
    a("s_waitcnt vmcnt(0)")
    for r in range(4): a(f"v_xor_b32 v{32+r}, s14, v{32+r}")
    for r in range(2):
        a(f"v_cmp_gt_u32 vcc, 32, v{32+r}\nv_cndmask_b32 v{32+r}, 0, v{32+r}, vcc")
    for r in range(2):
        a(f"v_min_u32 v{34+r}, 16, v{34+r}\nv_add_u32 v{34+r}, -1, v{34+r}")
    for r in range(2):
        a(f"v_min_u32 v{36+r}, 15, v{32+r}\nv_add_u32 v{38+r}, {opt('HD', 2)}, v{32+r}")
        a(f"v_cmp_ge_i32 s[{60+4*r}:{61+4*r}], v{34+r}, v{36+r}\nv_cmp_le_i32 s[{62+4*r}:{63+4*r}], v{34+r}, v{38+r}\nv_cmp_gt_u32 vcc, {opt('HM', 17)}, v{32+r}")
        a(f"s_and_b64 s[{60+4*r}:{61+4*r}], s[{60+4*r}:{61+4*r}], s[{62+4*r}:{63+4*r}]\ns_and_b64 s[{60+4*r}:{61+4*r}], s[{60+4*r}:{61+4*r}], vcc")
    a("s_or_b64 s[62:63], s[60:61], s[64:65]\ns_cbranch_scc1 h_work")
    a(f"v_min_u32 v36, v32, v33\nv_cmp_gt_u32 vcc, {opt('HM', 17)}, v36\ns_cbranch_vccz main_fin")
    a("s_sleep 8\ns_sub_u32 s96, s96, 1\ns_cmp_lg_u32 s96, 0\ns_cbranch_scc1 h_loop\ns_branch main_fin")
    a("h_work:")
    if STAMP: a("s_add_u32 s79, s79, 1\nv_writelane_b32 v208, s79, 13")
    a("s_and_b32 s9, s15, 63\ns_lshr_b64 s[66:67], s[62:63], s9\ns_ff1_i32_b64 s8, s[66:67]\ns_add_u32 s9, s9, s8\ns_ff1_i32_b64 s11, s[62:63]\ns_cmp_lt_i32 s8, 0\ns_cselect_b32 s9, s11, s9")
    a("s_bitcmp1_b64 s[60:61], s9\ns_cselect_b32 s8, 0, 1")
    a("v_readlane_b32 s72, v34, s9\nv_readlane_b32 s73, v35, s9")
    a("s_cselect_b32 s72, s72, s73\ns_lshl_b32 s9, s9, 1\ns_or_b32 s9, s9, s8")
    a(f"s_or_b32 s8, s14, s72\nv_mov_b32 v36, s8\ns_lshl_b32 s8, s9, 2\ns_add_u32 s8, s8, s12\nbuffer_store_dword v36, v63, {SW}, s8 offen offset:512 sc1")
    a("s_xor_b32 s9, s9, s10")
    a("s_lshr_b32 s8, s9, 2\ns_lshl_b32 s73, s8, 23\ns_and_b32 s8, s9, 1\ns_lshl_b32 s8, s8, 22\ns_or_b32 s73, s73, s8")
    a("s_bfe_u32 s8, s9, 0x10001\ns_mul_i32 s8, s8, 0x202000\ns_or_b32 s73, s73, s8")
    a("s_bfe_u32 s8, s9, 0x10006\ns_lshl_b32 s8, s8, 12\ns_or_b32 s73, s73, s8\ns_bfe_u32 s8, s9, 0x10005\ns_lshl_b32 s8, s8, 14\ns_or_b32 s73, s73, s8")
    a(f"s_xor_b32 s73, s73, s{sOV}")
    sb_off(a, 73, 72)
    for j in range(16):
        a(f"buffer_load_dwordx4 {ring(RA,j)}, v{vLO if j%2==0 else vHI}, {SV}, s{sO} offen offset:{(j//2)*512} {HFL}")
    a(f"s_add_u32 s15, s15, 23\ns_waitcnt vmcnt({opt('HW', 4)})\ns_sub_u32 s96, s96, 1\ns_cmp_lg_u32 s96, 0\ns_cbranch_scc1 h_loop")

def tally(a, T):
    for r in range(4): a(f"v_xor_b32 v{T+r}, s{sTAG}, v{60+r}")
    for r in range(4): a(f"v_cmp_gt_u32 s[{60+2*r}:{61+2*r}], 64, v{T+r}")
    for r in range(4): a(f"v_and_b32 v{T+r}, 3, v{60+r}\nv_and_b32 v{T+4+r}, 12, v{60+r}")
    for r in range(4): a(f"v_bcnt_u32_b32 v{T+r}, v{T+r}, 0\nv_bcnt_u32_b32 v{T+4+r}, v{T+4+r}, 0")
    for r in range(4): a(f"v_lshl_add_u32 v{T+r}, v{T+4+r}, 10, v{T+r}")
    for r in range(4): a(f"v_or_b32 v{T+r}, 0x200000, v{T+r}")
    for r in range(4): a(f"v_cndmask_b32 v{T+r}, 0, v{T+r}, s[{60+2*r}:{61+2*r}]")
    a(f"v_add3_u32 v{T}, v{T}, v{T+1}, v{T+2}\nv_add_u32 v{T}, v{T}, v{T+3}")
    a("s_andn2_b32 s8, s2, 4\ns_lshr_b32 s8, s8, 2")
    for r in range(4): a(f"v_readlane_b32 s{72+r}, v{60+r}, s8")
    waveall(a, T, T+1, "v_add_u32")
    a("s_bitcmp1_b32 s2, 0\ns_cselect_b32 s72, s73, s72\ns_cselect_b32 s74, s75, s74\ns_bitcmp1_b32 s2, 1\ns_cselect_b32 s72, s74, s72")
    a(f"v_readfirstlane_b32 s8, v{T}")
    if STAMP: a("v_writelane_b32 v208, s8, 15")
    a("s_lshr_b32 s73, s8, 20\ns_and_b32 s74, s8, 0x3ff\ns_bfe_u32 s75, s8, 0xa000a")
    a("s_bfe_u32 s9, s72, 0x10004\ns_lshl_b32 s9, s9, 2")
    a("s_cmp_gt_u32 s74, 256\ns_cselect_b32 s8, 1, 0\ns_or_b32 s9, s9, s8\ns_cmp_gt_u32 s75, 256\ns_cselect_b32 s8, 2, 0\ns_or_b32 s9, s9, s8")
    a("s_sub_u32 s8, s73, s74\ns_add_u32 s8, s8, 1\ns_max_u32 s74, s74, s8\ns_sub_u32 s8, s73, s75\ns_add_u32 s8, s8, 1\ns_max_u32 s75, s75, s8\ns_min_u32 s74, s74, s75")
    a(f"s_xor_b32 s72, s72, s{sTAG}\ns_cmp_lt_u32 s72, 64\ns_cselect_b32 s74, s74, 0\ns_cmp_gt_u32 s74, 256")

def classes(a):
    a("s_lshr_b32 s8, s9, 2\ns_xor_b32 s4, s4, s8")
    if not MIXED:
        a(f"s_lshr_b32 s8, s9, 1\ns_xor_b32 s8, s8, s4\ns_and_b32 s8, s8, 1\ns_lshl_b32 s8, s8, 13\ns_or_b32 s{sOV}, s83, s8")
        a(f"s_xor_b32 s{sXF}, s{sOK}, s{sOV}")
        a(f"s_xor_b32 s8, s9, s4\ns_and_b32 s8, s8, 1\ns_lshl_b32 s8, s8, 13\ns_or_b32 s{sOK}, s83, s8")
        a(f"s_xor_b32 s8, s{sOK}, s{sOV}\ns_lshl_b32 s8, s8, 1\ns_or_b32 s{sXF}, s{sXF}, s8")
    else:
        a(f"s_mov_b32 s{sOV}, s{sOK}\ns_mov_b32 s{sXF}, 0")

def tagbytes(a, R):
    for r in range(4): a(f"v_perm_b32 v{R+r}, v{R+r}, v{vSD+1}, s{72+r}")
def tagsel(a):
    for r in range(4): a(f"s_mov_b32 s{72+r}, {hex(0x07060500+r)}")
    a("s_mov_b32 s76, 0x0c0c0400\ns_mov_b32 s77, 0x04000c0c")
def tagbad(a, d, R, t):
    a(f"v_perm_b32 v{d}, v{R+1}, v{R}, s76\nv_perm_b32 v{t}, v{R+3}, v{R+2}, s77")
    a(f"v_or_b32 v{d}, v{d}, v{t}\nv_xor_b32 v{d}, v{d}, v{vSD+1}")

def v_body(a, refill, waits, grouped=True):
    def build(j):
        for r in range(4):
            a(f"v_and_b32_dpp v{AA+4*(j&1)+r}, v{vP}, v{MK+r} row_newbcast:{j} {FULL}")
    build(0)
    for j in range(16):
        a(f"s_waitcnt vmcnt({waits(j) - (j % GR if grouped else 0)})")
        A = AA+4*(j&1)
        a(f"v_mfma_f32_16x16x32_bf16 v[{ACC}:{ACC+3}], v[{A}:{A+3}], {ring(RA,j)}, v[{ACC}:{ACC+3}]")
        if j < 15: build(j+1)
        if j % GR == GR-1:
            for jj in range(j-GR+1, j+1): refill(jj)

def y_stores(a, D, srcfn):
    a(f"s_mov_b32 s8, s{sYA}")
    for blk in range(4):
        a(f"buffer_store_dwordx4 {srcfn(blk)}, v{vY3 if blk==3 else vY}, {SW}, s8 offen {PUBF}")
        if blk < 3: a(f"s_add_u32 s8, s8, {32*YS}")

def startup_bodies(a):
    X = 1 if K0 == 3 else 0
    W0 = "w0poll" in OPT
    if K0 == 3: a(f"buffer_load_dwordx4 v[60:63], v{11 if W0 else 17}, {SW}, s12 offen sc1")
    k_body(a, RA, lambda j: None if j < B2 else 32+X, lambda j: kvload(a, RA, j, SK))
    if "latd" not in OPT and "st0" not in OPT: stamp(a, 13)
    k_body(a, RB, lambda j: None if 16+j < B2 else 15-j+1+X+16, lambda j: None, False)
    if "latd" not in OPT and "st0" not in OPT: stamp(a, 14)
    if "vtouch" in OPT:
        a(f"v_mov_b32 v47, {hex(OOB)}\nv_lshlrev_b32 v46, 17, v1\nv_cmp_gt_u32 vcc, {opt('VT', 1)}, v1\nv_cndmask_b32 v47, v47, v46, vcc\nbuffer_load_dword v46, v47, {SV}, s83 offen nt")
    if K0 == 3:
        a(f"s_mov_b32 s96, {SPIN}\nv_mov_b32 v40, 0")
        if W0: a("s_cmp_lg_u32 s3, 0\ns_cbranch_scc1 vt_wait")
        a(f"s_waitcnt vmcnt({17 if 'vtouch' in OPT else 16})")
        a("vt_chk:")
        tally(a, 32)
        a("s_cbranch_scc0 vt_spin")
        a("vt_ok:")
        if W0:
            a(f"s_or_b32 s8, s9, 8\nv_mov_b32 v41, s8\nds_write_b32 v40, v41 offset:{L_V+4}\ns_branch vt_have")
            a(f"vt_wait:\nds_read_b32 v41, v40 offset:{L_V+4}\ns_waitcnt lgkmcnt(0)\nv_readfirstlane_b32 s9, v41")
            a("s_bitcmp1_b32 s9, 3\ns_cbranch_scc1 vt_got\ns_sleep 1\ns_sub_u32 s96, s96, 1\ns_cmp_lg_u32 s96, 0\ns_cbranch_scc1 vt_wait")
            a("vt_got:\ns_and_b32 s9, s9, 7\nvt_have:")
        classes(a)

def kernel():
    a = Asm(); K = NAME + "_kernel"
    a(f".globl {K}\n.p2align 8\n.type {K},@function\n{K}:")
    a("s_cmp_ge_u32 s2, 256\ns_cbranch_scc1 main_done")
    stamp(a, 0)
    a("s_load_dwordx16 s[16:31], s[0:1], 0\ns_load_dwordx8 s[32:39], s[0:1], 64\ns_memtime s[100:101]")
    a("v_lshrrev_b32 v1, 6, v0\nv_readfirstlane_b32 s3, v1\nv_and_b32 v1, 63, v0")
    if "ipf" in OPT:
        a("s_getpc_b64 s[98:99]\nipf_pc:\ns_lshr_b32 s5, s2, 3\ns_lshl_b32 s5, s5, 10\ns_min_u32 s5, s5, code_end-ipf_pc-1024\nv_lshl_add_u32 v63, v1, 4, s5")
        a("s_cmp_lg_u32 s3, 3\ns_cbranch_scc1 noipf\nglobal_load_dwordx4 v[28:31], v63, s[98:99]\nnoipf:")
    a("s_lshr_b32 s5, s2, 4\ns_and_b32 s6, s2, 15")
    a("v_lshlrev_b32 v17, 4, v1")
    a("v_lshrrev_b32 v18, 3, v1\nv_and_b32 v14, 7, v1\nv_lshlrev_b32 v14, 4, v14\nv_lshl_add_u32 v19, v18, 13, v14")
    a("v_mul_u32_u24 v47, 3584, v18\nv_add_u32 v47, v47, v14")
    a(f"v_mov_b32 v15, {hex(OOB)}\nv_cmp_gt_u32 vcc, 32, v1\nv_cndmask_b32 v14, v15, v19, vcc")
    a("v_cmp_gt_u32 vcc, 48, v1\nv_cndmask_b32 v16, v15, v47, vcc")
    if "noffn" in OPT: a("v_mov_b32 v47, v15\nv_mov_b32 v16, v15")
    if "nowq" in OPT: a("v_mov_b32 v19, v15\nv_mov_b32 v14, v15")
    a("v_lshlrev_b32 v18, 1, v18")
    a(f"v_and_b32 v{vLO}, 31, v1\nv_lshlrev_b32 v{vLO}, 4, v{vLO}\nv_lshrrev_b32 v{vHI}, 5, v1\nv_lshlrev_b32 v{vHI}, 15, v{vHI}\nv_add_u32 v{vLO}, v{vLO}, v{vHI}\nv_add_u32 v{vHI}, 0x10000, v{vLO}")
    a("s_bfe_u32 s7, s2, 0x20002\ns_mul_i32 s8, s7, 112\ns_mul_i32 s9, s3, 28\ns_add_u32 s8, s8, s9\ns_lshl_b32 s9, s8, 1")
    a("s_lshl_b32 s8, s8, 13\ns_lshl_b32 s10, s5, 9\ns_add_u32 s8, s8, s10\ns_and_b32 s10, s2, 3\ns_lshl_b32 s10, s10, 7\ns_add_u32 s8, s8, s10")
    a("s_lshr_b32 s11, s2, 3\ns_and_b32 s13, s2, 7")
    a(f"s_mul_i32 s12, s13, 56\ns_mul_i32 s14, s3, 14\ns_add_u32 s12, s12, s14\ns_mul_i32 s14, s12, 3584\ns_lshl_b32 s12, s12, 1\ns_lshl_b32 s15, s11, 7\ns_add_u32 s14, s14, s15")
    a("s_lshl_b32 s83, s11, 23\ns_and_b32 s10, s3, 1\ns_lshl_b32 s10, s10, 22\ns_or_b32 s83, s83, s10\ns_lshr_b32 s4, s3, 1\ns_lshl_b32 s10, s4, 21\ns_or_b32 s83, s83, s10")
    a("s_lshr_b32 s10, s2, 1\ns_lshr_b32 s15, s2, 7\ns_xor_b32 s10, s10, s15\ns_andn2_b32 s10, 1, s10\ns_lshl_b32 s10, s10, 12\ns_or_b32 s83, s83, s10")
    a("s_lshr_b32 s10, s2, 6\ns_xor_b32 s10, s10, s2\ns_and_b32 s10, s10, 1\ns_lshl_b32 s10, s10, 14\ns_or_b32 s83, s83, s10")
    a(f"s_bfe_u32 s10, s2, 0x10002\ns_xor_b32 s4, s4, s10")
    if "pfxwg" in OPT: a("s_xor_b32 s10, s4, s11\ns_and_b32 s10, s10, 1")
    if "pfxx" in OPT: a("s_xor_b32 s10, s4, s2\ns_and_b32 s10, s10, 1")
    a(f"s_lshl_b32 s10, s10, 13\ns_or_b32 s{sOK}, s83, s10")
    a("s_lshl_b32 s74, s11, 23\ns_and_b32 s75, s2, 3\ns_lshl_b32 s75, s75, 21\ns_or_b32 s74, s74, s75")
    a("s_bfe_u32 s75, s2, 0x10002\ns_lshl_b32 s75, s75, 11\ns_or_b32 s74, s74, s75\ns_or_b32 s74, s74, 0x40000")
    a("s_and_b32 s76, s3, 1\ns_lshl_b32 s75, s76, 13\ns_or_b32 s74, s74, s75")
    a("s_getreg_b32 s79, hwreg(HW_REG_XCC_ID)\ns_bfe_u32 s79, s79, 0x10002")
    a("s_xor_b32 s76, s76, s79\ns_xor_b32 s76, s76, s2\ns_and_b32 s76, s76, 1")
    a(f"s_mov_b32 s10, {EPO}\ns_cmp_lt_u32 s3, 2")
    sb_const(a, sOK, 0)
    if "st0" in OPT: a("s_memrealtime s[96:97]")
    a("s_waitcnt lgkmcnt(0)")
    if "st0" in OPT:
        a("v_writelane_b32 v208, s96, 13"); stamp(a, 14)
    a("s_cselect_b32 s72, s18, s20\ns_cselect_b32 s73, s19, s21")
    if "stlb" in OPT:
        a("s_load_dword s26, s[18:19], s83\ns_load_dword s27, s[22:23], s8\ns_load_dword s98, s[28:29], s14\ns_load_dword s99, s[30:31], s14")
    if "stlb2" in OPT:
        a("s_load_dword s26, s[18:19], s83\ns_load_dword s27, s[22:23], s8")
    a(f"s_lshr_b32 s100, s100, 3\ns_mul_i32 s100, s100, 0x9e3779b1\ns_lshr_b32 s100, s100, 8\ns_and_b32 s100, s100, {0 if 'pglc' in OPT else 0x1bd780}\ns_or_b32 s74, s74, s100\ns_xor_b32 s75, s74, {hex(opt('WX', 0x400))}")
    a(f"s_load_dword s78, s[72:73], s75 {PGL}")
    a(f"s_load_dword s{sTAG}, s[38:39], s10")
    srd(a, 40, 18, 1 << 28); srd(a, 52, 16, 896); srd(a, 56, 22, 448*8192)
    B0 = opt("B0", 0)
    for i in range(B0): kvload(a, RA, i, SK)
    a("buffer_load_dwordx4 v[60:63], v17, s[52:55], 0 offen")
    for n in range(4):
        a(f"buffer_load_ushort v{40+n}, v18, s[52:55], s9 offen offset:{16*n}")
    for n in range(4):
        a(f"buffer_load_dwordx4 v[{160+4*n}:{163+4*n}], v{19 if n<3 else 14}, s[56:59], s8 offen nt")
        if n < 3: a(f"s_add_u32 s8, s8, {8*8192}")
    def kpre(lo, hi):
        for i in range(lo, hi):
            if i == 16: sb_const(a, sOK, 1)
            if LATE and i == LATE: a(f"buffer_load_dwordx4 v[60:63], v17, {SW}, s12 offen sc1")
            kvload(a, RA if i < 16 else RB, i % 16, SK)
    a("s_barrier")
    kpre(B0, B1)
    srd(a, 60, 28, 448*3584); srd(a, 64, 30, 448*3584); srd(a, 68, 32, 1792*896)
    srd(a, 44, 20, 1 << 28); srd(a, 48, 38, WSSZ)
    stamp(a, 1)
    a(f"s_lshl_b32 s8, s5, 13\ns_add_u32 s8, s8, {QP}\ns_lshl_b32 s9, s3, 9\ns_add_u32 s15, s8, s9")
    a("s_lshl_b32 s9, s7, 11\ns_add_u32 s8, s8, s9\ns_and_b32 s9, s2, 3\ns_lshl_b32 s9, s9, 9\ns_add_u32 s7, s8, s9")
    a(f"v_and_b32 v13, 7, v1\nv_and_b32 v10, 56, v1\nv_lshl_add_u32 v11, v13, 6, v10\nv_lshl_add_u32 v46, v13, 10, v10")
    a(f"v_mul_u32_u24 v{vRP}, {VSTR}, v1\nv_cmp_gt_u32 vcc, {NREP}, v1\nv_cndmask_b32 v{vRP}, v15, v{vRP}, vcc")
    a(f"s_cmp_eq_u32 s3, 0\ns_cselect_b64 vcc, -1, 0\nv_cndmask_b32 v{vSC}, v15, v11, vcc")
    a(f"v_mov_b32 v12, 0\nv_mov_b32 v13, 0\nds_write_b64 v12, v[12:13] offset:{L_V}")
    a(f"s_waitcnt vmcnt({B1-B0+8})\nv_readfirstlane_b32 s77, v60\ns_lshl_b32 s77, s77, 16")
    vM, vS, vR = 20, 21, 22
    ln_stats2(a, 60, 32, vM, vS, vR, 12, 13, 11, 23, 77)
    a(f"s_waitcnt vmcnt({B1-B0+4})")
    center_rows(a, [40, 41, 42, 43], vM)
    scale_rows(a, [40, 41, 42, 43], [24, 25, 26, 27], vS, vR)
    a(f"s_waitcnt vmcnt({B1-B0})")
    stamp(a, 8)
    for n in range(4): gemv8(a, 32, 160+4*n, 24+n, 40+n, n == 0)
    red8(a, 32)
    a(f"v_lshlrev_b32 v12, 2, v0\nds_write_b32 v12, v32 offset:{L_P}\nv_lshlrev_b32 v12, 2, v1")
    a(f"s_waitcnt lgkmcnt(0)\ns_barrier")
    a(f"ds_read2st64_b32 v[32:33], v12 offset0:{L_P//256} offset1:{L_P//256+1}\nds_read2st64_b32 v[34:35], v12 offset0:{L_P//256+2} offset1:{L_P//256+3}")
    a(f"s_add_u32 s{sTAG}, s{sTAG}, 0x9e3779b9\nv_mov_b32 v{vSD+1}, s{sTAG}")
    a(f"s_waitcnt lgkmcnt(0)\nv_add_f32 v32, v32, v33\nv_add_f32 v34, v34, v35\nv_add_f32 v{vSD}, v32, v34")
    a(f"buffer_store_dwordx2 v[{vSD}:{vSD+1}], v{vSC}, {SW}, s7 offen sc1")
    stamp(a, 9)
    for n in range(2):
        a(f"buffer_load_ushort v{44+n}, v18, s[52:55], s12 offen offset:{16*n}")
    for n in range(2):
        a(f"buffer_load_dwordx4 v[{176+4*n}:{179+4*n}], v{47 if n==0 else 16}, s[60:63], s14 offen nt")
        a(f"buffer_load_dwordx4 v[{184+4*n}:{187+4*n}], v{47 if n==0 else 16}, s[64:67], s14 offen nt")
        if n == 0: a(f"s_add_u32 s14, s14, {8*3584}")
    BA, BB = opt("BA", 4), opt("BB", 0)
    kpre(B1, B2-BA-BB)
    if "latew" in OPT: a("s_xor_b32 s75, s75, 0x200\ns_load_dword s78, s[72:73], s75\ns_waitcnt lgkmcnt(0)")
    for i in range(2):
        a("s_memtime s[100:101]\ns_waitcnt lgkmcnt(0)")
        a(f"s_load_dword s78, s[72:73], s74 {PGL}\ns_waitcnt lgkmcnt(0)\ns_memtime s[96:97]\ns_waitcnt lgkmcnt(0)")
        a(f"s_sub_u32 s{8+i}, s96, s100")
        if i == 0:
            a("s_xor_b32 s74, s74, 0x2000"); kpre(B2-BA-BB, B2-BB)
    if "latd" in OPT: a("s_lshl_b32 s10, s76, 31\ns_or_b32 s10, s10, s8\nv_writelane_b32 v208, s10, 13\nv_writelane_b32 v208, s9, 14")
    a("s_sub_i32 s8, s8, s9\ns_sub_i32 s9, 0, s8\ns_cmp_eq_u32 s76, 0\ns_cselect_b32 s8, s8, s9")
    a("s_max_i32 s8, s8, -2047\ns_min_i32 s8, s8, 2047\ns_add_i32 s8, s8, 2048\ns_lshr_b32 s9, s3, 1\ns_mul_i32 s9, s9, 13\ns_lshl_b32 s8, s8, s9")
    a(f"s_or_b32 s8, s8, 0x20000000\nv_mov_b32 v12, s8\nv_mov_b32 v13, 0\ns_mov_b64 exec, 1\nds_add_rtn_u32 v13, v13, v12 offset:{L_V}\ns_mov_b64 exec, -1")
    a(f"s_lshl_b32 s10, s79, 4\ns_andn2_b32 s9, s{sTAG}, 63\ns_or_b32 s10, s10, s9\ns_lshl_b32 s9, s2, 2\ns_add_u32 s9, s9, {VOTE}")
    a("s_waitcnt lgkmcnt(0)\nv_readfirstlane_b32 s72, v13\ns_add_u32 s72, s72, s8\ns_bitcmp0_b32 s72, 31\ns_cbranch_scc1 novote")
    a("s_and_b32 s73, s72, 0x1fff\ns_cmp_gt_u32 s73, 4096\ns_cselect_b32 s73, 3, 0\ns_or_b32 s10, s10, s73")
    a("s_bfe_u32 s73, s72, 0xd000d\ns_cmp_gt_u32 s73, 4096\ns_cselect_b32 s73, 12, 0\ns_or_b32 s10, s10, s73")
    a(f"v_mov_b32 v12, s10\nbuffer_store_dword v12, v{vRP}, {SW}, s9 offen sc1")
    a("novote:")
    kpre(B2-BB, B2)
    def gather():
        if "cnt" in OPT: a("s_add_u32 s77, s77, 1\nv_writelane_b32 v208, s77, 1")
        for rb in range(4):
            if rb == 2: a("s_add_u32 s9, s15, 4096")
            a(f"buffer_load_dwordx2 v[{32+2*rb}:{33+2*rb}], v18, {SW}, s{15 if rb<2 else 9} offen offset:{2048*(rb&1)} sc1")
        if K0 == 2: a(f"buffer_load_dwordx4 v[60:63], v47, {SW}, s12 offen sc1")
    if "cnt" in OPT: a("s_mov_b32 s77, 0")
    EG = "lateg" not in OPT
    if EG:
        a("v_lshlrev_b32 v18, 3, v1"); gather(); kpre(B2, B3)
    a(f"s_lshl_b32 s9, s3, 10\ns_add_u32 s9, s9, {L_S}\nv_and_b32 v{vSW}, 15, v1\nv_lshl_add_u32 v{vSW}, v{vSW}, 2, s9\nv_lshl_add_u32 v{vSB}, v1, 2, s9")
    a(f"s_lshl_b32 s{sXO}, s2, 2\ns_add_u32 s{sXO}, s{sXO}, s3\ns_xor_b32 s{sXI}, s{sXO}, 16")
    a(f"v_cmp_gt_u32 vcc, 32, v1\nv_cndmask_b32 v{vSH}, 0, 16, vcc")
    a("s_mov_b32 s84, 0xcccccccc\ns_mov_b32 s85, 0xcccccccc\ns_mov_b32 s86, 0xaaaaaaaa\ns_mov_b32 s87, 0xaaaaaaaa")
    a(f"s_mov_b32 s88, {fl(CEXP)}")
    a(f"v_lshrrev_b32 v{vPO}, 5, v1\nv_lshlrev_b32 v{vPO}, {13+MLF}, v{vPO}\nv_bfe_u32 v12, v1, 1, 3\nv_lshlrev_b32 v12, {10+MLF}, v12\nv_add_u32 v{vPO}, v{vPO}, v12")
    a(f"v_and_b32 v12, 1, v1\nv_lshlrev_b32 v12, 5, v12\nv_add_u32 v{vPO}, v{vPO}, v12\nv_and_b32 v12, 16, v1\nv_add_u32 v{vPO}, v{vPO}, v12")
    if MLF: a(f"v_lshlrev_b32 v12, 11, v1\nv_cmp_gt_u32 vcc, 16, v1\nv_cndmask_b32 v{vPM}, v15, v12, vcc")
    else: a(f"v_cmp_eq_u32 vcc, 0, v1\nv_cndmask_b32 v{vPM}, v15, v1, vcc")
    yaddr(a, vY, vY3, 1, 12, 13, YS)
    a(f"s_lshl_b32 s{sPO}, s5, {14+MLF}\ns_lshl_b32 s10, s6, {6+MLF}\ns_add_u32 s{sPO}, s{sPO}, s10\ns_add_u32 s{sPO}, s{sPO}, {OIN}")
    a(f"s_lshl_b32 s{sPM}, s2, 4\ns_add_u32 s{sPM}, s{sPM}, {ML}\ns_lshl_b32 s{sYA}, s2, 4\ns_add_u32 s{sYA}, s{sYA}, {YA}")
    if "ytr" in OPT: a(f"s_lshl_b32 s{sYA}, s6, 4\ns_add_u32 s{sYA}, s{sYA}, s5\ns_lshl_b32 s{sYA}, s{sYA}, 4\ns_add_u32 s{sYA}, s{sYA}, {YA}")
    if "ytr2" in OPT: a(f"s_and_b32 s10, s2, 3\ns_lshl_b32 s10, s10, 6\ns_bfe_u32 s{sYA}, s2, 0x20002\ns_add_u32 s10, s10, s{sYA}\ns_lshl_b32 s{sYA}, s5, 2\ns_add_u32 s{sYA}, s{sYA}, s10\ns_lshl_b32 s{sYA}, s{sYA}, 4\ns_add_u32 s{sYA}, s{sYA}, {YA}")
    if MLF: a(f"s_add_u32 s{sPM}, s{sPO}, 64")
    a("s_cmp_eq_u32 s3, 0\ns_cselect_b64 vcc, -1, 0")
    for r in (vPO, vPM, vY, vY3): a(f"v_cndmask_b32 v{r}, v15, v{r}, vcc")
    a(f"s_lshl_b32 s14, s11, 13\ns_lshl_b32 s10, s13, 6\ns_add_u32 s14, s14, s10\ns_lshl_b32 s10, s3, 9\ns_add_u32 s14, s14, s10\ns_add_u32 s14, s14, {GU-512}")
    a(f"s_cmp_lt_u32 s11, 28\ns_cselect_b32 s10, 0, {hex(OOB)}\ns_add_u32 s9, s3, 3\ns_bitcmp1_b32 s9, 1\ns_cselect_b32 s10, {hex(OOB)}, s10\nv_or_b32 v46, s10, v46")
    a(f"s_and_b32 s12, s11, {NREP-1}\ns_mul_i32 s12, s12, {VSTR}\ns_add_u32 s12, s12, {VOTE}\nv_lshlrev_b32 v17, 4, v1\nv_lshlrev_b32 v18, 3, v1")
    a("s_cmp_eq_u32 s3, 0\ns_cselect_b64 vcc, -1, 0\ns_cselect_b32 s77, -64, 0\nv_cndmask_b32 v47, v15, v17, vcc\nv_mov_b32 v11, v47")
    a(f"s_waitcnt vmcnt({B2-B1+4 + (4+B3-B2 if EG else 0)})")
    center_rows(a, [44, 45], vM)
    scale_rows(a, [44, 45], [12, 13], vS, vR)
    a(f"s_waitcnt vmcnt({B2-B1 + (4+B3-B2 if EG else 0)})")
    aG, aU = 24, 192
    for n in range(2):
        gemv8(a, aG, 176+4*n, 12+n, 44+n, n == 0)
        gemv8(a, aU, 184+4*n, 12+n, 44+n, n == 0)
    stamp(a, 10)
    chk_n = [0]
    def check(ok):
        chk_n[0] += 1; n = chk_n[0]
        if K0 == 2:
            a(f"s_cmp_lg_u32 s3, 0\ns_cbranch_scc1 chk_q{n}")
            tally(a, 24)
            a(f"s_cbranch_scc0 chk_no{n}")
            a(f"chk_q{n}:")
        a(f"v_xor_b32 v40, s{sTAG}, v33\nv_xor_b32 v41, s{sTAG}, v35\nv_xor_b32 v42, s{sTAG}, v37\nv_xor_b32 v43, s{sTAG}, v39")
        a("v_or3_b32 v40, v40, v41, v42\nv_or_b32 v40, v40, v43")
        a(f"v_cmp_ne_u32 vcc, 0, v40\ns_cbranch_vccz {ok}")
        a(f"chk_no{n}:")
    if not EG: gather(); kpre(B2, B3)
    red8(a, aG); red8(a, aU)
    a(f"v_lshlrev_b32 v12, 2, v0\nds_write_b32 v12, v{aG} offset:{L_P+1024}\nds_write_b32 v12, v{aU} offset:{L_P+2048}")
    mask1(a, MK, 1, vT0, vT1)
    a(f"s_waitcnt vmcnt({B3-B2})")
    a("s_mov_b32 s78, 0")
    check("g_ok3")
    a("s_mov_b32 s78, 1")
    gather(); kpre(B3, B4)
    a(f"s_waitcnt vmcnt({B4-B3})")
    check("g_ok3")
    a("s_mov_b32 s78, 2")
    gather(); kpre(B4, 32)
    a(f"s_mov_b32 s96, {SPIN}\ns_waitcnt vmcnt({32-B4+(1 if LATE else 0)})")
    a("g_spin:")
    check("g_ok3")
    a("s_sub_u32 s96, s96, 1\ns_cmp_eq_u32 s96, 0\ns_cbranch_scc1 g_ok3\ns_sleep 8")
    gather()
    a("s_waitcnt vmcnt(0)\ns_branch g_spin")
    a("g_ok3:")
    stamp(a, 11)
    a("v_add_f32 v32, v32, v34\nv_add_f32 v36, v36, v38\nv_add_f32 v32, v32, v36")
    a("v_cvt_pk_bf16_f32 v32, v32, v32\nv_lshlrev_b32 v33, 1, v0\nds_write_b16 v33, v32")
    a("v_and_b32 v34, 31, v1\nv_lshlrev_b32 v34, 4, v34")
    a("s_max_u32 s8, s3, 1\ns_min_u32 s8, s8, 2\ns_lshl_b32 s8, s8, 10\nv_lshl_add_u32 v35, v1, 2, s8")
    if K0 == 2:
        a(f"v_mov_b32 v37, 0\ns_cmp_lg_u32 s3, 0\ns_cbranch_scc1 notally\nv_mov_b32 v36, s9\nds_write_b32 v37, v36 offset:{L_V+4}\nnotally:")
    a(f"s_waitcnt lgkmcnt(0)\ns_barrier")
    if K0 == 2: a(f"ds_read_b32 v36, v37 offset:{L_V+4}")
    a(f"ds_read_b128 v[{vQ}:{vQ+3}], v34")
    a(f"ds_read2st64_b32 v[40:41], v35 offset0:{L_P//256} offset1:{L_P//256+1}\nds_read2st64_b32 v[42:43], v35 offset0:{L_P//256+2} offset1:{L_P//256+3}")
    if K0 == 2:
        a("s_waitcnt lgkmcnt(3)\nv_readfirstlane_b32 s9, v36")
        classes(a)
    a("s_cmp_eq_u32 s78, 2\ns_cbranch_scc1 g_p2\ns_cmp_eq_u32 s78, 1\ns_cbranch_scc1 g_p1")
    kpre(B3, B4)
    a("g_p1:"); kpre(B4, 32)
    a("g_p2:")
    a(f"s_waitcnt lgkmcnt(0)\nv_add_f32 v40, v40, v41\nv_add_f32 v42, v42, v43\nv_add_f32 v{vSD}, v40, v42")
    a(f"buffer_store_dwordx2 v[{vSD}:{vSD+1}], v46, {SW}, s14 offen sc1")
    a(f"v_mov_b32 v{vMX}, 0xff800000\nv_mov_b32 v{vLS}, 0")
    for r in range(4): a(f"v_mov_b32 v{ACC+r}, 0")
    stamp(a, 2)
    if LATE:
        assert B2 >= 16 and LATE >= B4
        k_body(a, RA, lambda j: None, lambda j: None)
        if "latd" not in OPT and "st0" not in OPT: stamp(a, 13)
        a(f"s_mov_b32 s96, {SPIN}\ns_waitcnt vmcnt({32-LATE+1})")
        a("vt_chk:")
        tally(a, 32)
        a("s_cbranch_scc0 vt_spin")
        a("vt_ok:")
        classes(a)
        sb_const(a, sOK, 2)
        for j in range(16): kvload(a, RA, j, SK)
        k_body(a, RB, lambda j: None if 16+j < LATE else 15-j+1+16, lambda j: None, False)
        if "latd" not in OPT and "st0" not in OPT: stamp(a, 14)
    else:
      sb_const(a, sOK, 2)
      startup_bodies(a)
    a(f"s_mov_b32 s{sK}, 3")
    a("k_loop:")
    sb_off(a, sOK, sK)
    k_body(a, RA, lambda j: 15, lambda j: kvload(a, RA, j, SK))
    if STAMP:
        a(f"s_cmp_lg_u32 s{sK}, 3\ns_cbranch_scc1 k_st"); stamp(a, 12); a("k_st:")
    a(f"s_cmp_lg_u32 s{sK}, 4\ns_cbranch_scc1 k_next\ns_cmp_eq_u32 s{sXF}, 0\ns_cbranch_scc1 k_next")
    a(f"s_waitcnt lgkmcnt(0)\nds_read_b32 v{vSD}, v{vSB}\ns_lshl_b32 s8, s{sXO}, 9\ns_waitcnt lgkmcnt(0)")
    a(f"buffer_store_dwordx2 v[{vSD}:{vSD+1}], v18, {SW}, s8 offen sc1")
    a("k_next:")
    a(f"s_add_u32 s{sK}, s{sK}, 1\ns_cmp_lt_u32 s{sK}, 16\ns_cbranch_scc1 k_loop")
    a(f"s_mov_b32 s{sO}, s{sOV}")
    a(f"s_cmp_eq_u32 s{sXF}, 0\ns_cbranch_scc1 t_nop1")
    xp_load(a)
    a("t_nop1:")
    k_body(a, RA, lambda j: 15, lambda j: kvload(a, RA, j, SV))
    a(f"v_subrev_u32 v{vSW}, 1024, v{vSW}")
    a(f"s_bitcmp0_b32 s{sXF}, 14\ns_cbranch_scc1 t_nor")
    a(f"s_waitcnt lgkmcnt(0)\nds_read2st64_b32 v[24:25], v{vSB} offset0:1 offset1:2\nds_read_b32 v26, v{vSB} offset:768\nv_mov_b32 v27, s{sTAG}")
    a(f"s_lshl_b32 s8, s{sXO}, 10\ns_add_u32 s8, s8, {XR}\ns_waitcnt lgkmcnt(0)")
    a(f"buffer_store_dwordx4 v[24:27], v17, {SW}, s8 offen sc1")
    a("t_nor:")
    a(f"s_cmp_eq_u32 s{sXF}, 0\ns_cbranch_scc1 t_nop2")
    a("s_waitcnt vmcnt(16)")
    x_check(a, "p", 61, xp_load)
    pm = (1 << (16*(2 if LATE else K0))) - 1
    a(f"s_mov_b32 s8, {hex(pm & 0xffffffff)}\ns_mov_b32 s9, {hex(pm >> 32)}\ns_bitcmp1_b32 s{sXF}, 13\ns_cselect_b64 s[10:11], s[8:9], 0")
    a(f"s_not_b64 s[8:9], s[8:9]\ns_bitcmp1_b32 s{sXF}, 14\ns_cselect_b64 s[8:9], s[8:9], 0\ns_or_b64 exec, s[8:9], s[10:11]")
    a(f"ds_write_b32 v{vSB}, v60\ns_mov_b64 exec, -1")
    a("t_nop2:")
    a(f"s_mov_b32 s{sK}, 1")
    stamp(a, 3)
    a("v_loop:")
    sb_off(a, sOV, sK)
    a(f"s_bitcmp0_b32 s{sXF}, 14\ns_cbranch_scc1 v_go\ns_cmp_eq_u32 s{sK}, 4\ns_cbranch_scc1 v_xr1\ns_cmp_eq_u32 s{sK}, 5\ns_cbranch_scc1 v_xr2")
    a("v_go:")
    if HELP:
        a(f"s_cmp_lt_u32 s{sK}, {KP}\ns_cbranch_scc1 v_go2")
        a(f"s_cmp_lg_u32 s{sK}, {KP}\ns_cbranch_scc1 v_go1")
        a(f"v_mov_b32 v63, {hex(OOB)}\nv_cmp_eq_u32 vcc, 0, v1\nv_cndmask_b32 v63, v63, v1, vcc")
        a(f"s_and_b32 s13, s2, 7\ns_lshl_b32 s13, s13, 10\ns_lshr_b32 s8, s2, 3\ns_lshl_b32 s8, s8, 4\ns_add_u32 s13, s13, s8\ns_lshl_b32 s8, s3, 2\ns_add_u32 s13, s13, s8\ns_add_u32 s13, s13, {PRG}")
        a("v_go1:")
        v_head(a, None)
        progress(a, f"s{sK}")
        a("s_branch v_go3")
        a("v_go2:")
    v_head(a, None)
    a("v_go3:")
    v_body(a, lambda j: kvload(a, RA, j, SV), lambda j: 15)
    a(f"s_add_u32 s{sK}, s{sK}, 1\ns_cmp_lt_u32 s{sK}, 16\ns_cbranch_scc1 v_loop")
    tagsel(a)
    a("s_cmp_eq_u32 s3, 0\ns_cbranch_scc1 v_last0")
    v_head(a, None); ml_out(a)
    v_body(a, lambda j: None, lambda j: 15-j, False)
    a("s_branch v_end")
    a("v_last0:")
    srd(a, 52, 24, 4096*896)
    a("v_lshrrev_b32 v46, 4, v1\nv_mul_u32_u24 v19, 1792, v46\nv_and_b32 v18, 15, v1\nv_lshlrev_b32 v18, 4, v18\nv_lshl_add_u32 v46, v19, 1, v18\nv_add_u32 v19, v19, v18")
    a("v_and_b32 v18, 7, v1\nv_lshlrev_b32 v18, 6, v18\nv_and_b32 v47, 56, v1\nv_add_u32 v18, v18, v47")
    a(f"s_mul_i32 s10, s2, {16*896}\ns_min_u32 s14, s2, 223\ns_mul_i32 s14, s14, {8*896}\ns_lshl_b32 s12, s2, 10\ns_add_u32 s12, s12, {GU}")
    def wd():
        if "ttouch" in OPT:
            a(f"v_mov_b32 v47, {hex(OOB)}\nv_mul_u32_u24 v45, {opt('TT', 16384)}, v1\nv_cmp_gt_u32 vcc, {(112*YS)//opt('TT', 16384)+1}, v1\nv_cndmask_b32 v47, v47, v45, vcc\ns_mov_b32 s8, {YA}\nbuffer_load_dword v45, v47, {SW}, s8 offen sc1")
        gu_load(a)
        for i in range(8):
            a(f"buffer_load_dwordx4 {ring(RB,i)}, v19, s[68:71], s14 offen offset:{(i//4)*896+(i%4)*256} nt")
    v_head(a, wd); ml_out(a)
    v_body(a, lambda j: a(f"buffer_load_dwordx4 {ring(RA,j)}, v46, s[52:55], s10 offen offset:{(j//4)*896+(j%4)*256} nt"), lambda j: 25 + ("ttouch" in OPT))
    a("v_end:")
    stamp(a, 4)
    progress(a, "17")
    a(f"ds_write_b128 v{vT1}, v[{ACC}:{ACC+3}] offset:{L_O}")
    a("s_waitcnt lgkmcnt(0)\ns_barrier")
    a("s_cmp_eq_u32 s3, 0\ns_cbranch_scc1 tail0")
    hl = "h_go" if HELP else "main_fin"
    if "redw1" in OPT:
        a(f"s_cmp_lg_u32 s3, 1\ns_cbranch_scc1 {hl}\ns_cmp_ge_u32 s2, 112\ns_cbranch_scc1 {hl}")
        reducer_pre(a); reducer(a)
    a("s_branch main_fin")
    if HELP:
        a("h_go:"); helper(a); a("s_branch main_fin")
    a("tail0:")
    tail0(a)
    if "redw1" not in OPT:
        stamp(a, 8)
        a("s_cmp_ge_u32 s2, 112\ns_cbranch_scc1 main_fin")
        reducer(a)
    a("main_fin:")
    stamp(a, 7); stamp_out(a)
    a("main_done:\ns_endpgm")
    a("v_xr1:"); xr_load(a); a("s_branch v_go")
    a("v_xr2:\ns_waitcnt vmcnt(16)")
    x_check(a, "r", 63, xr_load)
    a(f"ds_write2st64_b32 v{vSB}, v60, v61 offset0:1 offset1:2\nds_write_b32 v{vSB}, v62 offset:768\ns_branch v_go")
    if K0 == 3 or LATE:
        a("vt_spin:\ns_sub_u32 s96, s96, 1\ns_cmp_eq_u32 s96, 0\ns_cbranch_scc1 vt_ok\ns_sleep 8")
        a(f"buffer_load_dwordx4 v[60:63], v17, {SW}, s12 offen sc1\ns_waitcnt vmcnt(0)\ns_branch vt_chk")
    return a.text(), kd(K, 216 if STAMP else 200, 102)

def ml_out(a):
    progress(a, "16")
    rowall(a, [vLS]); B32(a, vLS, vT0)
    a(f"s_lshl_b32 s8, s3, 2\nv_mov_b32 v{vT2}, s8\nds_write_b32 v{vT2}, v{vMX} offset:{L_M}\nds_write_b32 v{vT2}, v{vLS} offset:{L_L}")
    a(f"v_lshlrev_b32 v{vT1}, 4, v0\nv_mov_b32 v{vT2}, 0")

def gu_load(a):
    a(f"buffer_load_dwordx2 v[42:43], v18, {SW}, s12 offen sc1\nbuffer_load_dwordx2 v[32:33], v18, {SW}, s12 offen offset:512 sc1")

def red4(a, R):
    multiT(a, "v_permlane32_swap_b32", [(R, R+2), (R+1, R+3)])
    T16(a, R, R+1)
    rowall(a, [R])

def reducer_pre(a):
    srd(a, 52, 16, 896); srd(a, 56, 34, 896)
    a(f"v_mov_b32 v18, {hex(OOB)}\nv_lshlrev_b32 v17, 4, v1")
    a(f"s_mul_i32 s11, s2, {YS}\ns_add_u32 s11, s11, {YA}\ns_min_u32 s13, s2, 111\ns_lshl_b32 s13, s13, 3")
    a("v_lshrrev_b32 v2, 4, v1\nv_lshlrev_b32 v2, 1, v2\nv_and_b32 v3, 15, v1\nv_cmp_eq_u32 vcc, 0, v3\nv_cndmask_b32 v3, v18, v2, vcc")
    a("buffer_load_ushort v4, v2, s[52:55], s13 offen")
    for n in range(4): a(f"v_mov_b32 v{10+n}, v17\ns_mov_b64 s[{60+2*n}:{61+2*n}], -1")

def reducer(a):
    NS = opt("RN", 1)
    def sweep(k):
        for n in range(4):
            R = 80+16*k+4*n
            a(f"buffer_load_dwordx4 v[{R}:{R+3}], v{10+n}, {SW}, s11 offen offset:{1024*n} sc1")
    for k in range(NS):
        sweep(k)
        if k < NS-1: a(f"s_sleep {opt('RG', 6)//NS*1}")
    a(f"s_mov_b32 s96, {SPIN}")
    a("red_spin:")
    for k in range(NS):
        a(f"s_waitcnt vmcnt({4*(NS-1)})")
        for n in range(4):
            R = 80+16*k+4*n
            a(f"s_mov_b64 exec, s[{60+2*n}:{61+2*n}]\ns_cbranch_execz red_skip{k}_{n}")
            tagbad(a, 40, R, 41)
            a(f"v_cmp_eq_u32 vcc, 0, v40\ns_andn2_b64 s[{60+2*n}:{61+2*n}], exec, vcc\ns_and_b64 exec, exec, vcc")
            for r in range(4): a(f"v_and_b32 v{64+4*n+r}, 0xffffff00, v{R+r}")
            a(f"v_mov_b32 v{10+n}, v18")
            a(f"red_skip{k}_{n}:")
        a("s_mov_b64 exec, -1")
        a("s_or_b64 s[80:81], s[60:61], s[62:63]\ns_or_b64 s[82:83], s[64:65], s[66:67]\ns_or_b64 s[80:81], s[80:81], s[82:83]\ns_cbranch_scc0 red_ok")
        if opt("RS", 0): a(f"s_sleep {opt('RS', 0)}")
        sweep(k)
    a("s_sub_u32 s96, s96, 1\ns_cmp_lg_u32 s96, 0\ns_cbranch_scc1 red_spin")
    a("red_ok:")
    stamp(a, 6 if "redw1" in OPT else 1)
    for r in range(4):
        a(f"v_add_f32 v{64+r}, v{64+r}, v{68+r}\nv_add_f32 v{72+r}, v{72+r}, v{76+r}")
    for r in range(4): a(f"v_add_f32 v{64+r}, v{64+r}, v{72+r}")
    red4(a, 64)
    a("v_lshlrev_b32 v4, 16, v4\nv_add_f32 v64, v64, v4\nv_cvt_pk_bf16_f32 v64, v64, v64")
    a("buffer_store_short v64, v3, s[56:59], s13 offen")
    a("s_cmp_lg_u32 s2, 0\ns_cbranch_scc1 main_fin")
    a(f"s_mov_b32 s8, {EPO}\nv_cmp_eq_u32 vcc, 0, v1\nv_cndmask_b32 v3, v18, v1, vcc\nbuffer_store_dword v{vSD+1}, v3, {SW}, s8 offen")

def tail0(a):
    a(f"ds_read_b128 v[28:31], v{vT2} offset:{L_M}\nds_read_b128 v[36:39], v{vT2} offset:{L_L}")
    for w in range(4):
        a(f"ds_read_b128 v[{160+4*w}:{163+4*w}], v{vT1} offset:{L_O+1024*w}")
    a(f"v_and_b32 v44, 15, v1\nv_lshlrev_b32 v45, {7 if MLF else 4}, v44\nv_lshlrev_b32 v44, {6+MLF}, v44\nv_and_b32 v47, 48, v1\nv_add_u32 v44, v44, v47")
    a(f"s_lshl_b32 s15, s2, {10+MLF}\ns_add_u32 s15, s15, {OIN}")
    a("s_add_u32 s10, s15, 64" if MLF else f"s_lshl_b32 s10, s5, 8\ns_add_u32 s10, s10, {ML}")
    a("s_waitcnt lgkmcnt(4)")
    a(f"v_max3_f32 v{vMX}, v28, v29, v30\nv_max_f32 v{vMX}, v{vMX}, v31")
    for w in range(4): a(f"v_sub_f32 v{28+w}, v{28+w}, v{vMX}")
    for w in range(4): a(f"v_mul_f32 v{28+w}, s88, v{28+w}")
    for w in range(4): a(f"v_exp_f32 v{28+w}, v{28+w}")
    a(f"v_mul_f32 v{vMX+1}, v28, v36")
    for w in range(1, 4): a(f"v_fmac_f32 v{vMX+1}, v{28+w}, v{36+w}")
    a("s_waitcnt lgkmcnt(0)")
    for r in range(4): a(f"v_mul_f32 v{48+r}, v28, v{160+r}")
    for w in range(1, 4):
        for r in range(4): a(f"v_fmac_f32 v{48+r}, v{28+w}, v{160+4*w+r}")
    tagbytes(a, 48)
    a(f"buffer_store_dwordx4 v[48:51], v{vPO}, {SW}, s{sPO} offen {PUBF}")
    a(f"buffer_store_dwordx4 v[{vMX}:{vMX+3}], v{vPM}, {SW}, s{sPM} offen {PUBF}")
    stamp(a, 5)
    SETS = [24, 144, 152][:opt("TN", 1)]
    def poll(R):
        a(f"buffer_load_dwordx4 v[{R}:{R+3}], v44, {SW}, s15 offen sc1")
        a(f"buffer_load_dwordx4 v[{R+4}:{R+7}], v45, {SW}, s10 offen sc1")
    poll(SETS[0])
    mask2(a, MK, 1, vT0, vT1)
    a("s_cmp_lt_u32 s2, 224\ns_cselect_b32 s9, -1, 0\ns_waitcnt vmcnt(4)")
    a(f"s_mov_b32 s96, {SPIN}\ngu_chk:")
    a(f"v_xor_b32 v40, s{sTAG}, v43\nv_xor_b32 v41, s{sTAG}, v33\nv_or_b32 v40, v40, v41\nv_and_b32 v40, s9, v40\nv_cmp_ne_u32 vcc, 0, v40\ns_cbranch_vccz gu_ok")
    a("s_sub_u32 s96, s96, 1\ns_cmp_eq_u32 s96, 0\ns_cbranch_scc1 gu_ok\ns_sleep 2")
    gu_load(a)
    a("s_waitcnt vmcnt(0)\ns_branch gu_chk\ngu_ok:")
    a("v_and_b32 v42, s9, v42\nv_and_b32 v32, s9, v32")
    T4(a, 176, 42, 42); T4(a, 177, 32, 32)
    for q in ("[2,3,0,1]", "[1,0,3,2]"):
        for A in (176, 177): a(f"v_add_f32_dpp v{A}, v{A}, v{A} quad_perm:{q} {FULL}")
    g, u = 176, 177
    rnd(a, g, g); rnd(a, u, u)
    a(f"v_mul_f32 v8, v{g}, v{g}\nv_mul_f32 v8, v8, v{g}")
    a(f"v_mul_f32 v8, {fl(0.044715)}, v8\nv_add_f32 v8, v8, v{g}\nv_mul_f32 v8, {fl(0.7978845608028654)}, v8")
    a(f"v_mul_f32 v8, {fl(2*LOG2E)}, v8\nv_exp_f32 v8, v8\nv_add_f32 v8, 1.0, v8\nv_rcp_f32 v8, v8")
    a(f"v_fma_f32 v8, v8, -2.0, 2.0")
    a(f"v_mul_f32 v9, 0.5, v{g}\nv_mul_f32 v8, v8, v9")
    rnd(a, 8, 8)
    a(f"v_mul_f32 v8, v8, v{u}\nv_cvt_pk_bf16_f32 v8, v8, v8")
    for n in range(2):
        for r in range(4):
            a(f"v_and_b32_dpp v{176+4*n+r}, v8, v{MK+r} row_newbcast:{8*n} {FULL}")
    Y = 160
    for n in range(2):
        for blk in range(4):
            D = f"v[{Y+4*blk}:{Y+3+4*blk}]"
            a(f"v_mfma_f32_16x16x32_bf16 {D}, v[{176+4*n}:{179+4*n}], {ring(RB, n*4+blk)}, {'0' if n==0 else D}")
    if "redw1" not in OPT: reducer_pre(a)
    for R in SETS[1:]:
        poll(R)
        if R != SETS[-1]: a(f"s_sleep {opt('TG', 2)}")
    a(f"s_mov_b32 s96, {SPIN}")
    a("t0_spin:")
    for R in SETS:
        a(f"s_waitcnt vmcnt({2*(len(SETS)-1)})")
        tagbad(a, 40, R, 41)
        a(f"v_xor_b32 v41, v{R+7}, v{vSD+1}\nv_or_b32 v40, v40, v41")
        a("v_cmp_eq_u32 vcc, 0, v40\ns_andn2_b64 s[78:79], exec, vcc\ns_and_b64 exec, exec, vcc")
        for r in range(4): a(f"v_and_b32 v{32+r}, 0xffffff00, v{R+r}")
        a(f"v_mov_b32 v36, v{R+4}\nv_mov_b32 v37, v{R+5}")
        a("s_mov_b64 exec, s[78:79]\ns_cbranch_execz t0_ok")
        if opt("TS", 0): a(f"s_sleep {opt('TS', 0)}")
        poll(R)
    a("s_sub_u32 s96, s96, 1\ns_cmp_lg_u32 s96, 0\ns_cbranch_scc1 t0_spin")
    a("t0_ok:\ns_mov_b64 exec, -1")
    stamp(a, 6)
    a(f"v_max_f32_dpp v38, v36, v36 row_ror:8 {FULL}")
    for r in (4, 2, 1): a(f"v_max_f32_dpp v38, v38, v38 row_ror:{r} {FULL}")
    a("v_sub_f32 v36, v36, v38\nv_mul_f32 v36, s88, v36\nv_exp_f32 v36, v36")
    for r in range(4): a(f"v_mul_f32 v{32+r}, v{32+r}, v36")
    a("v_mul_f32 v36, v36, v37")
    rowall(a, [36, 32, 33, 34, 35])
    a("v_rcp_f32 v37, v36")
    if "fastg" in OPT:
        for r in range(4): a(f"v_mul_f32 v{32+r}, v{32+r}, v37")
        for r in range(4): a(f"v_cvt_pk_bf16_f32 v{32+r}, v{32+r}, v{32+r}")
        def bld(n):
            for r in range(4): a(f"v_and_b32 v{176+4*n+r}, v{32+n}, v{MK+r}")
        def mm(n, blk):
            D = f"v[{Y+4*blk}:{Y+3+4*blk}]"
            a(f"v_mfma_f32_16x16x32_bf16 {D}, v[{176+4*n}:{179+4*n}], {ring(RA, n*4+blk)}, {D}")
        bld(0); bld(1)
        mm(0, 0); mm(0, 1); bld(2); mm(0, 2); mm(0, 3); bld(3)
        a(f"s_mov_b32 s8, s{sYA}")
        for blk in range(4):
            for n in range(1, 4): mm(n, blk)
            if blk:
                tagbytes(a, Y+4*(blk-1))
                a(f"buffer_store_dwordx4 v[{Y+4*(blk-1)}:{Y+4*(blk-1)+3}], v{vY}, {SW}, s8 offen {PUBF}\ns_add_u32 s8, s8, {32*YS}")
        tagbytes(a, Y+12)
        a(f"buffer_store_dwordx4 v[{Y+12}:{Y+15}], v{vY3}, {SW}, s8 offen {PUBF}")
        return
    for r in range(4): a(f"v_mul_f32 v{40+r}, v{32+r}, v37")
    for r in range(4): a(f"v_fma_f32 v{32+r}, -v{40+r}, v36, v{32+r}")
    for r in range(4): a(f"v_fma_f32 v{32+r}, v{32+r}, v37, v{40+r}")
    for r in range(4): a(f"v_cvt_pk_bf16_f32 v{32+r}, v{32+r}, v{32+r}")
    for n in range(4):
        for r in range(4): a(f"v_and_b32 v{176+4*n+r}, v{32+n}, v{MK+r}")
    for n in range(4):
        for blk in range(4):
            D = f"v[{Y+4*blk}:{Y+3+4*blk}]"
            a(f"v_mfma_f32_16x16x32_bf16 {D}, v[{176+4*n}:{179+4*n}], {ring(RA, n*4+blk)}, {D}")
    for blk in range(4): tagbytes(a, Y+4*blk)
    y_stores(a, Y, lambda blk: f"v[{Y+4*blk}:{Y+3+4*blk}]")

if __name__ == "__main__":
    t, k = kernel()
    t += "code_end:\n"
    s = HEADER + "; @launch grid=(256,1,1) block=(256,1,1) lds=9216\n"
    s += '.amdgcn_target "amdgcn-amd-amdhsa--gfx950"\n.text\n' + t + k
    open(sys.argv[1], "w").write(s)
```

```python
import sys
from common import *

OPT = set(sys.argv[2:])
STAMP = "stamp" in OPT
def opt(name, d):
    for o in OPT:
        if o.startswith(name+"="): return int(o.split("=")[1])
    return d
SPIN = 200000
B1, BA, B2, B3, B4 = opt("B1", 6), opt("BA", 10), opt("B2", 14), opt("B3", 24), opt("B4", 28)
XP   = 0x000000
XR   = 0x080000
YA   = 0x180000
OIN  = 0x200000
QP   = 0x2C0000
VOTE = 0x2E0000
EPO  = 0x2F8000
GU   = 0x300000
WSSZ = 0x340000
STB  = 0x390000
VSTR = YS = 4352
RA, RB = 64, 128
P0 = 32
vLO, vHI, vQ, vSW, vSB, vSC = 2, 3, 4, 8, 9, 10
vLS, vP, vT0, vT1, vT2 = 12, 13, 14, 15, 16
vRP = 19
MK, AA, ACC = 20, 24, 48
vMX, vSH, vSD = 52, 53, 54
vTAG = 55
vPO, vPM, vY, vY3 = 56, 57, 58, 59
sTAG, sOK, sOV, sO, sXF, sK = 89, 90, 91, 92, 93, 94
sXO, sXI = 97, 7
sPO, sPM, sYA = 80, 81, 82
SK, SV, SW = "s[40:43]", "s[44:47]", "s[48:51]"
L_M, L_L, L_V, L_O, L_P, L_S = 512, 528, 544, 1024, 1024, 5120

def stamp(a, i):
    if STAMP: a(f"s_memrealtime s[98:99]\ns_waitcnt lgkmcnt(0)\nv_writelane_b32 v208, s98, {i}")
def stamp_out(a):
    if STAMP:
        a(f"s_mov_b32 s50, 0x400000\ns_lshl_b32 s8, s2, 2\ns_add_u32 s8, s8, s3\ns_lshl_b32 s8, s8, 6\ns_add_u32 s8, s8, {STB}")
        a(f"v_lshlrev_b32 v209, 2, v1\nv_mov_b32 v210, {hex(OOB)}\nv_cmp_gt_u32 vcc, 16, v1\nv_cndmask_b32 v209, v210, v209, vcc\nbuffer_store_dword v208, v209, s[48:51], s8 offen")

MASK = {'5': 1 << 17, '6': 1 << 18, '7': 0x84000, '8': 0x101000, '9': 0x202000, 'A': 1 << 22}
ORD = [o.split("=")[1] for o in OPT if o.startswith("ORD=")]
ORD = ORD[0] if ORD else "9B8765"
def T_of(k):
    x = 0
    for q in range(4):
        if k >> q & 1: x ^= MASK[ORD[2+q]]
    return x
def sb_off(a, base, kreg):
    a(f"s_mov_b32 s{sO}, s{base}")
    for q in range(4):
        a(f"s_bitcmp1_b32 s{kreg}, {q}\ns_cselect_b32 s95, {hex(MASK[ORD[2+q]])}, 0\ns_xor_b32 s{sO}, s{sO}, s95")
def sb_const(a, base, k):
    a(f"s_xor_b32 s{sO}, s{base}, {hex(T_of(k))}" if k else f"s_mov_b32 s{sO}, s{base}")
def ring(R, j): return f"v[{R+4*j}:{R+4*j+3}]"
def kvload(a, R, j, srdname):
    off = ((j>>1)&1)*1024 + ((j>>2)&1)*2048 + (j>>3)*512
    a(f"buffer_load_dwordx4 {ring(R,j)}, v{vLO if j%2==0 else vHI}, {srdname}, s{sO} offen offset:{off} nt")
def refill_all(a, srdname):
    for j in range(16): kvload(a, RA, j, srdname)

def k_body(a, R, wait, refill):
    for j in range(16):
        w = wait(j)
        if w is not None: a(f"s_waitcnt vmcnt({w})")
        r = R+4*j
        a(f"v_dot2_f32_bf16 v{P0+j}, v{r}, v{vQ}, 0")
        for i in range(1, 4): a(f"v_dot2_f32_bf16 v{P0+j}, v{r+i}, v{vQ+i}, v{P0+j}")
    if refill: refill()
    for j in range(8):
        a(f"v_add_f32_dpp v{P0+j}, v{P0+j}, v{P0+j} row_ror:8 row_mask:0xf bank_mask:0x3")
    for j in range(8):
        a(f"v_add_f32_dpp v{P0+j}, v{P0+8+j}, v{P0+8+j} row_ror:8 row_mask:0xf bank_mask:0xc")
    for j in range(4):
        a(f"v_add_f32_dpp v{P0+j}, v{P0+j}, v{P0+j} row_shl:4 row_mask:0xf bank_mask:0x5")
    for j in range(4):
        a(f"v_add_f32_dpp v{P0+j}, v{P0+4+j}, v{P0+4+j} row_shr:4 row_mask:0xf bank_mask:0xa")
    for j in range(4):
        a(f"v_add_f32_dpp v{P0+j}, v{P0+j}, v{P0+j} quad_perm:[2,3,0,1] {FULL}")
    a(f"v_cndmask_b32 v{P0}, v{P0}, v{P0+2}, s[84:85]\nv_cndmask_b32 v{P0+1}, v{P0+1}, v{P0+3}, s[84:85]")
    for j in range(2):
        a(f"v_add_f32_dpp v{P0+j}, v{P0+j}, v{P0+j} quad_perm:[1,0,3,2] {FULL}")
    a(f"v_cndmask_b32 v{P0}, v{P0}, v{P0+1}, s[86:87]")
    B16(a, P0, P0+1)
    a(f"v_mov_b32 v{P0+1}, v{P0}\nv_permlane32_swap_b32 v{P0}, v{P0+1}\nv_cvt_pk_bf16_f32 v{vSD}, v{P0}, v{P0+1}")
    a(f"ds_write_b32 v{vSW}, v{vSD}\nv_add_u32 v{vSW}, 64, v{vSW}")

def v_head(a, extra=None):
    a(f"ds_read_b32 v{vSC}, v{vSW}\nv_add_u32 v{vSW}, 64, v{vSW}")
    if extra: extra()
    a("s_waitcnt lgkmcnt(0)")
    a(f"v_lshlrev_b32 v{vT2}, v{vSH}, v{vSC}\nv_and_b32 v{vT2}, 0xffff0000, v{vT2}")
    a(f"v_max_f32_dpp v{vT0}, v{vT2}, v{vT2} row_ror:8 {FULL}")
    for r in (4, 2, 1): a(f"v_max_f32_dpp v{vT0}, v{vT0}, v{vT0} row_ror:{r} {FULL}")
    B32(a, vT0, vT1, "v_max_f32")
    a(f"v_max_f32 v{vT0}, v{vT0}, v{vMX}")
    a(f"v_sub_f32 v{vT1}, v{vMX}, v{vT0}\nv_sub_f32 v{vT2}, v{vT2}, v{vT0}")
    a(f"v_mov_b32 v{vMX}, v{vT0}")
    a(f"v_mul_f32 v{vT1}, s88, v{vT1}\nv_mul_f32 v{vT2}, s88, v{vT2}")
    a(f"v_exp_f32 v{vT1}, v{vT1}\nv_exp_f32 v{vT2}, v{vT2}")
    a(f"v_cvt_pk_bf16_f32 v{vP}, v{vT2}, v{vT2}")
    a(f"v_fma_f32 v{vLS}, v{vLS}, v{vT1}, v{vT2}")
    for r in range(4): a(f"v_mul_f32 v{ACC+r}, v{ACC+r}, v{vT1}")

def v_body(a, extra_ops, refill):
    def build(j):
        for r in range(4):
            a(f"v_and_b32_dpp v{AA+4*(j&1)+r}, v{vP}, v{MK+r} row_newbcast:{j} {FULL}")
    build(0)
    for j in range(16):
        a(f"s_waitcnt vmcnt({15 - j + extra_ops})")
        A = AA+4*(j&1)
        a(f"v_mfma_f32_16x16x32_bf16 v[{ACC}:{ACC+3}], v[{A}:{A+3}], {ring(RA,j)}, v[{ACC}:{ACC+3}]")
        if j < 15: build(j+1)
    if refill: refill()

def ml_out(a):
    rowall(a, [vLS]); B32(a, vLS, vT0)
    a(f"s_lshl_b32 s8, s3, 2\nv_mov_b32 v{vT2}, s8\nds_write_b32 v{vT2}, v{vMX} offset:{L_M}\nds_write_b32 v{vT2}, v{vLS} offset:{L_L}")
    a(f"v_lshlrev_b32 v{vT1}, 4, v0\nv_mov_b32 v{vT2}, 0")

def xp_load(a):
    a(f"s_lshl_b32 s8, s{sXI}, 9\nbuffer_load_dwordx2 v[60:61], v18, {SW}, s8 offen sc1")
def xr_load(a):
    a(f"s_lshl_b32 s8, s{sXI}, 10\ns_add_u32 s8, s8, {XR}\nbuffer_load_dwordx4 v[60:63], v17, {SW}, s8 offen sc1")
def x_check(a, tag, tagreg, load):
    a(f"s_mov_b32 s96, {SPIN}")
    a(f"x_chk_{tag}:")
    a(f"v_cmp_ne_u32 vcc, s{sTAG}, v{tagreg}\ns_cbranch_vccz x_ok_{tag}")
    a(f"s_sub_u32 s96, s96, 1\ns_cmp_eq_u32 s96, 0\ns_cbranch_scc1 x_ok_{tag}\ns_sleep 4")
    load(a)
    a(f"s_waitcnt vmcnt(0)\ns_branch x_chk_{tag}")
    a(f"x_ok_{tag}:")
def vote_load(a):
    a(f"buffer_load_dwordx4 v[60:63], v17, {SW}, s12 offen sc1")
def gu_load(a):
    a(f"buffer_load_dwordx2 v[42:43], v18, {SW}, s12 offen sc1\nbuffer_load_dwordx2 v[32:33], v18, {SW}, s12 offen offset:512 sc1")

def tally(a, T):
    for r in range(4): a(f"v_xor_b32 v{T+r}, s{sTAG}, v{60+r}")
    for r in range(4): a(f"v_cmp_gt_u32 s[{60+2*r}:{61+2*r}], 64, v{T+r}")
    for r in range(4): a(f"v_and_b32 v{T+r}, 1, v{60+r}\nv_and_b32 v{T+4+r}, 2, v{60+r}")
    for r in range(4): a(f"v_lshlrev_b32 v{T+4+r}, 9, v{T+4+r}")
    for r in range(4): a(f"v_or3_b32 v{T+r}, v{T+r}, v{T+4+r}, s77")
    for r in range(4): a(f"v_cndmask_b32 v{T+r}, 0, v{T+r}, s[{60+2*r}:{61+2*r}]")
    a(f"v_add3_u32 v{T}, v{T}, v{T+1}, v{T+2}\nv_add_u32 v{T}, v{T}, v{T+3}")
    a("s_andn2_b32 s8, s2, 4\ns_lshr_b32 s8, s8, 2")
    for r in range(4): a(f"v_readlane_b32 s{72+r}, v{60+r}, s8")
    waveall(a, T, T+1, "v_add_u32")
    a("s_bitcmp1_b32 s2, 0\ns_cselect_b32 s72, s73, s72\ns_cselect_b32 s74, s75, s74\ns_bitcmp1_b32 s2, 1\ns_cselect_b32 s72, s74, s72")
    a(f"v_readfirstlane_b32 s8, v{T}")
    if STAMP: a("v_writelane_b32 v208, s8, 15")
    a("s_lshr_b32 s73, s8, 20\ns_and_b32 s74, s8, 0x3ff\ns_bfe_u32 s75, s8, 0xa000a")
    a("s_bfe_u32 s9, s72, 0x10004\ns_lshl_b32 s9, s9, 2")
    a("s_cmp_gt_u32 s74, 128\ns_cselect_b32 s8, 1, 0\ns_or_b32 s9, s9, s8\ns_cmp_gt_u32 s75, 128\ns_cselect_b32 s8, 2, 0\ns_or_b32 s9, s9, s8")
    a("s_sub_u32 s8, s73, s74\ns_add_u32 s8, s8, 1\ns_max_u32 s74, s74, s8\ns_sub_u32 s8, s73, s75\ns_add_u32 s8, s8, 1\ns_max_u32 s75, s75, s8\ns_min_u32 s74, s74, s75")
    a(f"s_xor_b32 s72, s72, s{sTAG}\ns_cmp_lt_u32 s72, 64\ns_cselect_b32 s74, s74, 0\ns_cmp_gt_u32 s74, 128")

def tagsel(a):
    for r in range(4): a(f"s_mov_b32 s{72+r}, {hex(0x07060500+r)}")
    a("s_mov_b32 s76, 0x0c0c0400\ns_mov_b32 s77, 0x04000c0c")
def tagbytes(a, R):
    for r in range(4): a(f"v_perm_b32 v{R+r}, v{R+r}, v{vTAG}, s{72+r}")
def tagbad(a, d, R, t):
    a(f"v_perm_b32 v{d}, v{R+1}, v{R}, s76\nv_perm_b32 v{t}, v{R+3}, v{R+2}, s77")
    a(f"v_or_b32 v{d}, v{d}, v{t}\nv_xor_b32 v{d}, v{d}, v{vTAG}")

def kernel():
    a = Asm(); K = NAME + "_kernel"
    a(f".globl {K}\n.p2align 8\n.type {K},@function\n{K}:")
    a("s_cmp_ge_u32 s2, 256\ns_cbranch_scc1 main_done")
    stamp(a, 0)
    a("s_load_dwordx16 s[16:31], s[0:1], 0\ns_load_dwordx8 s[32:39], s[0:1], 64\ns_memtime s[100:101]")
    a("v_lshrrev_b32 v1, 6, v0\nv_readfirstlane_b32 s3, v1\nv_and_b32 v1, 63, v0")
    a("s_getpc_b64 s[98:99]\nipf_pc:\ns_lshr_b32 s5, s2, 3\ns_lshl_b32 s5, s5, 10\ns_min_u32 s5, s5, code_end-ipf_pc-1024\nv_lshl_add_u32 v63, v1, 4, s5")
    a("s_cmp_lg_u32 s3, 3\ns_cbranch_scc1 noipf\nglobal_load_dwordx4 v[28:31], v63, s[98:99]\nnoipf:")
    a("s_lshr_b32 s5, s2, 4\ns_and_b32 s6, s2, 15")
    a("v_lshlrev_b32 v17, 4, v1")
    a("v_lshrrev_b32 v18, 3, v1\nv_and_b32 v14, 7, v1\nv_lshlrev_b32 v14, 4, v14\nv_lshl_add_u32 v19, v18, 13, v14")
    a("v_mul_u32_u24 v47, 3584, v18\nv_add_u32 v47, v47, v14")
    a(f"v_mov_b32 v15, {hex(OOB)}\nv_cmp_gt_u32 vcc, 32, v1\nv_cndmask_b32 v14, v15, v19, vcc")
    a("v_cmp_gt_u32 vcc, 48, v1\nv_cndmask_b32 v16, v15, v47, vcc")
    a("v_lshlrev_b32 v18, 1, v18")
    a(f"v_and_b32 v{vLO}, 31, v1\nv_lshlrev_b32 v{vLO}, 4, v{vLO}\nv_lshrrev_b32 v{vHI}, 5, v1\nv_lshlrev_b32 v{vHI}, 15, v{vHI}\nv_add_u32 v{vLO}, v{vLO}, v{vHI}\nv_add_u32 v{vHI}, 0x10000, v{vLO}")
    a("s_bfe_u32 s7, s2, 0x20002\ns_mul_i32 s8, s7, 112\ns_mul_i32 s9, s3, 28\ns_add_u32 s8, s8, s9\ns_lshl_b32 s9, s8, 1")
    a("s_lshl_b32 s8, s8, 13\ns_lshl_b32 s10, s5, 9\ns_add_u32 s8, s8, s10\ns_and_b32 s10, s2, 3\ns_lshl_b32 s10, s10, 7\ns_add_u32 s8, s8, s10")
    a("s_lshr_b32 s11, s2, 3\ns_and_b32 s13, s2, 7")
    a(f"s_mul_i32 s12, s13, 56\ns_mul_i32 s14, s3, 14\ns_add_u32 s12, s12, s14\ns_mul_i32 s14, s12, 3584\ns_lshl_b32 s12, s12, 1\ns_lshl_b32 s15, s11, 7\ns_add_u32 s14, s14, s15")
    a("s_lshl_b32 s83, s11, 23")
    a("s_lshr_b32 s10, s2, 1\ns_lshr_b32 s15, s2, 7\ns_xor_b32 s10, s10, s15\ns_andn2_b32 s10, 1, s10\ns_lshl_b32 s10, s10, 12\ns_or_b32 s83, s83, s10")
    a("s_lshr_b32 s10, s2, 6\ns_xor_b32 s10, s10, s2\ns_and_b32 s10, s10, 1\ns_lshl_b32 s10, s10, 14\ns_or_b32 s83, s83, s10")
    for q in range(2):
        a(f"s_bitcmp1_b32 s3, {q}\ns_cselect_b32 s10, {hex(MASK[ORD[q]])}, 0\ns_xor_b32 s83, s83, s10")
    a("s_bfe_u32 s4, s2, 0x10002\ns_xor_b32 s10, s4, s11\ns_and_b32 s10, s10, 1")
    a(f"s_lshl_b32 s10, s10, 13\ns_xor_b32 s{sOK}, s83, s10")
    a("s_lshl_b32 s74, s11, 23\ns_and_b32 s75, s2, 3\ns_lshl_b32 s75, s75, 21\ns_or_b32 s74, s74, s75")
    a("s_bfe_u32 s75, s2, 0x10002\ns_lshl_b32 s75, s75, 11\ns_or_b32 s74, s74, s75\ns_or_b32 s74, s74, 0x40000")
    a("s_and_b32 s76, s3, 1\ns_lshl_b32 s75, s76, 13\ns_or_b32 s74, s74, s75")
    a("s_getreg_b32 s79, hwreg(HW_REG_XCC_ID)\ns_bfe_u32 s79, s79, 0x10002")
    a("s_xor_b32 s76, s76, s79\ns_xor_b32 s76, s76, s2\ns_and_b32 s76, s76, 1")
    a(f"s_mov_b32 s10, {EPO}")
    a("s_waitcnt lgkmcnt(0)")
    sb_const(a, sOK, 0)
    a("s_cmp_lt_u32 s3, 2")
    a("s_cselect_b32 s72, s18, s20\ns_cselect_b32 s73, s19, s21")
    a("s_lshr_b32 s100, s100, 3\ns_mul_i32 s100, s100, 0x9e3779b1\ns_lshr_b32 s100, s100, 8\ns_and_b32 s100, s100, 0x1bd780\ns_or_b32 s74, s74, s100\ns_xor_b32 s75, s74, 0x400")
    a(f"s_load_dword s78, s[72:73], s75\ns_load_dword s{sTAG}, s[38:39], s10")
    srd(a, 40, 18, 1 << 28); srd(a, 52, 16, 896); srd(a, 56, 22, 448*8192)
    a("buffer_load_dwordx4 v[60:63], v17, s[52:55], 0 offen")
    for n in range(4):
        a(f"buffer_load_ushort v{40+n}, v18, s[52:55], s9 offen offset:{16*n}")
    for n in range(4):
        a(f"buffer_load_dwordx4 v[{160+4*n}:{163+4*n}], v{19 if n<3 else 14}, s[56:59], s8 offen nt")
        if n < 3: a(f"s_add_u32 s8, s8, {8*8192}")
    def kpre(lo, hi):
        for i in range(lo, hi):
            if i == 16: sb_const(a, sOK, 1)
            kvload(a, RA if i < 16 else RB, i % 16, SK)
    a("s_barrier")
    kpre(0, B1)
    srd(a, 60, 28, 448*3584); srd(a, 64, 30, 448*3584); srd(a, 68, 32, 1792*896)
    srd(a, 44, 20, 1 << 28); srd(a, 48, 38, WSSZ)
    stamp(a, 1)
    a(f"s_lshl_b32 s8, s5, 13\ns_add_u32 s8, s8, {QP}\ns_lshl_b32 s9, s3, 9\ns_add_u32 s15, s8, s9")
    a("s_lshl_b32 s9, s7, 11\ns_add_u32 s8, s8, s9\ns_and_b32 s9, s2, 3\ns_lshl_b32 s9, s9, 9\ns_add_u32 s7, s8, s9")
    a(f"v_and_b32 v13, 7, v1\nv_and_b32 v10, 56, v1\nv_lshl_add_u32 v11, v13, 6, v10\nv_lshl_add_u32 v46, v13, 10, v10")
    a(f"v_mul_u32_u24 v{vRP}, {VSTR}, v1\nv_cmp_gt_u32 vcc, 8, v1\nv_cndmask_b32 v{vRP}, v15, v{vRP}, vcc")
    a(f"s_cmp_eq_u32 s3, 0\ns_cselect_b64 vcc, -1, 0\nv_cndmask_b32 v{vSC}, v15, v11, vcc")
    a(f"v_mov_b32 v12, 0\nds_write_b32 v12, v12 offset:{L_V}")
    a(f"s_waitcnt vmcnt({B1+8})\nv_readfirstlane_b32 s77, v60\ns_lshl_b32 s77, s77, 16")
    vM, vS, vR = 20, 21, 22
    ln_stats2(a, 60, 32, vM, vS, vR, 12, 13, 11, 23, 77)
    a(f"s_waitcnt vmcnt({B1+4})")
    center_rows(a, [40, 41, 42, 43], vM)
    scale_rows(a, [40, 41, 42, 43], [24, 25, 26, 27], vS, vR)
    a(f"s_waitcnt vmcnt({B1})")
    stamp(a, 8)
    for n in range(4): gemv8(a, 32, 160+4*n, 24+n, 40+n, n == 0)
    red8(a, 32)
    a(f"v_lshlrev_b32 v12, 2, v0\nds_write_b32 v12, v32 offset:{L_P}\nv_lshlrev_b32 v12, 2, v1")
    a(f"s_waitcnt lgkmcnt(0)\ns_barrier")
    a(f"ds_read2st64_b32 v[32:33], v12 offset0:{L_P//256} offset1:{L_P//256+1}\nds_read2st64_b32 v[34:35], v12 offset0:{L_P//256+2} offset1:{L_P//256+3}")
    a(f"s_add_u32 s{sTAG}, s{sTAG}, 0x9e3779b9\nv_mov_b32 v{vTAG}, s{sTAG}")
    a(f"s_waitcnt lgkmcnt(0)\nv_add_f32 v32, v32, v33\nv_add_f32 v34, v34, v35\nv_add_f32 v{vSD}, v32, v34")
    a(f"buffer_store_dwordx2 v[{vSD}:{vSD+1}], v{vSC}, {SW}, s7 offen sc1")
    stamp(a, 9)
    for n in range(2):
        a(f"buffer_load_ushort v{44+n}, v18, s[52:55], s12 offen offset:{16*n}")
    for n in range(2):
        a(f"buffer_load_dwordx4 v[{176+4*n}:{179+4*n}], v{47 if n==0 else 16}, s[60:63], s14 offen nt")
        a(f"buffer_load_dwordx4 v[{184+4*n}:{187+4*n}], v{47 if n==0 else 16}, s[64:67], s14 offen nt")
        if n == 0: a(f"s_add_u32 s14, s14, {8*3584}")
    kpre(B1, BA)
    for i in range(2):
        a("s_memtime s[100:101]\ns_waitcnt lgkmcnt(0)")
        a("s_load_dword s78, s[72:73], s74\ns_waitcnt lgkmcnt(0)\ns_memtime s[96:97]\ns_waitcnt lgkmcnt(0)")
        a(f"s_sub_u32 s{8+i}, s96, s100")
        if i == 0:
            a("s_xor_b32 s74, s74, 0x2000"); kpre(BA, B2)
    a("s_sub_i32 s8, s8, s9\ns_sub_i32 s9, 0, s8\ns_cmp_eq_u32 s76, 0\ns_cselect_b32 s8, s8, s9")
    a("s_max_i32 s8, s8, -2047\ns_min_i32 s8, s8, 2047\ns_add_i32 s8, s8, 2048\ns_lshr_b32 s9, s3, 1\ns_mul_i32 s9, s9, 13\ns_lshl_b32 s8, s8, s9")
    a(f"s_or_b32 s8, s8, 0x20000000\nv_mov_b32 v12, s8\nv_mov_b32 v13, 0\ns_mov_b64 exec, 1\nds_add_rtn_u32 v13, v13, v12 offset:{L_V}\ns_mov_b64 exec, -1")
    a(f"s_lshl_b32 s10, s79, 4\ns_andn2_b32 s9, s{sTAG}, 63\ns_or_b32 s10, s10, s9\ns_lshl_b32 s9, s2, 2\ns_add_u32 s9, s9, {VOTE}")
    a("s_waitcnt lgkmcnt(0)\nv_readfirstlane_b32 s72, v13\ns_add_u32 s72, s72, s8\ns_bitcmp0_b32 s72, 31\ns_cbranch_scc1 novote")
    a("s_and_b32 s73, s72, 0x1fff\ns_cmp_gt_u32 s73, 4096\ns_cselect_b32 s73, 1, 0\ns_or_b32 s10, s10, s73")
    a("s_bfe_u32 s73, s72, 0xd000d\ns_cmp_gt_u32 s73, 4096\ns_cselect_b32 s73, 2, 0\ns_or_b32 s10, s10, s73")
    a(f"v_mov_b32 v12, s10\nbuffer_store_dword v12, v{vRP}, {SW}, s9 offen sc1")
    a("novote:")
    def gather():
        for rb in range(4):
            if rb == 2: a("s_add_u32 s9, s15, 4096")
            a(f"buffer_load_dwordx2 v[{32+2*rb}:{33+2*rb}], v18, {SW}, s{15 if rb<2 else 9} offen offset:{2048*(rb&1)} sc1")
    a("v_lshlrev_b32 v18, 3, v1"); gather(); kpre(B2, B3)
    a(f"s_lshl_b32 s9, s3, 10\ns_add_u32 s9, s9, {L_S}\nv_and_b32 v{vSW}, 15, v1\nv_lshl_add_u32 v{vSW}, v{vSW}, 2, s9\nv_lshl_add_u32 v{vSB}, v1, 2, s9")
    a(f"s_lshl_b32 s{sXO}, s2, 2\ns_add_u32 s{sXO}, s{sXO}, s3\ns_xor_b32 s{sXI}, s{sXO}, 16")
    a(f"v_cmp_gt_u32 vcc, 32, v1\nv_cndmask_b32 v{vSH}, 0, 16, vcc")
    a("s_mov_b32 s84, 0xcccccccc\ns_mov_b32 s85, 0xcccccccc\ns_mov_b32 s86, 0xaaaaaaaa\ns_mov_b32 s87, 0xaaaaaaaa")
    a(f"s_mov_b32 s88, {fl(CEXP)}\ns_mov_b32 s77, 0x100000")
    a(f"v_lshrrev_b32 v{vPO}, 5, v1\nv_lshlrev_b32 v{vPO}, 14, v{vPO}\nv_bfe_u32 v12, v1, 1, 3\nv_lshlrev_b32 v12, 11, v12\nv_add_u32 v{vPO}, v{vPO}, v12")
    a(f"v_and_b32 v12, 1, v1\nv_lshlrev_b32 v12, 5, v12\nv_add_u32 v{vPO}, v{vPO}, v12\nv_and_b32 v12, 16, v1\nv_add_u32 v{vPO}, v{vPO}, v12")
    a(f"v_lshlrev_b32 v12, 11, v1\nv_cmp_gt_u32 vcc, 16, v1\nv_cndmask_b32 v{vPM}, v15, v12, vcc")
    yaddr(a, vY, vY3, 1, 12, 13, YS)
    a(f"s_lshl_b32 s{sPO}, s5, 15\ns_lshl_b32 s10, s6, 7\ns_add_u32 s{sPO}, s{sPO}, s10\ns_add_u32 s{sPO}, s{sPO}, {OIN}\ns_add_u32 s{sPM}, s{sPO}, 64")
    a(f"s_lshl_b32 s{sYA}, s2, 4\ns_add_u32 s{sYA}, s{sYA}, {YA}")
    a(f"s_lshl_b32 s14, s11, 13\ns_lshl_b32 s10, s13, 6\ns_add_u32 s14, s14, s10\ns_lshl_b32 s10, s3, 9\ns_add_u32 s14, s14, s10\ns_add_u32 s14, s14, {GU-512}")
    a(f"s_cmp_lt_u32 s11, 28\ns_cselect_b32 s10, 0, {hex(OOB)}\ns_add_u32 s9, s3, 3\ns_bitcmp1_b32 s9, 1\ns_cselect_b32 s10, {hex(OOB)}, s10\nv_or_b32 v46, s10, v46")
    a(f"s_and_b32 s12, s11, 7\ns_mul_i32 s12, s12, {VSTR}\ns_add_u32 s12, s12, {VOTE}")
    a(f"s_waitcnt vmcnt({B3-B1+8})")
    center_rows(a, [44, 45], vM)
    scale_rows(a, [44, 45], [12, 13], vS, vR)
    a(f"s_waitcnt vmcnt({B3-B1+4})")
    aG, aU = 24, 192
    for n in range(2):
        gemv8(a, aG, 176+4*n, 12+n, 44+n, n == 0)
        gemv8(a, aU, 184+4*n, 12+n, 44+n, n == 0)
    stamp(a, 10)
    red8(a, aG); red8(a, aU)
    a(f"v_lshlrev_b32 v12, 2, v0\nds_write_b32 v12, v{aG} offset:{L_P+1024}\nds_write_b32 v12, v{aU} offset:{L_P+2048}")
    mask1(a, MK, 1, vT0, vT1)
    def check():
        a(f"v_xor_b32 v40, s{sTAG}, v33\nv_xor_b32 v41, s{sTAG}, v35\nv_xor_b32 v42, s{sTAG}, v37\nv_xor_b32 v43, s{sTAG}, v39")
        a("v_or3_b32 v40, v40, v41, v42\nv_or_b32 v40, v40, v43\nv_cmp_ne_u32 vcc, 0, v40\ns_cbranch_vccz g_ok")
    a(f"s_mov_b32 s78, 0\ns_waitcnt vmcnt({B3-B2})")
    check()
    a("s_mov_b32 s78, 1"); gather(); kpre(B3, B4)
    a(f"s_waitcnt vmcnt({B4-B3})")
    check()
    a("s_mov_b32 s78, 2"); gather(); kpre(B4, 32)
    a(f"s_mov_b32 s96, {SPIN}\ns_waitcnt vmcnt({32-B4})")
    a("g_spin:")
    check()
    a("s_sub_u32 s96, s96, 1\ns_cmp_eq_u32 s96, 0\ns_cbranch_scc1 g_ok\ns_sleep 8")
    gather()
    a("s_waitcnt vmcnt(0)\ns_branch g_spin")
    a("g_ok:")
    stamp(a, 11)
    a("v_add_f32 v32, v32, v34\nv_add_f32 v36, v36, v38\nv_add_f32 v32, v32, v36")
    a("v_cvt_pk_bf16_f32 v32, v32, v32\nv_lshlrev_b32 v33, 1, v0\nds_write_b16 v33, v32")
    a("v_and_b32 v34, 31, v1\nv_lshlrev_b32 v34, 4, v34")
    a("s_max_u32 s8, s3, 1\ns_min_u32 s8, s8, 2\ns_lshl_b32 s8, s8, 10\nv_lshl_add_u32 v35, v1, 2, s8")
    a(f"s_waitcnt lgkmcnt(0)\ns_barrier\nds_read_b128 v[{vQ}:{vQ+3}], v34")
    a(f"ds_read2st64_b32 v[40:41], v35 offset0:{L_P//256} offset1:{L_P//256+1}\nds_read2st64_b32 v[42:43], v35 offset0:{L_P//256+2} offset1:{L_P//256+3}")
    a("s_cmp_eq_u32 s78, 2\ns_cbranch_scc1 g_p2\ns_cmp_eq_u32 s78, 1\ns_cbranch_scc1 g_p1")
    kpre(B3, B4)
    a("g_p1:"); kpre(B4, 32)
    a("g_p2:")
    a(f"s_waitcnt lgkmcnt(0)\nv_add_f32 v40, v40, v41\nv_add_f32 v42, v42, v43\nv_add_f32 v{vSD}, v40, v42")
    a(f"buffer_store_dwordx2 v[{vSD}:{vSD+1}], v46, {SW}, s14 offen sc1")
    a(f"v_mov_b32 v{vMX}, 0xff800000\nv_mov_b32 v{vLS}, 0")
    for r in range(4): a(f"v_mov_b32 v{ACC+r}, 0")
    stamp(a, 2)
    sb_const(a, sOK, 2)
    vote_load(a)
    k_body(a, RA, lambda j: None if j < B2 else 33-j, lambda: refill_all(a, SK))
    stamp(a, 13)
    k_body(a, RB, lambda j: None if 16+j < B2 else 33-j, None)
    stamp(a, 14)
    a(f"s_mov_b32 s96, {SPIN}\ns_waitcnt vmcnt(16)")
    a("vt_chk:")
    tally(a, 32)
    a("s_cbranch_scc0 vt_spin")
    a("vt_ok:")
    a("s_lshr_b32 s8, s9, 2\ns_xor_b32 s4, s4, s8")
    a(f"s_lshr_b32 s8, s9, 1\ns_xor_b32 s8, s8, s4\ns_and_b32 s8, s8, 1\ns_lshl_b32 s8, s8, 13\ns_xor_b32 s{sOV}, s83, s8")
    a(f"s_xor_b32 s{sXF}, s{sOK}, s{sOV}")
    a(f"s_xor_b32 s8, s9, s4\ns_and_b32 s8, s8, 1\ns_lshl_b32 s8, s8, 13\ns_xor_b32 s{sOK}, s83, s8")
    a(f"s_xor_b32 s8, s{sOK}, s{sOV}\ns_lshl_b32 s8, s8, 1\ns_or_b32 s{sXF}, s{sXF}, s8")
    a(f"s_mov_b32 s{sK}, 3")
    a("k_loop:")
    sb_off(a, sOK, sK)
    k_body(a, RA, lambda j: 15-j, lambda: refill_all(a, SK))
    if STAMP:
        a(f"s_cmp_lg_u32 s{sK}, 3\ns_cbranch_scc1 k_st"); stamp(a, 12); a("k_st:")
    a(f"s_cmp_lg_u32 s{sK}, 4\ns_cbranch_scc1 k_next\ns_cmp_eq_u32 s{sXF}, 0\ns_cbranch_scc1 k_next")
    a(f"s_waitcnt lgkmcnt(0)\nds_read_b32 v{vSD}, v{vSB}\ns_lshl_b32 s8, s{sXO}, 9\ns_waitcnt lgkmcnt(0)")
    a(f"buffer_store_dwordx2 v[{vSD}:{vSD+1}], v18, {SW}, s8 offen sc1")
    a("k_next:")
    a(f"s_add_u32 s{sK}, s{sK}, 1\ns_cmp_lt_u32 s{sK}, 16\ns_cbranch_scc1 k_loop")
    sb_const(a, sOV, 0)
    a(f"s_cmp_eq_u32 s{sXF}, 0\ns_cbranch_scc1 t_nop1")
    xp_load(a)
    a("t_nop1:")
    k_body(a, RA, lambda j: 15-j, lambda: refill_all(a, SV))
    a(f"v_subrev_u32 v{vSW}, 1024, v{vSW}")
    a(f"s_bitcmp0_b32 s{sXF}, 14\ns_cbranch_scc1 t_nor")
    a(f"s_waitcnt lgkmcnt(0)\nds_read2st64_b32 v[24:25], v{vSB} offset0:1 offset1:2\nds_read_b32 v26, v{vSB} offset:768\nv_mov_b32 v27, s{sTAG}")
    a(f"s_lshl_b32 s8, s{sXO}, 10\ns_add_u32 s8, s8, {XR}\ns_waitcnt lgkmcnt(0)")
    a(f"buffer_store_dwordx4 v[24:27], v17, {SW}, s8 offen sc1")
    a("t_nor:")
    a(f"s_cmp_eq_u32 s{sXF}, 0\ns_cbranch_scc1 t_nop2")
    a("s_waitcnt vmcnt(16)")
    x_check(a, "p", 61, xp_load)
    a(f"s_mov_b32 s8, -1\ns_mov_b32 s9, 0xffff\ns_bitcmp1_b32 s{sXF}, 13\ns_cselect_b64 s[10:11], s[8:9], 0")
    a(f"s_not_b64 s[8:9], s[8:9]\ns_bitcmp1_b32 s{sXF}, 14\ns_cselect_b64 s[8:9], s[8:9], 0\ns_or_b64 exec, s[8:9], s[10:11]")
    a(f"ds_write_b32 v{vSB}, v60\ns_mov_b64 exec, -1")
    a("t_nop2:")
    a("; ---- V phase")
    a(f"s_mov_b32 s{sK}, 1")
    stamp(a, 3)
    a("v_loop:")
    sb_off(a, sOV, sK)
    a(f"s_bitcmp0_b32 s{sXF}, 14\ns_cbranch_scc1 v_go\ns_cmp_eq_u32 s{sK}, 4\ns_cbranch_scc1 v_xr1\ns_cmp_eq_u32 s{sK}, 5\ns_cbranch_scc1 v_xr2")
    a("v_go:")
    v_head(a)
    v_body(a, 0, lambda: refill_all(a, SV))
    a(f"s_add_u32 s{sK}, s{sK}, 1\ns_cmp_lt_u32 s{sK}, 16\ns_cbranch_scc1 v_loop")
    tagsel(a)
    a("s_cmp_eq_u32 s3, 0\ns_cbranch_scc1 v_last0")
    v_head(a); ml_out(a)
    v_body(a, 0, None)
    a("s_branch v_end")
    a("v_last0:")
    srd(a, 52, 24, 4096*896)
    a("v_lshrrev_b32 v46, 4, v1\nv_mul_u32_u24 v19, 1792, v46\nv_and_b32 v18, 15, v1\nv_lshlrev_b32 v18, 4, v18\nv_lshl_add_u32 v46, v19, 1, v18\nv_add_u32 v19, v19, v18")
    a("v_and_b32 v18, 7, v1\nv_lshlrev_b32 v18, 6, v18\nv_and_b32 v47, 56, v1\nv_add_u32 v18, v18, v47")
    a(f"s_mul_i32 s10, s2, {16*896}\ns_min_u32 s14, s2, 223\ns_mul_i32 s14, s14, {8*896}\ns_lshl_b32 s12, s2, 10\ns_add_u32 s12, s12, {GU}")
    def wd():
        gu_load(a)
        for i in range(8):
            a(f"buffer_load_dwordx4 {ring(RB,i)}, v19, s[68:71], s14 offen offset:{(i//4)*896+(i%4)*256} nt")
    def wo():
        for j in range(16):
            a(f"buffer_load_dwordx4 {ring(RA,j)}, v46, s[52:55], s10 offen offset:{(j//4)*896+(j%4)*256} nt")
    v_head(a, wd); ml_out(a)
    v_body(a, 10, wo)
    a("v_end:")
    stamp(a, 4)
    a(f"ds_write_b128 v{vT1}, v[{ACC}:{ACC+3}] offset:{L_O}")
    a("s_waitcnt lgkmcnt(0)\ns_barrier")
    a("s_cmp_eq_u32 s3, 0\ns_cbranch_scc1 tail0")
    a("s_cmp_lg_u32 s3, 1\ns_cbranch_scc1 main_fin\ns_cmp_ge_u32 s2, 112\ns_cbranch_scc1 main_fin")
    reducer(a)
    a("s_branch main_fin")
    a("tail0:")
    tail0(a)
    a("main_fin:")
    stamp(a, 7); stamp_out(a)
    a("main_done:\ns_endpgm")
    a("v_xr1:"); xr_load(a); a("s_branch v_go")
    a("v_xr2:\ns_waitcnt vmcnt(16)")
    x_check(a, "r", 63, xr_load)
    a(f"ds_write2st64_b32 v{vSB}, v60, v61 offset0:1 offset1:2\nds_write_b32 v{vSB}, v62 offset:768\ns_branch v_go")
    a("vt_spin:\ns_sub_u32 s96, s96, 1\ns_cmp_eq_u32 s96, 0\ns_cbranch_scc1 vt_ok\ns_sleep 8")
    vote_load(a)
    a("s_waitcnt vmcnt(0)\ns_branch vt_chk")
    return a.text() + "code_end:\n", kd(K, 216 if STAMP else 200, 102)

def reducer(a):
    a("; ---- wave 1 of workgroups 0..111: out[4b..4b+3] = x + sum of the 256 partials")
    srd(a, 52, 16, 896); srd(a, 56, 34, 896)
    a(f"v_mov_b32 v18, {hex(OOB)}\ns_mul_i32 s11, s2, {YS}\ns_add_u32 s11, s11, {YA}\ns_lshl_b32 s13, s2, 3")
    a("v_lshrrev_b32 v2, 4, v1\nv_lshlrev_b32 v2, 1, v2\nv_and_b32 v3, 15, v1\nv_cmp_eq_u32 vcc, 0, v3\nv_cndmask_b32 v3, v18, v2, vcc")
    a("buffer_load_ushort v4, v2, s[52:55], s13 offen")
    for n in range(4): a(f"v_mov_b32 v{10+n}, v17\ns_mov_b64 s[{60+2*n}:{61+2*n}], -1")
    a(f"s_mov_b32 s96, {SPIN}")
    a("red_spin:")
    for n in range(4):
        a(f"buffer_load_dwordx4 v[{80+4*n}:{83+4*n}], v{10+n}, {SW}, s11 offen offset:{1024*n} sc1")
    a("s_waitcnt vmcnt(0)")
    for n in range(4):
        R = 80+4*n
        a(f"s_mov_b64 exec, s[{60+2*n}:{61+2*n}]\ns_cbranch_execz red_skip{n}")
        tagbad(a, 40, R, 41)
        a(f"v_cmp_eq_u32 vcc, 0, v40\ns_andn2_b64 s[{60+2*n}:{61+2*n}], exec, vcc\ns_and_b64 exec, exec, vcc")
        for r in range(4): a(f"v_and_b32 v{64+4*n+r}, 0xffffff00, v{R+r}")
        a(f"v_mov_b32 v{10+n}, v18")
        a(f"red_skip{n}:")
    a("s_mov_b64 exec, -1")
    a("s_or_b64 s[80:81], s[60:61], s[62:63]\ns_or_b64 s[82:83], s[64:65], s[66:67]\ns_or_b64 s[80:81], s[80:81], s[82:83]\ns_cbranch_scc0 red_ok")
    a("s_sub_u32 s96, s96, 1\ns_cmp_lg_u32 s96, 0\ns_cbranch_scc1 red_spin")
    a("red_ok:")
    stamp(a, 6)
    for r in range(4):
        a(f"v_add_f32 v{64+r}, v{64+r}, v{68+r}\nv_add_f32 v{72+r}, v{72+r}, v{76+r}")
    for r in range(4): a(f"v_add_f32 v{64+r}, v{64+r}, v{72+r}")
    multiT(a, "v_permlane32_swap_b32", [(64, 66), (65, 67)])
    T16(a, 64, 65)
    rowall(a, [64])
    a("v_lshlrev_b32 v4, 16, v4\nv_add_f32 v64, v64, v4\nv_cvt_pk_bf16_f32 v64, v64, v64")
    a("buffer_store_short v64, v3, s[56:59], s13 offen")
    a("s_cmp_lg_u32 s2, 0\ns_cbranch_scc1 main_fin")
    a(f"s_mov_b32 s8, {EPO}\nv_cmp_eq_u32 vcc, 0, v1\nv_cndmask_b32 v3, v18, v1, vcc\nbuffer_store_dword v{vTAG}, v3, {SW}, s8 offen")

def tail0(a):
    a("; ---- wave 0: merge the four waves, hand 16-column slices of (m, l, o) to the 16 workgroups of the head")
    a(f"ds_read_b128 v[28:31], v{vT2} offset:{L_M}\nds_read_b128 v[36:39], v{vT2} offset:{L_L}")
    for w in range(4):
        a(f"ds_read_b128 v[{160+4*w}:{163+4*w}], v{vT1} offset:{L_O+1024*w}")
    a("v_and_b32 v44, 15, v1\nv_lshlrev_b32 v45, 7, v44\nv_and_b32 v47, 48, v1\nv_add_u32 v44, v45, v47")
    a(f"s_lshl_b32 s15, s2, 11\ns_add_u32 s15, s15, {OIN}")
    a("s_waitcnt lgkmcnt(4)")
    a(f"v_max3_f32 v{vMX}, v28, v29, v30\nv_max_f32 v{vMX}, v{vMX}, v31")
    for w in range(4): a(f"v_sub_f32 v{28+w}, v{28+w}, v{vMX}")
    for w in range(4): a(f"v_mul_f32 v{28+w}, s88, v{28+w}")
    for w in range(4): a(f"v_exp_f32 v{28+w}, v{28+w}")
    a(f"v_mul_f32 v{vMX+1}, v28, v36")
    for w in range(1, 4): a(f"v_fmac_f32 v{vMX+1}, v{28+w}, v{36+w}")
    a("s_waitcnt lgkmcnt(0)")
    for r in range(4): a(f"v_mul_f32 v{48+r}, v28, v{160+r}")
    for w in range(1, 4):
        for r in range(4): a(f"v_fmac_f32 v{48+r}, v{28+w}, v{160+4*w+r}")
    tagbytes(a, 48)
    a(f"buffer_store_dwordx4 v[48:51], v{vPO}, {SW}, s{sPO} offen sc1")
    a(f"buffer_store_dwordx4 v[{vMX}:{vMX+3}], v{vPM}, {SW}, s{sPM} offen sc1")
    stamp(a, 5)
    def poll():
        a(f"buffer_load_dwordx4 v[24:27], v44, {SW}, s15 offen sc1")
        a(f"buffer_load_dwordx4 v[28:31], v45, {SW}, s15 offen offset:64 sc1")
    poll()
    mask2(a, MK, 1, vT0, vT1)
    a("s_cmp_lt_u32 s2, 224\ns_cselect_b32 s9, -1, 0\ns_waitcnt vmcnt(4)")
    a(f"s_mov_b32 s96, {SPIN}\ngu_chk:")
    a(f"v_xor_b32 v40, s{sTAG}, v43\nv_xor_b32 v41, s{sTAG}, v33\nv_or_b32 v40, v40, v41\nv_and_b32 v40, s9, v40\nv_cmp_ne_u32 vcc, 0, v40\ns_cbranch_vccz gu_ok")
    a("s_sub_u32 s96, s96, 1\ns_cmp_eq_u32 s96, 0\ns_cbranch_scc1 gu_ok\ns_sleep 2")
    gu_load(a)
    a("s_waitcnt vmcnt(0)\ns_branch gu_chk\ngu_ok:")
    a("v_and_b32 v42, s9, v42\nv_and_b32 v32, s9, v32")
    g, u = 176, 177
    T4(a, g, 42, 42); T4(a, u, 32, 32)
    for q in ("[2,3,0,1]", "[1,0,3,2]"):
        for A in (g, u): a(f"v_add_f32_dpp v{A}, v{A}, v{A} quad_perm:{q} {FULL}")
    rnd(a, g, g); rnd(a, u, u)
    a(f"v_mul_f32 v8, v{g}, v{g}\nv_mul_f32 v8, v8, v{g}")
    a(f"v_mul_f32 v8, {fl(0.044715)}, v8\nv_add_f32 v8, v8, v{g}\nv_mul_f32 v8, {fl(0.7978845608028654)}, v8")
    a(f"v_mul_f32 v8, {fl(2*LOG2E)}, v8\nv_exp_f32 v8, v8\nv_add_f32 v8, 1.0, v8\nv_rcp_f32 v8, v8")
    a(f"v_fma_f32 v8, v8, -2.0, 2.0")
    a(f"v_mul_f32 v9, 0.5, v{g}\nv_mul_f32 v8, v8, v9")
    rnd(a, 8, 8)
    a(f"v_mul_f32 v8, v8, v{u}\nv_cvt_pk_bf16_f32 v8, v8, v8")
    for n in range(2):
        for r in range(4):
            a(f"v_and_b32_dpp v{176+4*n+r}, v8, v{MK+r} row_newbcast:{8*n} {FULL}")
    Y = 160
    for n in range(2):
        for blk in range(4):
            D = f"v[{Y+4*blk}:{Y+3+4*blk}]"
            a(f"v_mfma_f32_16x16x32_bf16 {D}, v[{176+4*n}:{179+4*n}], {ring(RB, n*4+blk)}, {'0' if n==0 else D}")
    a(f"s_mov_b32 s96, {SPIN}")
    a("t0_spin:")
    a("s_waitcnt vmcnt(0)")
    tagbad(a, 40, 24, 41)
    a(f"v_xor_b32 v41, v31, v{vTAG}\nv_or_b32 v40, v40, v41")
    a("v_cmp_eq_u32 vcc, 0, v40\ns_andn2_b64 s[78:79], exec, vcc\ns_and_b64 exec, exec, vcc")
    for r in range(4): a(f"v_and_b32 v{32+r}, 0xffffff00, v{24+r}")
    a("v_mov_b32 v36, v28\nv_mov_b32 v37, v29")
    a("s_mov_b64 exec, s[78:79]\ns_cbranch_execz t0_ok")
    poll()
    a("s_sub_u32 s96, s96, 1\ns_cmp_lg_u32 s96, 0\ns_cbranch_scc1 t0_spin")
    a("t0_ok:\ns_mov_b64 exec, -1")
    stamp(a, 6)
    a(f"v_max_f32_dpp v38, v36, v36 row_ror:8 {FULL}")
    for r in (4, 2, 1): a(f"v_max_f32_dpp v38, v38, v38 row_ror:{r} {FULL}")
    a("v_sub_f32 v36, v36, v38\nv_mul_f32 v36, s88, v36\nv_exp_f32 v36, v36")
    for r in range(4): a(f"v_mul_f32 v{32+r}, v{32+r}, v36")
    a("v_mul_f32 v36, v36, v37")
    rowall(a, [36, 32, 33, 34, 35])
    a("v_rcp_f32 v37, v36")
    for r in range(4): a(f"v_mul_f32 v{32+r}, v{32+r}, v37")
    for r in range(4): a(f"v_cvt_pk_bf16_f32 v{32+r}, v{32+r}, v{32+r}")
    def bld(n):
        for r in range(4): a(f"v_and_b32 v{176+4*n+r}, v{32+n}, v{MK+r}")
    def mm(n, blk):
        D = f"v[{Y+4*blk}:{Y+3+4*blk}]"
        a(f"v_mfma_f32_16x16x32_bf16 {D}, v[{176+4*n}:{179+4*n}], {ring(RA, n*4+blk)}, {D}")
    bld(0); bld(1)
    mm(0, 0); mm(0, 1); bld(2); mm(0, 2); mm(0, 3); bld(3)
    a(f"s_mov_b32 s8, s{sYA}")
    for blk in range(4):
        for n in range(1, 4): mm(n, blk)
        if blk:
            tagbytes(a, Y+4*(blk-1))
            a(f"buffer_store_dwordx4 v[{Y+4*(blk-1)}:{Y+4*(blk-1)+3}], v{vY}, {SW}, s8 offen sc1\ns_add_u32 s8, s8, {32*YS}")
    tagbytes(a, Y+12)
    a(f"buffer_store_dwordx4 v[{Y+12}:{Y+15}], v{vY3}, {SW}, s8 offen sc1")

DOC = """; One launch, 256 workgroups x 4 waves, one workgroup per CU; HBM-bound (K and V are each read once, nt).
"""
if __name__ == "__main__":
    t, k = kernel()
    s = HEADER + DOC + "; @launch grid=(256,1,1) block=(256,1,1) lds=9216\n"
    s += '.amdgcn_target "amdgcn-amd-amdhsa--gfx950"\n.text\n' + t + k
    open(sys.argv[1], "w").write(s)
```

```python
import sys
from common import *

OPT = set(sys.argv[2:])
STAMP = "stamp" in OPT
def opt(name, d):
    for o in OPT:
        if o.startswith(name+"="): return int(o.split("=")[1])
    return d
SYM, SYMB = opt("SYM", 2), opt("SYMB", 1)
SPIN = 200000
B1, BA, B2, B3, B4 = opt("B1", 6), opt("BA", 10), opt("B2", 14), opt("B3", 24), opt("B4", 28)
XP   = 0x000000
XR   = 0x080000
YA   = 0x180000
OIN  = 0x200000
QP   = 0x2C0000
VOTE = 0x2E0000
EPO  = 0x2F8000
GU   = 0x300000
WSSZ = 0x340000
STB  = 0x390000
VSTR = YS = 4352
RA, RB, RD = 64, 128, 192
P0 = 32
vLO, vHI, vQ, vSW, vSB, vSC = 2, 3, 4, 8, 9, 10
vLS, vP, vT0, vT1, vT2 = 12, 13, 14, 15, 16
vRP = 19
MK, AA, ACC = 20, 24, 48
vMX, vSH, vSD = 52, 53, 54
vTAG = 55
vPO, vPM, vY, vY3 = 56, 57, 58, 59
sTAG, sOK, sOV, sO, sXF, sK = 89, 90, 91, 92, 93, 94
sXO, sXI = 97, 7
sPO, sPM, sYA = 80, 81, 82
SK, SV, SW = "s[40:43]", "s[44:47]", "s[48:51]"
L_M, L_L, L_V, L_O, L_P, L_S = 512, 528, 544, 1024, 1024, 5120

def stamp(a, i):
    if STAMP: a(f"s_memrealtime s[98:99]\ns_waitcnt lgkmcnt(0)\nv_writelane_b32 v224, s98, {i}")
def stamp_out(a):
    if STAMP:
        a(f"s_mov_b32 s50, 0x400000\ns_lshl_b32 s8, s2, 2\ns_add_u32 s8, s8, s3\ns_lshl_b32 s8, s8, 6\ns_add_u32 s8, s8, {STB}")
        a(f"v_lshlrev_b32 v225, 2, v1\nv_mov_b32 v226, {hex(OOB)}\nv_cmp_gt_u32 vcc, 16, v1\nv_cndmask_b32 v225, v226, v225, vcc\nbuffer_store_dword v224, v225, s[48:51], s8 offen")

MASK = {'5': 1 << 17, '6': 1 << 18, '7': 0x84000, '8': 0x101000, '9': 0x202000, 'A': 1 << 22}
ORD = [o.split("=")[1] for o in OPT if o.startswith("ORD=")]
ORD = ORD[0] if ORD else "9B8765"
def T_of(k):
    x = 0
    for q in range(5):
        if k >> q & 1: x ^= MASK[ORD[1+q]]
    return x
def sb_off(a, base, kreg):
    a(f"s_mov_b32 s{sO}, s{base}")
    for q in range(1, 5):
        a(f"s_bitcmp1_b32 s{kreg}, {q}\ns_cselect_b32 s95, {hex(MASK[ORD[1+q]])}, 0\ns_xor_b32 s{sO}, s{sO}, s95")
def sb_odd(a):
    a(f"s_xor_b32 s{sO}, s{sO}, {hex(MASK[ORD[1]])}")
def sb_const(a, base, k):
    a(f"s_xor_b32 s{sO}, s{base}, {hex(T_of(k))}" if k else f"s_mov_b32 s{sO}, s{base}")
def ring(R, j): return f"v[{R+4*j}:{R+4*j+3}]"
JORD = [o.split("=")[1] for o in OPT if o.startswith("JORD=")]
JORD = JORD[0] if JORD else "4120"
def kvload(a, R, j, srdname):
    off, hi = 0, 0
    for q in range(4):
        if j >> q & 1:
            if JORD[q] == "4": hi = 1
            else: off |= 512 << int(JORD[q])
    a(f"buffer_load_dwordx4 {ring(R,j)}, v{vHI if hi else vLO}, {srdname}, s{sO} offen offset:{off} nt")
def refill_all(a, R, srdname):
    for j in range(16): kvload(a, R, j, srdname)

def k_body(a, R, wait, refill):
    for j in range(16):
        w = wait(j)
        if w is not None: a(f"s_waitcnt vmcnt({w})")
        r = R+4*j
        a(f"v_dot2_f32_bf16 v{P0+j}, v{r}, v{vQ}, 0")
        for i in range(1, 4): a(f"v_dot2_f32_bf16 v{P0+j}, v{r+i}, v{vQ+i}, v{P0+j}")
    if refill: refill()
    for j in range(8):
        a(f"v_add_f32_dpp v{P0+j}, v{P0+j}, v{P0+j} row_ror:8 row_mask:0xf bank_mask:0x3")
    for j in range(8):
        a(f"v_add_f32_dpp v{P0+j}, v{P0+8+j}, v{P0+8+j} row_ror:8 row_mask:0xf bank_mask:0xc")
    for j in range(4):
        a(f"v_add_f32_dpp v{P0+j}, v{P0+j}, v{P0+j} row_shl:4 row_mask:0xf bank_mask:0x5")
    for j in range(4):
        a(f"v_add_f32_dpp v{P0+j}, v{P0+4+j}, v{P0+4+j} row_shr:4 row_mask:0xf bank_mask:0xa")
    for j in range(4):
        a(f"v_add_f32_dpp v{P0+j}, v{P0+j}, v{P0+j} quad_perm:[2,3,0,1] {FULL}")
    a(f"v_cndmask_b32 v{P0}, v{P0}, v{P0+2}, s[84:85]\nv_cndmask_b32 v{P0+1}, v{P0+1}, v{P0+3}, s[84:85]")
    for j in range(2):
        a(f"v_add_f32_dpp v{P0+j}, v{P0+j}, v{P0+j} quad_perm:[1,0,3,2] {FULL}")
    a(f"v_cndmask_b32 v{P0}, v{P0}, v{P0+1}, s[86:87]")
    B16(a, P0, P0+1)
    a(f"v_mov_b32 v{P0+1}, v{P0}\nv_permlane32_swap_b32 v{P0}, v{P0+1}\nv_cvt_pk_bf16_f32 v{vSD}, v{P0}, v{P0+1}")
    a(f"ds_write_b32 v{vSW}, v{vSD}\nv_add_u32 v{vSW}, 64, v{vSW}")

def v_head(a, extra=None):
    a(f"ds_read_b32 v{vSC}, v{vSW}\nv_add_u32 v{vSW}, 64, v{vSW}")
    if extra: extra()
    a("s_waitcnt lgkmcnt(0)")
    a(f"v_lshlrev_b32 v{vT2}, v{vSH}, v{vSC}\nv_and_b32 v{vT2}, 0xffff0000, v{vT2}")
    a(f"v_max_f32_dpp v{vT0}, v{vT2}, v{vT2} row_ror:8 {FULL}")
    for r in (4, 2, 1): a(f"v_max_f32_dpp v{vT0}, v{vT0}, v{vT0} row_ror:{r} {FULL}")
    B32(a, vT0, vT1, "v_max_f32")
    a(f"v_max_f32 v{vT0}, v{vT0}, v{vMX}")
    a(f"v_sub_f32 v{vT1}, v{vMX}, v{vT0}\nv_sub_f32 v{vT2}, v{vT2}, v{vT0}")
    a(f"v_mov_b32 v{vMX}, v{vT0}")
    a(f"v_mul_f32 v{vT1}, s88, v{vT1}\nv_mul_f32 v{vT2}, s88, v{vT2}")
    a(f"v_exp_f32 v{vT1}, v{vT1}\nv_exp_f32 v{vT2}, v{vT2}")
    a(f"v_cvt_pk_bf16_f32 v{vP}, v{vT2}, v{vT2}")
    a(f"v_fma_f32 v{vLS}, v{vLS}, v{vT1}, v{vT2}")
    for r in range(4): a(f"v_mul_f32 v{ACC+r}, v{ACC+r}, v{vT1}")

def v_body(a, R, extra_ops, refill):
    def build(j):
        for r in range(4):
            a(f"v_and_b32_dpp v{AA+4*(j&1)+r}, v{vP}, v{MK+r} row_newbcast:{j} {FULL}")
    build(0)
    for j in range(16):
        a(f"s_waitcnt vmcnt({15 - j + extra_ops})")
        A = AA+4*(j&1)
        a(f"v_mfma_f32_16x16x32_bf16 v[{ACC}:{ACC+3}], v[{A}:{A+3}], {ring(R,j)}, v[{ACC}:{ACC+3}]")
        if j < 15: build(j+1)
    if refill: refill()

def ml_out(a):
    rowall(a, [vLS]); B32(a, vLS, vT0)
    a(f"s_lshl_b32 s8, s3, 2\nv_mov_b32 v{vT2}, s8\nds_write_b32 v{vT2}, v{vMX} offset:{L_M}\nds_write_b32 v{vT2}, v{vLS} offset:{L_L}")
    a(f"v_lshlrev_b32 v{vT1}, 4, v0\nv_mov_b32 v{vT2}, 0")

def xp_load(a):
    a(f"s_lshl_b32 s8, s6, 10\nbuffer_load_dwordx4 v[60:63], v17, {SW}, s8 offen sc1")
def xq_load(a):
    a(f"s_lshl_b32 s8, s{sXI}, 10\nbuffer_load_dwordx2 v[18:19], v17, {SW}, s8 offen offset:4 sc1")
def xr_load(a):
    a(f"s_lshl_b32 s8, s{sXI}, 11\ns_add_u32 s8, s8, {XR}")
    a(f"buffer_load_dwordx4 v[40:43], v17, {SW}, s8 offen sc1\nbuffer_load_dwordx4 v[44:47], v17, {SW}, s8 offen offset:1024 sc1")
def x_check(a, tag, tagregs, load):
    a(f"s_mov_b32 s96, {SPIN}")
    a(f"x_chk_{tag}:")
    a(f"v_cmp_ne_u32 vcc, s{sTAG}, v{tagregs[0]}")
    if len(tagregs) > 1: a(f"v_cmp_ne_u32 s[10:11], s{sTAG}, v{tagregs[1]}\ns_or_b64 vcc, vcc, s[10:11]")
    a(f"s_cbranch_vccz x_ok_{tag}")
    a(f"s_sub_u32 s96, s96, 1\ns_cmp_eq_u32 s96, 0\ns_cbranch_scc1 x_ok_{tag}\ns_sleep 4")
    load(a)
    a(f"s_waitcnt vmcnt(0)\ns_branch x_chk_{tag}")
    a(f"x_ok_{tag}:")
def vote_load(a):
    a(f"buffer_load_dwordx4 v[60:63], v17, {SW}, s12 offen sc1")
def gu_load(a):
    a(f"buffer_load_dwordx2 v[42:43], v18, {SW}, s12 offen sc1\nbuffer_load_dwordx2 v[32:33], v18, {SW}, s12 offen offset:512 sc1")

def tally(a, T):
    for r in range(4): a(f"v_xor_b32 v{T+r}, s{sTAG}, v{60+r}")
    for r in range(4): a(f"v_cmp_gt_u32 s[{60+2*r}:{61+2*r}], 64, v{T+r}")
    for r in range(4): a(f"v_and_b32 v{T+r}, 1, v{60+r}\nv_and_b32 v{T+4+r}, 2, v{60+r}")
    for r in range(4): a(f"v_lshlrev_b32 v{T+4+r}, 9, v{T+4+r}")
    for r in range(4): a(f"v_or3_b32 v{T+r}, v{T+r}, v{T+4+r}, s77")
    for r in range(4): a(f"v_cndmask_b32 v{T+r}, 0, v{T+r}, s[{60+2*r}:{61+2*r}]")
    a(f"v_add3_u32 v{T}, v{T}, v{T+1}, v{T+2}\nv_add_u32 v{T}, v{T}, v{T+3}")
    a("s_andn2_b32 s8, s2, 4\ns_lshr_b32 s8, s8, 2")
    for r in range(4): a(f"v_readlane_b32 s{72+r}, v{60+r}, s8")
    waveall(a, T, T+1, "v_add_u32")
    a("s_bitcmp1_b32 s2, 0\ns_cselect_b32 s72, s73, s72\ns_cselect_b32 s74, s75, s74\ns_bitcmp1_b32 s2, 1\ns_cselect_b32 s72, s74, s72")
    a(f"v_readfirstlane_b32 s8, v{T}")
    if STAMP: a("v_writelane_b32 v224, s8, 15")
    a("s_lshr_b32 s73, s8, 20\ns_and_b32 s74, s8, 0x3ff\ns_bfe_u32 s75, s8, 0xa000a")
    a("s_bfe_u32 s9, s72, 0x10004\ns_lshl_b32 s9, s9, 2")
    a("s_cmp_gt_u32 s74, 128\ns_cselect_b32 s8, 1, 0\ns_or_b32 s9, s9, s8\ns_cmp_gt_u32 s75, 128\ns_cselect_b32 s8, 2, 0\ns_or_b32 s9, s9, s8")
    a("s_sub_u32 s8, s73, s74\ns_add_u32 s8, s8, 1\ns_max_u32 s74, s74, s8\ns_sub_u32 s8, s73, s75\ns_add_u32 s8, s8, 1\ns_max_u32 s75, s75, s8\ns_min_u32 s74, s74, s75")
    a(f"s_xor_b32 s72, s72, s{sTAG}\ns_cmp_lt_u32 s72, 64\ns_cselect_b32 s74, s74, 0\ns_cmp_gt_u32 s74, 128")

def tagsel(a):
    for r in range(4): a(f"s_mov_b32 s{72+r}, {hex(0x07060500+r)}")
    a("s_mov_b32 s76, 0x0c0c0400\ns_mov_b32 s77, 0x04000c0c")
def tagbytes(a, R):
    for r in range(4): a(f"v_perm_b32 v{R+r}, v{R+r}, v{vTAG}, s{72+r}")
def tagbad(a, d, R, t):
    a(f"v_perm_b32 v{d}, v{R+1}, v{R}, s76\nv_perm_b32 v{t}, v{R+3}, v{R+2}, s77")
    a(f"v_or_b32 v{d}, v{d}, v{t}\nv_xor_b32 v{d}, v{d}, v{vTAG}")

def kernel():
    a = Asm(); K = NAME + "_kernel"
    a(f".globl {K}\n.p2align 8\n.type {K},@function\n{K}:")
    a("s_cmp_ge_u32 s2, 256\ns_cbranch_scc1 main_done")
    stamp(a, 0)
    a("s_load_dwordx16 s[16:31], s[0:1], 0\ns_load_dwordx8 s[32:39], s[0:1], 64\ns_memtime s[100:101]")
    a("v_lshrrev_b32 v1, 6, v0\nv_readfirstlane_b32 s3, v1\nv_and_b32 v1, 63, v0")
    a("s_getpc_b64 s[98:99]\nipf_pc:\ns_lshr_b32 s5, s2, 3\ns_lshl_b32 s5, s5, 10\ns_min_u32 s5, s5, code_end-ipf_pc-1024\nv_lshl_add_u32 v63, v1, 4, s5")
    a("s_cmp_lg_u32 s3, 3\ns_cbranch_scc1 noipf\nglobal_load_dwordx4 v[28:31], v63, s[98:99]\nnoipf:")
    a("s_lshr_b32 s5, s2, 4\ns_and_b32 s6, s2, 15")
    a("v_lshlrev_b32 v17, 4, v1")
    a("v_lshrrev_b32 v18, 3, v1\nv_and_b32 v14, 7, v1\nv_lshlrev_b32 v14, 4, v14\nv_lshl_add_u32 v19, v18, 13, v14")
    a("v_mul_u32_u24 v47, 3584, v18\nv_add_u32 v47, v47, v14")
    a(f"v_mov_b32 v15, {hex(OOB)}\nv_cmp_gt_u32 vcc, 32, v1\nv_cndmask_b32 v14, v15, v19, vcc")
    a("v_cmp_gt_u32 vcc, 48, v1\nv_cndmask_b32 v16, v15, v47, vcc")
    a("v_lshlrev_b32 v18, 1, v18")
    a(f"v_and_b32 v{vLO}, 31, v1\nv_lshlrev_b32 v{vLO}, 4, v{vLO}\nv_lshrrev_b32 v{vHI}, 5, v1\nv_lshlrev_b32 v{vHI}, 15, v{vHI}\nv_add_u32 v{vLO}, v{vLO}, v{vHI}\nv_add_u32 v{vHI}, 0x10000, v{vLO}")
    a("s_bfe_u32 s7, s2, 0x20002\ns_mul_i32 s8, s7, 112\ns_mul_i32 s9, s3, 28\ns_add_u32 s8, s8, s9\ns_lshl_b32 s9, s8, 1")
    a("s_lshl_b32 s8, s8, 13\ns_lshl_b32 s10, s5, 9\ns_add_u32 s8, s8, s10\ns_and_b32 s10, s2, 3\ns_lshl_b32 s10, s10, 7\ns_add_u32 s8, s8, s10")
    a("s_lshr_b32 s11, s2, 3\ns_and_b32 s13, s2, 7")
    a(f"s_mul_i32 s12, s13, 56\ns_mul_i32 s14, s3, 14\ns_add_u32 s12, s12, s14\ns_mul_i32 s14, s12, 3584\ns_lshl_b32 s12, s12, 1\ns_lshl_b32 s15, s11, 7\ns_add_u32 s14, s14, s15")
    a("s_lshl_b32 s83, s11, 23")
    a("s_lshr_b32 s10, s2, 1\ns_lshr_b32 s15, s2, 7\ns_xor_b32 s10, s10, s15\ns_andn2_b32 s10, 1, s10\ns_lshl_b32 s10, s10, 12\ns_or_b32 s83, s83, s10")
    a("s_lshr_b32 s10, s2, 6\ns_xor_b32 s10, s10, s2\ns_and_b32 s10, s10, 1\ns_lshl_b32 s10, s10, 14\ns_or_b32 s83, s83, s10")
    if opt("XS", 0): a(f"s_xor_b32 s83, s83, {hex((opt('XS', 0) & 1) << 14 | (opt('XS', 0) >> 1) << 12)}")
    a(f"s_bitcmp1_b32 s3, 0\ns_cselect_b32 s10, {hex(MASK[ORD[0]])}, 0\ns_xor_b32 s83, s83, s10")
    a(f"s_bitcmp1_b32 s3, 1\ns_cselect_b32 s10, {hex(T_of(2))}, 0\ns_xor_b32 s83, s83, s10")
    a("s_bfe_u32 s4, s2, 0x10002\ns_xor_b32 s10, s4, s11\ns_and_b32 s10, s10, 1")
    a(f"s_lshl_b32 s10, s10, 13\ns_xor_b32 s{sOK}, s83, s10")
    if SYM:
        a("; the first blocks are spread over all stacks: class (b & 3) ^ g")
        for bit, sh in ((SYMB, 14), (SYMB+1, 12))[:SYM]:
            a(f"s_bfe_u32 s10, s11, {hex(0x10000 | bit)}\ns_lshl_b32 s10, s10, {sh}\ns_xor_b32 s{sOK}, s{sOK}, s10")
    a("s_lshl_b32 s74, s11, 23\ns_and_b32 s75, s2, 3\ns_lshl_b32 s75, s75, 21\ns_or_b32 s74, s74, s75")
    a("s_bfe_u32 s75, s2, 0x10002\ns_lshl_b32 s75, s75, 11\ns_or_b32 s74, s74, s75\ns_or_b32 s74, s74, 0x40000")
    a("s_and_b32 s76, s3, 1\ns_lshl_b32 s75, s76, 13\ns_or_b32 s74, s74, s75")
    a("s_getreg_b32 s79, hwreg(HW_REG_XCC_ID)\ns_bfe_u32 s79, s79, 0x10002")
    a("s_xor_b32 s76, s76, s79\ns_xor_b32 s76, s76, s2\ns_and_b32 s76, s76, 1")
    a(f"s_mov_b32 s10, {EPO}")
    a("s_waitcnt lgkmcnt(0)")
    if "orc" in OPT:
        a("s_add_u32 s26, s10, 256\ns_load_dword s26, s[38:39], s26\ns_waitcnt lgkmcnt(0)")
        a(f"s_xor_b32 s27, s79, s26\ns_and_b32 s27, s27, 1\ns_lshl_b32 s27, s27, 13\ns_xor_b32 s{sOK}, s27, s83")
    sb_const(a, sOK, 0)
    a("s_cmp_lt_u32 s3, 2")
    a("s_cselect_b32 s72, s18, s20\ns_cselect_b32 s73, s19, s21")
    a("s_lshr_b32 s100, s100, 3\ns_mul_i32 s100, s100, 0x9e3779b1\ns_lshr_b32 s100, s100, 8\ns_and_b32 s100, s100, 0x1bd780\ns_or_b32 s74, s74, s100\ns_xor_b32 s75, s74, 0x400")
    a(f"s_load_dword s78, s[72:73], s75\ns_load_dword s{sTAG}, s[38:39], s10")
    srd(a, 40, 18, 1 << 28); srd(a, 52, 16, 896); srd(a, 56, 22, 448*8192)
    a("buffer_load_dwordx4 v[60:63], v17, s[52:55], 0 offen")
    for n in range(4):
        a(f"buffer_load_ushort v{40+n}, v18, s[52:55], s9 offen offset:{16*n}")
    for n in range(4):
        a(f"buffer_load_dwordx4 v[{160+4*n}:{163+4*n}], v{19 if n<3 else 14}, s[56:59], s8 offen nt")
        if n < 3: a(f"s_add_u32 s8, s8, {8*8192}")
    def kpre(lo, hi):
        for i in range(lo, hi):
            if i == 16: sb_const(a, sOK, 1)
            kvload(a, RA if i < 16 else RB, i % 16, SK)
    a("s_barrier")
    kpre(0, B1)
    srd(a, 60, 28, 448*3584); srd(a, 64, 30, 448*3584); srd(a, 68, 32, 1792*896)
    srd(a, 44, 20, 1 << 28); srd(a, 48, 38, WSSZ)
    stamp(a, 1)
    a(f"s_lshl_b32 s8, s5, 13\ns_add_u32 s8, s8, {QP}\ns_lshl_b32 s9, s3, 9\ns_add_u32 s15, s8, s9")
    a("s_lshl_b32 s9, s7, 11\ns_add_u32 s8, s8, s9\ns_and_b32 s9, s2, 3\ns_lshl_b32 s9, s9, 9\ns_add_u32 s7, s8, s9")
    a(f"v_and_b32 v13, 7, v1\nv_and_b32 v10, 56, v1\nv_lshl_add_u32 v11, v13, 6, v10\nv_lshl_add_u32 v46, v13, 10, v10")
    a(f"v_mul_u32_u24 v{vRP}, {VSTR}, v1\nv_cmp_gt_u32 vcc, 8, v1\nv_cndmask_b32 v{vRP}, v15, v{vRP}, vcc")
    a(f"s_cmp_eq_u32 s3, 0\ns_cselect_b64 vcc, -1, 0\nv_cndmask_b32 v{vSC}, v15, v11, vcc")
    a(f"v_mov_b32 v12, 0\nds_write_b32 v12, v12 offset:{L_V}")
    a(f"s_waitcnt vmcnt({B1+8})\nv_readfirstlane_b32 s77, v60\ns_lshl_b32 s77, s77, 16")
    vM, vS, vR = 20, 21, 22
    ln_stats2(a, 60, 32, vM, vS, vR, 12, 13, 11, 23, 77)
    a(f"s_waitcnt vmcnt({B1+4})")
    center_rows(a, [40, 41, 42, 43], vM)
    scale_rows(a, [40, 41, 42, 43], [24, 25, 26, 27], vS, vR)
    a(f"s_waitcnt vmcnt({B1})")
    stamp(a, 8)
    for n in range(4): gemv8(a, 32, 160+4*n, 24+n, 40+n, n == 0)
    red8(a, 32)
    a(f"v_lshlrev_b32 v12, 2, v0\nds_write_b32 v12, v32 offset:{L_P}\nv_lshlrev_b32 v12, 2, v1")
    a(f"s_waitcnt lgkmcnt(0)\ns_barrier")
    a(f"ds_read2st64_b32 v[32:33], v12 offset0:{L_P//256} offset1:{L_P//256+1}\nds_read2st64_b32 v[34:35], v12 offset0:{L_P//256+2} offset1:{L_P//256+3}")
    a(f"s_add_u32 s{sTAG}, s{sTAG}, 0x9e3779b9\nv_mov_b32 v{vTAG}, s{sTAG}")
    a(f"s_waitcnt lgkmcnt(0)\nv_add_f32 v32, v32, v33\nv_add_f32 v34, v34, v35\nv_add_f32 v{vSD}, v32, v34")
    a(f"buffer_store_dwordx2 v[{vSD}:{vSD+1}], v{vSC}, {SW}, s7 offen sc1")
    stamp(a, 9)
    for n in range(2):
        a(f"buffer_load_ushort v{44+n}, v18, s[52:55], s12 offen offset:{16*n}")
    for n in range(2):
        a(f"buffer_load_dwordx4 v[{176+4*n}:{179+4*n}], v{47 if n==0 else 16}, s[60:63], s14 offen nt")
        a(f"buffer_load_dwordx4 v[{184+4*n}:{187+4*n}], v{47 if n==0 else 16}, s[64:67], s14 offen nt")
        if n == 0: a(f"s_add_u32 s14, s14, {8*3584}")
    kpre(B1, BA)
    for i in range(2):
        a("s_memtime s[100:101]\ns_waitcnt lgkmcnt(0)")
        a("s_load_dword s78, s[72:73], s74\ns_waitcnt lgkmcnt(0)\ns_memtime s[96:97]\ns_waitcnt lgkmcnt(0)")
        a(f"s_sub_u32 s{8+i}, s96, s100")
        if i == 0:
            a("s_xor_b32 s74, s74, 0x2000"); kpre(BA, B2)
    a("s_sub_i32 s8, s8, s9\ns_sub_i32 s9, 0, s8\ns_cmp_eq_u32 s76, 0\ns_cselect_b32 s8, s8, s9")
    a("s_max_i32 s8, s8, -2047\ns_min_i32 s8, s8, 2047\ns_add_i32 s8, s8, 2048\ns_lshr_b32 s9, s3, 1\ns_mul_i32 s9, s9, 13\ns_lshl_b32 s8, s8, s9")
    a(f"s_or_b32 s8, s8, 0x20000000\nv_mov_b32 v12, s8\nv_mov_b32 v13, 0\ns_mov_b64 exec, 1\nds_add_rtn_u32 v13, v13, v12 offset:{L_V}\ns_mov_b64 exec, -1")
    a(f"s_lshl_b32 s10, s79, 4\ns_andn2_b32 s9, s{sTAG}, 63\ns_or_b32 s10, s10, s9\ns_lshl_b32 s9, s2, 2\ns_add_u32 s9, s9, {VOTE}")
    a("s_waitcnt lgkmcnt(0)\nv_readfirstlane_b32 s72, v13\ns_add_u32 s72, s72, s8\ns_bitcmp0_b32 s72, 31\ns_cbranch_scc1 novote")
    a("s_and_b32 s73, s72, 0x1fff\ns_cmp_gt_u32 s73, 4096\ns_cselect_b32 s73, 1, 0\ns_or_b32 s10, s10, s73")
    a("s_bfe_u32 s73, s72, 0xd000d\ns_cmp_gt_u32 s73, 4096\ns_cselect_b32 s73, 2, 0\ns_or_b32 s10, s10, s73")
    a(f"v_mov_b32 v12, s10\nbuffer_store_dword v12, v{vRP}, {SW}, s9 offen sc1")
    a("novote:")
    def gather():
        for rb in range(4):
            if rb == 2: a("s_add_u32 s9, s15, 4096")
            a(f"buffer_load_dwordx2 v[{32+2*rb}:{33+2*rb}], v18, {SW}, s{15 if rb<2 else 9} offen offset:{2048*(rb&1)} sc1")
    a("v_lshlrev_b32 v18, 3, v1"); gather(); kpre(B2, B3)
    a(f"s_and_b32 s10, s3, 1\ns_lshl_b32 s9, s10, 11\ns_add_u32 s9, s9, {L_S}\nv_lshl_add_u32 v{vSB}, v1, 2, s9")
    a(f"s_lshr_b32 s8, s3, 1\ns_lshl_b32 s8, s8, 7\ns_add_u32 s9, s9, s8\nv_and_b32 v{vSW}, 15, v1\nv_lshl_add_u32 v{vSW}, v{vSW}, 2, s9")
    a(f"s_lshl_b32 s{sXO}, s2, 1\ns_add_u32 s{sXO}, s{sXO}, s10\ns_xor_b32 s{sXI}, s{sXO}, 8")
    a(f"v_cmp_gt_u32 vcc, 32, v1\nv_cndmask_b32 v{vSH}, 0, 16, vcc")
    a("s_mov_b32 s84, 0xcccccccc\ns_mov_b32 s85, 0xcccccccc\ns_mov_b32 s86, 0xaaaaaaaa\ns_mov_b32 s87, 0xaaaaaaaa")
    a(f"s_mov_b32 s88, {fl(CEXP)}\ns_mov_b32 s77, 0x100000")
    a(f"v_lshrrev_b32 v{vPO}, 5, v1\nv_lshlrev_b32 v{vPO}, 14, v{vPO}\nv_bfe_u32 v12, v1, 1, 3\nv_lshlrev_b32 v12, 11, v12\nv_add_u32 v{vPO}, v{vPO}, v12")
    a(f"v_and_b32 v12, 1, v1\nv_lshlrev_b32 v12, 5, v12\nv_add_u32 v{vPO}, v{vPO}, v12\nv_and_b32 v12, 16, v1\nv_add_u32 v{vPO}, v{vPO}, v12")
    a(f"v_lshlrev_b32 v12, 11, v1\nv_cmp_gt_u32 vcc, 16, v1\nv_cndmask_b32 v{vPM}, v15, v12, vcc")
    yaddr(a, vY, vY3, 1, 12, 13, YS)
    a(f"s_lshl_b32 s{sPO}, s5, 15\ns_lshl_b32 s10, s6, 7\ns_add_u32 s{sPO}, s{sPO}, s10\ns_add_u32 s{sPO}, s{sPO}, {OIN}\ns_add_u32 s{sPM}, s{sPO}, 64")
    a(f"s_lshl_b32 s{sYA}, s2, 4\ns_add_u32 s{sYA}, s{sYA}, {YA}")
    a(f"s_lshl_b32 s14, s11, 13\ns_lshl_b32 s10, s13, 6\ns_add_u32 s14, s14, s10\ns_lshl_b32 s10, s3, 9\ns_add_u32 s14, s14, s10\ns_add_u32 s14, s14, {GU-512}")
    a(f"s_cmp_lt_u32 s11, 28\ns_cselect_b32 s10, 0, {hex(OOB)}\ns_add_u32 s9, s3, 3\ns_bitcmp1_b32 s9, 1\ns_cselect_b32 s10, {hex(OOB)}, s10\nv_or_b32 v46, s10, v46")
    a(f"s_and_b32 s12, s11, 7\ns_mul_i32 s12, s12, {VSTR}\ns_add_u32 s12, s12, {VOTE}")
    a(f"s_waitcnt vmcnt({B3-B1+8})")
    center_rows(a, [44, 45], vM)
    scale_rows(a, [44, 45], [12, 13], vS, vR)
    a(f"s_waitcnt vmcnt({B3-B1+4})")
    aG, aU = 24, 192
    for n in range(2):
        gemv8(a, aG, 176+4*n, 12+n, 44+n, n == 0)
        gemv8(a, aU, 184+4*n, 12+n, 44+n, n == 0)
    stamp(a, 10)
    red8(a, aG); red8(a, aU)
    a(f"v_lshlrev_b32 v12, 2, v0\nds_write_b32 v12, v{aG} offset:{L_P+1024}\nds_write_b32 v12, v{aU} offset:{L_P+2048}")
    mask1(a, MK, 1, vT0, vT1)
    def check():
        a(f"v_xor_b32 v40, s{sTAG}, v33\nv_xor_b32 v41, s{sTAG}, v35\nv_xor_b32 v42, s{sTAG}, v37\nv_xor_b32 v43, s{sTAG}, v39")
        a("v_or3_b32 v40, v40, v41, v42\nv_or_b32 v40, v40, v43\nv_cmp_ne_u32 vcc, 0, v40\ns_cbranch_vccz g_ok")
    a(f"s_mov_b32 s78, 0\ns_waitcnt vmcnt({B3-B2})")
    check()
    a("s_mov_b32 s78, 1"); gather(); kpre(B3, B4)
    a(f"s_waitcnt vmcnt({B4-B3})")
    check()
    a("s_mov_b32 s78, 2"); gather(); kpre(B4, 32)
    a(f"s_mov_b32 s96, {SPIN}\ns_waitcnt vmcnt({32-B4})")
    a("g_spin:")
    check()
    a("s_sub_u32 s96, s96, 1\ns_cmp_eq_u32 s96, 0\ns_cbranch_scc1 g_ok\ns_sleep 8")
    gather()
    a("s_waitcnt vmcnt(0)\ns_branch g_spin")
    a("g_ok:")
    stamp(a, 11)
    a("v_add_f32 v32, v32, v34\nv_add_f32 v36, v36, v38\nv_add_f32 v32, v32, v36")
    a("v_cvt_pk_bf16_f32 v32, v32, v32\nv_lshlrev_b32 v33, 1, v0\nds_write_b16 v33, v32")
    a("v_and_b32 v34, 31, v1\nv_lshlrev_b32 v34, 4, v34")
    a("s_max_u32 s8, s3, 1\ns_min_u32 s8, s8, 2\ns_lshl_b32 s8, s8, 10\nv_lshl_add_u32 v35, v1, 2, s8")
    a(f"s_waitcnt lgkmcnt(0)\ns_barrier\nds_read_b128 v[{vQ}:{vQ+3}], v34")
    a(f"ds_read2st64_b32 v[40:41], v35 offset0:{L_P//256} offset1:{L_P//256+1}\nds_read2st64_b32 v[42:43], v35 offset0:{L_P//256+2} offset1:{L_P//256+3}")
    a("s_cmp_eq_u32 s78, 2\ns_cbranch_scc1 g_p2\ns_cmp_eq_u32 s78, 1\ns_cbranch_scc1 g_p1")
    kpre(B3, B4)
    a("g_p1:"); kpre(B4, 32)
    a("g_p2:")
    a(f"s_waitcnt lgkmcnt(0)\nv_add_f32 v40, v40, v41\nv_add_f32 v42, v42, v43\nv_add_f32 v{vSD}, v40, v42")
    a(f"buffer_store_dwordx2 v[{vSD}:{vSD+1}], v46, {SW}, s14 offen sc1")
    a(f"v_mov_b32 v{vMX}, 0xff800000\nv_mov_b32 v{vLS}, 0")
    for r in range(4): a(f"v_mov_b32 v{ACC+r}, 0")
    stamp(a, 2)
    a("s_cmp_lt_u32 s3, 2\ns_cbranch_scc1 streamer")
    k_body(a, RA, lambda j: None if j < B2 else 32-j, None)
    k_body(a, RB, lambda j: None if 16+j < B2 else 16-j, None)
    a("s_waitcnt lgkmcnt(0)\ns_barrier\ns_branch main_fin")
    a("streamer:")
    sb_const(a, sOK, 4)
    vote_load(a)
    k_body(a, RA, lambda j: None if j < B2 else 33-j, lambda: refill_all(a, RA, SK))
    stamp(a, 13)
    sb_odd(a)
    k_body(a, RB, lambda j: None if 16+j < B2 else 33-j, lambda: refill_all(a, RB, SK))
    stamp(a, 14)
    a(f"v_add_u32 v{vSW}, 128, v{vSW}\ns_barrier")
    a(f"s_mov_b32 s96, {SPIN}\ns_waitcnt vmcnt(32)")
    a("vt_chk:")
    tally(a, 32)
    a("s_cbranch_scc0 vt_spin")
    a("vt_ok:")
    a("s_lshr_b32 s8, s9, 2\ns_xor_b32 s4, s4, s8")
    a(f"s_lshr_b32 s8, s9, 1\ns_xor_b32 s8, s8, s4\ns_and_b32 s8, s8, 1\ns_lshl_b32 s8, s8, 13\ns_xor_b32 s{sOV}, s83, s8")
    a(f"s_xor_b32 s{sXF}, s{sOK}, s{sOV}")
    a(f"s_bfe_u32 s8, s{sXF}, 0x1000e\ns_lshl_b32 s8, s8, 1\ns_xor_b32 s6, s{sXO}, s8\ns_bfe_u32 s8, s{sXF}, 0x1000c\ns_lshl_b32 s8, s8, 2\ns_xor_b32 s6, s6, s8")
    a(f"s_bfe_u32 s8, s{sXF}, 0x1000d\ns_lshl_b32 s8, s8, 3\ns_xor_b32 s6, s6, s8\ns_cmp_lg_u32 s6, s{sXO}\ns_cselect_b32 s{sXF}, 0x2000, 0")
    a(f"s_xor_b32 s8, s9, s4\ns_and_b32 s8, s8, 1\ns_lshl_b32 s8, s8, 13\ns_xor_b32 s{sOK}, s83, s8")
    a(f"s_xor_b32 s8, s{sOK}, s{sOV}\ns_lshl_b32 s8, s8, 1\ns_or_b32 s{sXF}, s{sXF}, s8")
    if opt("XV", 0): a(f"s_xor_b32 s{sOV}, s{sOV}, {hex((opt('XV', 0) & 1) << 14 | (opt('XV', 0) >> 1) << 12)}")
    a(f"s_mov_b32 s{sK}, 6")
    a("k_loop:")
    sb_off(a, sOK, sK)
    k_body(a, RA, lambda j: 31-j, lambda: refill_all(a, RA, SK))
    sb_odd(a)
    k_body(a, RB, lambda j: 31-j, lambda: refill_all(a, RB, SK))
    if STAMP:
        a(f"s_cmp_lg_u32 s{sK}, 6\ns_cbranch_scc1 k_st"); stamp(a, 12); a("k_st:")
    a(f"s_cmp_lg_u32 s{sK}, 8\ns_cbranch_scc1 k_next\ns_cmp_eq_u32 s{sXF}, 0\ns_cbranch_scc1 k_next")
    a(f"s_waitcnt lgkmcnt(0)\nds_read2st64_b32 v[24:25], v{vSB} offset0:0 offset1:1\nv_mov_b32 v26, s{sTAG}\nv_mov_b32 v27, s{sTAG}\ns_lshl_b32 s8, s{sXO}, 10\ns_waitcnt lgkmcnt(0)")
    a(f"buffer_store_dwordx4 v[24:27], v17, {SW}, s8 offen sc1")
    a("k_next:")
    a(f"s_add_u32 s{sK}, s{sK}, 2\ns_cmp_lt_u32 s{sK}, 32\ns_cbranch_scc1 k_loop")
    sb_const(a, sOV, 0)
    a(f"s_bitcmp0_b32 s{sXF}, 13\ns_cbranch_scc1 t_nop1")
    xp_load(a)
    a(f"t_nop1:\ns_bitcmp0_b32 s{sXF}, 14\ns_cbranch_scc1 t_noq1")
    xq_load(a)
    a("t_noq1:")
    k_body(a, RA, lambda j: 31-j, lambda: refill_all(a, RA, SV))
    sb_odd(a)
    k_body(a, RB, lambda j: 31-j, lambda: refill_all(a, RB, SV))
    a(f"v_subrev_u32 v{vSW}, 2048, v{vSW}")
    a(f"s_bitcmp0_b32 s{sXF}, 14\ns_cbranch_scc1 t_nor")
    a(f"s_waitcnt lgkmcnt(0)\nds_read2st64_b32 v[24:25], v{vSB} offset0:2 offset1:3\nds_read_b32 v26, v{vSB} offset:1024\nds_read2st64_b32 v[28:29], v{vSB} offset0:5 offset1:6\nds_read_b32 v30, v{vSB} offset:1792")
    a(f"v_mov_b32 v27, s{sTAG}\nv_mov_b32 v31, s{sTAG}\ns_lshl_b32 s8, s{sXO}, 11\ns_add_u32 s8, s8, {XR}\ns_waitcnt lgkmcnt(0)")
    a(f"buffer_store_dwordx4 v[24:27], v17, {SW}, s8 offen sc1\nbuffer_store_dwordx4 v[28:31], v17, {SW}, s8 offen offset:1024 sc1")
    a("t_nor:")
    a(f"s_bitcmp0_b32 s{sXF}, 14\ns_cbranch_scc1 t_noq2")
    a("s_waitcnt vmcnt(32)")
    x_check(a, "q", [19], xq_load)
    a(f"s_mov_b32 exec_lo, 0\nds_write_b32 v{vSB}, v18 offset:256\ns_mov_b32 exec_lo, -1")
    a(f"t_noq2:\ns_bitcmp0_b32 s{sXF}, 13\ns_cbranch_scc1 t_nop2")
    a("s_waitcnt vmcnt(32)")
    x_check(a, "p", [63], xp_load)
    a(f"ds_write_b32 v{vSB}, v60\ns_mov_b32 exec_hi, 0\nds_write_b32 v{vSB}, v61 offset:256\ns_mov_b32 exec_hi, -1")
    a("t_nop2:")
    a("; ---- V phase")
    a(f"s_mov_b32 s{sK}, 2")
    stamp(a, 3)
    a("v_loop:")
    sb_off(a, sOV, sK)
    a(f"s_bitcmp0_b32 s{sXF}, 14\ns_cbranch_scc1 v_go\ns_cmp_eq_u32 s{sK}, 8\ns_cbranch_scc1 v_xr1\ns_cmp_eq_u32 s{sK}, 10\ns_cbranch_scc1 v_xr2")
    a("v_go:")
    v_head(a)
    v_body(a, RA, 16, lambda: refill_all(a, RA, SV))
    sb_odd(a)
    v_head(a)
    v_body(a, RB, 16, lambda: refill_all(a, RB, SV))
    a(f"s_add_u32 s{sK}, s{sK}, 2\ns_cmp_lt_u32 s{sK}, 32\ns_cbranch_scc1 v_loop")
    tagsel(a)
    a("s_cmp_eq_u32 s3, 0\ns_cbranch_scc1 v_last0")
    v_head(a)
    v_body(a, RA, 16, None)
    v_head(a); ml_out(a)
    v_body(a, RB, 0, None)
    a("s_branch v_end")
    a("v_last0:")
    srd(a, 52, 24, 4096*896)
    a("v_lshrrev_b32 v46, 4, v1\nv_mul_u32_u24 v19, 1792, v46\nv_and_b32 v18, 15, v1\nv_lshlrev_b32 v18, 4, v18\nv_lshl_add_u32 v46, v19, 1, v18\nv_add_u32 v19, v19, v18")
    a("v_and_b32 v18, 7, v1\nv_lshlrev_b32 v18, 6, v18\nv_and_b32 v47, 56, v1\nv_add_u32 v18, v18, v47")
    a(f"s_mul_i32 s10, s2, {16*896}\ns_min_u32 s14, s2, 223\ns_mul_i32 s14, s14, {8*896}\ns_lshl_b32 s12, s2, 10\ns_add_u32 s12, s12, {GU}")
    def wdo():
        gu_load(a)
        for i in range(8):
            a(f"buffer_load_dwordx4 {ring(RD,i)}, v19, s[68:71], s14 offen offset:{(i//4)*896+(i%4)*256} nt")
        for j in range(16):
            a(f"buffer_load_dwordx4 {ring(RA,j)}, v46, s[52:55], s10 offen offset:{(j//4)*896+(j%4)*256} nt")
    v_head(a)
    v_body(a, RA, 16, wdo)
    v_head(a); ml_out(a)
    v_body(a, RB, 26, None)
    a("v_end:")
    stamp(a, 4)
    a(f"ds_write_b128 v{vT1}, v[{ACC}:{ACC+3}] offset:{L_O}")
    a("s_waitcnt lgkmcnt(0)\ns_barrier")
    a("s_cmp_eq_u32 s3, 0\ns_cbranch_scc1 tail0")
    a("s_cmp_ge_u32 s2, 112\ns_cbranch_scc1 main_fin")
    reducer(a)
    a("s_branch main_fin")
    a("tail0:")
    tail0(a)
    a("main_fin:")
    stamp(a, 7); stamp_out(a)
    a("main_done:\ns_endpgm")
    a("v_xr1:"); xr_load(a); a("s_branch v_go")
    a("v_xr2:\ns_waitcnt vmcnt(32)")
    x_check(a, "r", [43, 47], xr_load)
    a(f"ds_write2st64_b32 v{vSB}, v40, v41 offset0:2 offset1:3\nds_write_b32 v{vSB}, v42 offset:1024")
    a(f"ds_write2st64_b32 v{vSB}, v44, v45 offset0:5 offset1:6\nds_write_b32 v{vSB}, v46 offset:1792\ns_branch v_go")
    a("vt_spin:\ns_sub_u32 s96, s96, 1\ns_cmp_eq_u32 s96, 0\ns_cbranch_scc1 vt_ok\ns_sleep 8")
    vote_load(a)
    a("s_waitcnt vmcnt(0)\ns_branch vt_chk")
    return a.text() + "code_end:\n", kd(K, 232 if STAMP else 224, 102)

def reducer(a):
    a("; ---- wave 1 of workgroups 0..111: out[4b..4b+3] = x + sum of the 256 partials")
    srd(a, 52, 16, 896); srd(a, 56, 34, 896)
    a(f"v_mov_b32 v18, {hex(OOB)}\ns_mul_i32 s11, s2, {YS}\ns_add_u32 s11, s11, {YA}\ns_lshl_b32 s13, s2, 3")
    a("v_lshrrev_b32 v2, 4, v1\nv_lshlrev_b32 v2, 1, v2\nv_and_b32 v3, 15, v1\nv_cmp_eq_u32 vcc, 0, v3\nv_cndmask_b32 v3, v18, v2, vcc")
    a("buffer_load_ushort v4, v2, s[52:55], s13 offen")
    for n in range(4): a(f"v_mov_b32 v{10+n}, v17\ns_mov_b64 s[{60+2*n}:{61+2*n}], -1")
    a(f"s_mov_b32 s96, {SPIN}")
    a("red_spin:")
    for n in range(4):
        a(f"buffer_load_dwordx4 v[{80+4*n}:{83+4*n}], v{10+n}, {SW}, s11 offen offset:{1024*n} sc1")
    a("s_waitcnt vmcnt(0)")
    for n in range(4):
        R = 80+4*n
        a(f"s_mov_b64 exec, s[{60+2*n}:{61+2*n}]\ns_cbranch_execz red_skip{n}")
        tagbad(a, 40, R, 41)
        a(f"v_cmp_eq_u32 vcc, 0, v40\ns_andn2_b64 s[{60+2*n}:{61+2*n}], exec, vcc\ns_and_b64 exec, exec, vcc")
        for r in range(4): a(f"v_and_b32 v{64+4*n+r}, 0xffffff00, v{R+r}")
        a(f"v_mov_b32 v{10+n}, v18")
        a(f"red_skip{n}:")
    a("s_mov_b64 exec, -1")
    a("s_or_b64 s[80:81], s[60:61], s[62:63]\ns_or_b64 s[82:83], s[64:65], s[66:67]\ns_or_b64 s[80:81], s[80:81], s[82:83]\ns_cbranch_scc0 red_ok")
    a("s_sub_u32 s96, s96, 1\ns_cmp_lg_u32 s96, 0\ns_cbranch_scc1 red_spin")
    a("red_ok:")
    stamp(a, 6)
    for r in range(4):
        a(f"v_add_f32 v{64+r}, v{64+r}, v{68+r}\nv_add_f32 v{72+r}, v{72+r}, v{76+r}")
    for r in range(4): a(f"v_add_f32 v{64+r}, v{64+r}, v{72+r}")
    multiT(a, "v_permlane32_swap_b32", [(64, 66), (65, 67)])
    T16(a, 64, 65)
    rowall(a, [64])
    a("v_lshlrev_b32 v4, 16, v4\nv_add_f32 v64, v64, v4\nv_cvt_pk_bf16_f32 v64, v64, v64")
    a("buffer_store_short v64, v3, s[56:59], s13 offen")
    a("s_cmp_lg_u32 s2, 0\ns_cbranch_scc1 main_fin")
    a(f"s_mov_b32 s8, {EPO}\nv_cmp_eq_u32 vcc, 0, v1\nv_cndmask_b32 v3, v18, v1, vcc\nbuffer_store_dword v{vTAG}, v3, {SW}, s8 offen")

def tail0(a):
    a("; ---- wave 0: merge the two streams, hand 16-column slices of (m, l, o) to the 16 workgroups of the head")
    a(f"ds_read_b64 v[28:29], v{vT2} offset:{L_M}\nds_read_b64 v[36:37], v{vT2} offset:{L_L}")
    a(f"ds_read_b128 v[160:163], v{vT1} offset:{L_O+1024}")
    a("v_and_b32 v44, 15, v1\nv_lshlrev_b32 v45, 7, v44\nv_and_b32 v47, 48, v1\nv_add_u32 v44, v45, v47")
    a(f"s_lshl_b32 s15, s2, 11\ns_add_u32 s15, s15, {OIN}")
    a("s_waitcnt lgkmcnt(1)")
    a(f"v_max_f32 v{vMX}, v28, v29")
    for w in range(2): a(f"v_sub_f32 v{28+w}, v{28+w}, v{vMX}")
    for w in range(2): a(f"v_mul_f32 v{28+w}, s88, v{28+w}")
    for w in range(2): a(f"v_exp_f32 v{28+w}, v{28+w}")
    a(f"v_mul_f32 v{vMX+1}, v28, v36\nv_fmac_f32 v{vMX+1}, v29, v37")
    for r in range(4): a(f"v_mul_f32 v{48+r}, v28, v{48+r}")
    a("s_waitcnt lgkmcnt(0)")
    for r in range(4): a(f"v_fmac_f32 v{48+r}, v29, v{160+r}")
    tagbytes(a, 48)
    a(f"buffer_store_dwordx4 v[48:51], v{vPO}, {SW}, s{sPO} offen sc1")
    a(f"buffer_store_dwordx4 v[{vMX}:{vMX+3}], v{vPM}, {SW}, s{sPM} offen sc1")
    stamp(a, 5)
    def poll():
        a(f"buffer_load_dwordx4 v[24:27], v44, {SW}, s15 offen sc1")
        a(f"buffer_load_dwordx4 v[28:31], v45, {SW}, s15 offen offset:64 sc1")
    poll()
    mask2(a, MK, 1, vT0, vT1)
    a("s_cmp_lt_u32 s2, 224\ns_cselect_b32 s9, -1, 0\ns_waitcnt vmcnt(4)")
    a(f"s_mov_b32 s96, {SPIN}\ngu_chk:")
    a(f"v_xor_b32 v40, s{sTAG}, v43\nv_xor_b32 v41, s{sTAG}, v33\nv_or_b32 v40, v40, v41\nv_and_b32 v40, s9, v40\nv_cmp_ne_u32 vcc, 0, v40\ns_cbranch_vccz gu_ok")
    a("s_sub_u32 s96, s96, 1\ns_cmp_eq_u32 s96, 0\ns_cbranch_scc1 gu_ok\ns_sleep 2")
    gu_load(a)
    a("s_waitcnt vmcnt(0)\ns_branch gu_chk\ngu_ok:")
    a("v_and_b32 v42, s9, v42\nv_and_b32 v32, s9, v32")
    g, u = 176, 177
    T4(a, g, 42, 42); T4(a, u, 32, 32)
    for q in ("[2,3,0,1]", "[1,0,3,2]"):
        for A in (g, u): a(f"v_add_f32_dpp v{A}, v{A}, v{A} quad_perm:{q} {FULL}")
    rnd(a, g, g); rnd(a, u, u)
    a(f"v_mul_f32 v8, v{g}, v{g}\nv_mul_f32 v8, v8, v{g}")
    a(f"v_mul_f32 v8, {fl(0.044715)}, v8\nv_add_f32 v8, v8, v{g}\nv_mul_f32 v8, {fl(0.7978845608028654)}, v8")
    a(f"v_mul_f32 v8, {fl(2*LOG2E)}, v8\nv_exp_f32 v8, v8\nv_add_f32 v8, 1.0, v8\nv_rcp_f32 v8, v8")
    a(f"v_fma_f32 v8, v8, -2.0, 2.0")
    a(f"v_mul_f32 v9, 0.5, v{g}\nv_mul_f32 v8, v8, v9")
    rnd(a, 8, 8)
    a(f"v_mul_f32 v8, v8, v{u}\nv_cvt_pk_bf16_f32 v8, v8, v8")
    for n in range(2):
        for r in range(4):
            a(f"v_and_b32_dpp v{176+4*n+r}, v8, v{MK+r} row_newbcast:{8*n} {FULL}")
    Y = 160
    for n in range(2):
        for blk in range(4):
            D = f"v[{Y+4*blk}:{Y+3+4*blk}]"
            a(f"v_mfma_f32_16x16x32_bf16 {D}, v[{176+4*n}:{179+4*n}], {ring(RD, n*4+blk)}, {'0' if n==0 else D}")
    a(f"s_mov_b32 s96, {SPIN}")
    a("t0_spin:")
    a("s_waitcnt vmcnt(0)")
    tagbad(a, 40, 24, 41)
    a(f"v_xor_b32 v41, v31, v{vTAG}\nv_or_b32 v40, v40, v41")
    a("v_cmp_eq_u32 vcc, 0, v40\ns_andn2_b64 s[78:79], exec, vcc\ns_and_b64 exec, exec, vcc")
    for r in range(4): a(f"v_and_b32 v{32+r}, 0xffffff00, v{24+r}")
    a("v_mov_b32 v36, v28\nv_mov_b32 v37, v29")
    a("s_mov_b64 exec, s[78:79]\ns_cbranch_execz t0_ok")
    poll()
    a("s_sub_u32 s96, s96, 1\ns_cmp_lg_u32 s96, 0\ns_cbranch_scc1 t0_spin")
    a("t0_ok:\ns_mov_b64 exec, -1")
    stamp(a, 6)
    a(f"v_max_f32_dpp v38, v36, v36 row_ror:8 {FULL}")
    for r in (4, 2, 1): a(f"v_max_f32_dpp v38, v38, v38 row_ror:{r} {FULL}")
    a("v_sub_f32 v36, v36, v38\nv_mul_f32 v36, s88, v36\nv_exp_f32 v36, v36")
    for r in range(4): a(f"v_mul_f32 v{32+r}, v{32+r}, v36")
    a("v_mul_f32 v36, v36, v37")
    rowall(a, [36, 32, 33, 34, 35])
    a("v_rcp_f32 v37, v36")
    for r in range(4): a(f"v_mul_f32 v{32+r}, v{32+r}, v37")
    for r in range(4): a(f"v_cvt_pk_bf16_f32 v{32+r}, v{32+r}, v{32+r}")
    def bld(n):
        for r in range(4): a(f"v_and_b32 v{176+4*n+r}, v{32+n}, v{MK+r}")
    def mm(n, blk):
        D = f"v[{Y+4*blk}:{Y+3+4*blk}]"
        a(f"v_mfma_f32_16x16x32_bf16 {D}, v[{176+4*n}:{179+4*n}], {ring(RA, n*4+blk)}, {D}")
    bld(0); bld(1)
    mm(0, 0); mm(0, 1); bld(2); mm(0, 2); mm(0, 3); bld(3)
    a(f"s_mov_b32 s8, s{sYA}")
    for blk in range(4):
        for n in range(1, 4): mm(n, blk)
        if blk:
            tagbytes(a, Y+4*(blk-1))
            a(f"buffer_store_dwordx4 v[{Y+4*(blk-1)}:{Y+4*(blk-1)+3}], v{vY}, {SW}, s8 offen sc1\ns_add_u32 s8, s8, {32*YS}")
    tagbytes(a, Y+12)
    a(f"buffer_store_dwordx4 v[{Y+12}:{Y+15}], v{vY3}, {SW}, s8 offen sc1")

DOC = """; One launch, 256 workgroups, one per CU; HBM-bound (K and V are each read once, nt).
"""
if __name__ == "__main__":
    t, k = kernel()
    s = HEADER + DOC + "; @launch grid=(256,1,1) block=(256,1,1) lds=9216\n"
    s += '.amdgcn_target "amdgcn-amd-amdhsa--gfx950"\n.text\n' + t + k
    open(sys.argv[1], "w").write(s)
```

```python
import sys
from common import *

OPT = set(sys.argv[2:])
STAMP = "stamp" in OPT
def opt(name, d):
    for o in OPT:
        if o.startswith(name+"="): return int(o.split("=")[1])
    return d
SYM, SYMB = opt("SYM", 2), opt("SYMB", 1)
SPIN = 200000
B1, BA, B2, B3, B4 = opt("B1", 6), opt("BA", 10), opt("B2", 14), opt("B3", 24), opt("B4", 28)
XP   = 0x000000
XR   = 0x040000
YA   = 0x180000
OIN  = 0x200000
QP   = 0x2C0000
VOTE = 0x2E0000
EPO  = 0x2F8000
GU   = 0x300000
WSSZ = 0x340000
STB  = 0x390000
VSTR = YS = 4352
RA, RB, RD = 64, 128, 192
P0 = 32
vLO, vHI, vQ, vSW, vSB, vSC = 2, 3, 4, 8, 9, 10
vLS, vP, vT0, vT1, vT2 = 12, 13, 14, 15, 16
vRP = 19
MK, AA, ACC = 20, 24, 48
vMX, vSH, vSD = 52, 53, 54
vTAG = 55
vPO, vPM, vY, vY3 = 56, 57, 58, 59
sTAG, sOK, sOV, sO, sXF, sK = 89, 90, 91, 92, 93, 94
sXO, sXI = 97, 7
sPO, sPM, sYA = 80, 81, 82
SK, SV, SW = "s[40:43]", "s[44:47]", "s[48:51]"
L_M, L_L, L_V, L_O, L_P, L_S = 512, 528, 544, 1024, 1024, 5120

def stamp(a, i):
    if STAMP: a(f"s_memrealtime s[98:99]\ns_waitcnt lgkmcnt(0)\nv_writelane_b32 v224, s98, {i}")
def stamp_out(a):
    if STAMP:
        a(f"s_mov_b32 s50, 0x400000\ns_lshl_b32 s8, s2, 2\ns_add_u32 s8, s8, s3\ns_lshl_b32 s8, s8, 6\ns_add_u32 s8, s8, {STB}")
        a(f"v_lshlrev_b32 v225, 2, v1\nv_mov_b32 v226, {hex(OOB)}\nv_cmp_gt_u32 vcc, 16, v1\nv_cndmask_b32 v225, v226, v225, vcc\nbuffer_store_dword v224, v225, s[48:51], s8 offen")

MASK = {'5': 1 << 17, '6': 1 << 18, '7': 0x84000, '8': 0x101000, '9': 0x202000, 'A': 1 << 22}
ORD = [o.split("=")[1] for o in OPT if o.startswith("ORD=")]
ORD = ORD[0] if ORD else "9B8765"
def T_of(k):
    x = 0
    for q in range(6):
        if k >> q & 1: x ^= MASK[ORD[q]]
    return x
MS = 64 - opt("NB", 8)
sD, sS = 13, 15
def sb_off(a, base, kreg, lo=0):
    a(f"s_mov_b32 s{sO}, s{base}")
    for q in range(lo, 6):
        a(f"s_bitcmp1_b32 s{kreg}, {q}\ns_cselect_b32 s95, {hex(MASK[ORD[q]])}, 0\ns_xor_b32 s{sO}, s{sO}, s95")
def sb_odd(a):
    a(f"s_xor_b32 s{sO}, s{sO}, {hex(MASK[ORD[0]])}")
def sb_const(a, base, k):
    a(f"s_xor_b32 s{sO}, s{base}, {hex(T_of(k))}" if k else f"s_mov_b32 s{sO}, s{base}")
def ring(R, j): return f"v[{R+4*j}:{R+4*j+3}]"
JORD = [o.split("=")[1] for o in OPT if o.startswith("JORD=")]
JORD = JORD[0] if JORD else "4021"
def kvload(a, R, j, srdname):
    off, hi = 0, 0
    for q in range(4):
        if j >> q & 1:
            if JORD[q] == "4": hi = 1
            else: off |= 512 << int(JORD[q])
    a(f"buffer_load_dwordx4 {ring(R,j)}, v{vHI if hi else vLO}, {srdname}, s{sO} offen offset:{off} nt")
jit_n = [0]
def jitter(a, salt, shift):
    if "jit" not in OPT: return
    jit_n[0] += 1; n = jit_n[0]
    a(f"s_lshl_b32 s26, s2, 2\ns_add_u32 s26, s26, s3\ns_add_u32 s26, s26, {salt}\ns_mul_i32 s26, s26, 0x9e3779b1\ns_lshr_b32 s27, s26, 29\ns_cmp_lg_u32 s27, 0\ns_cbranch_scc1 jit_e{n}")
    a(f"s_bfe_u32 s26, s26, {hex(0x10 | (shift << 16))}\ns_add_u32 s26, s26, 1\njit_l{n}:\ns_sleep 16\ns_sub_u32 s26, s26, 1\ns_cmp_lg_u32 s26, 0\ns_cbranch_scc1 jit_l{n}\njit_e{n}:")
def refill_all(a, R, srdname):
    for j in range(16): kvload(a, R, j, srdname)

def k_body(a, R, wait, refill):
    for j in range(16):
        w = wait(j)
        if w is not None: a(f"s_waitcnt vmcnt({w})")
        r = R+4*j
        a(f"v_dot2_f32_bf16 v{P0+j}, v{r}, v{vQ}, 0")
        for i in range(1, 4): a(f"v_dot2_f32_bf16 v{P0+j}, v{r+i}, v{vQ+i}, v{P0+j}")
    if refill: refill()
    for j in range(8):
        a(f"v_add_f32_dpp v{P0+j}, v{P0+j}, v{P0+j} row_ror:8 row_mask:0xf bank_mask:0x3")
    for j in range(8):
        a(f"v_add_f32_dpp v{P0+j}, v{P0+8+j}, v{P0+8+j} row_ror:8 row_mask:0xf bank_mask:0xc")
    for j in range(4):
        a(f"v_add_f32_dpp v{P0+j}, v{P0+j}, v{P0+j} row_shl:4 row_mask:0xf bank_mask:0x5")
    for j in range(4):
        a(f"v_add_f32_dpp v{P0+j}, v{P0+4+j}, v{P0+4+j} row_shr:4 row_mask:0xf bank_mask:0xa")
    for j in range(4):
        a(f"v_add_f32_dpp v{P0+j}, v{P0+j}, v{P0+j} quad_perm:[2,3,0,1] {FULL}")
    a(f"v_cndmask_b32 v{P0}, v{P0}, v{P0+2}, s[84:85]\nv_cndmask_b32 v{P0+1}, v{P0+1}, v{P0+3}, s[84:85]")
    for j in range(2):
        a(f"v_add_f32_dpp v{P0+j}, v{P0+j}, v{P0+j} quad_perm:[1,0,3,2] {FULL}")
    a(f"v_cndmask_b32 v{P0}, v{P0}, v{P0+1}, s[86:87]")
    B16(a, P0, P0+1)
    a(f"v_mov_b32 v{P0+1}, v{P0}\nv_permlane32_swap_b32 v{P0}, v{P0+1}\nv_cvt_pk_bf16_f32 v{vSD}, v{P0}, v{P0+1}")
    a(f"ds_write_b32 v{vSW}, v{vSD}\nv_add_u32 v{vSW}, 64, v{vSW}")

def v_head(a, extra=None):
    a(f"ds_read_b32 v{vSC}, v{vSW}\nv_add_u32 v{vSW}, s{sS}, v{vSW}")
    if extra: extra()
    a("s_waitcnt lgkmcnt(0)")
    a(f"v_lshlrev_b32 v{vT2}, v{vSH}, v{vSC}\nv_and_b32 v{vT2}, 0xffff0000, v{vT2}")
    a(f"v_max_f32_dpp v{vT0}, v{vT2}, v{vT2} row_ror:8 {FULL}")
    for r in (4, 2, 1): a(f"v_max_f32_dpp v{vT0}, v{vT0}, v{vT0} row_ror:{r} {FULL}")
    B32(a, vT0, vT1, "v_max_f32")
    a(f"v_max_f32 v{vT0}, v{vT0}, v{vMX}")
    a(f"v_sub_f32 v{vT1}, v{vMX}, v{vT0}\nv_sub_f32 v{vT2}, v{vT2}, v{vT0}")
    a(f"v_mov_b32 v{vMX}, v{vT0}")
    a(f"v_mul_f32 v{vT1}, s88, v{vT1}\nv_mul_f32 v{vT2}, s88, v{vT2}")
    a(f"v_exp_f32 v{vT1}, v{vT1}\nv_exp_f32 v{vT2}, v{vT2}")
    a(f"v_cvt_pk_bf16_f32 v{vP}, v{vT2}, v{vT2}")
    a(f"v_fma_f32 v{vLS}, v{vLS}, v{vT1}, v{vT2}")
    for r in range(4): a(f"v_mul_f32 v{ACC+r}, v{ACC+r}, v{vT1}")

def v_body(a, R, extra_ops, refill):
    def build(j):
        for r in range(4):
            a(f"v_and_b32_dpp v{AA+4*(j&1)+r}, v{vP}, v{MK+r} row_newbcast:{j} {FULL}")
    build(0)
    for j in range(16):
        a(f"s_waitcnt vmcnt({15 - j + extra_ops})")
        A = AA+4*(j&1)
        a(f"v_mfma_f32_16x16x32_bf16 v[{ACC}:{ACC+3}], v[{A}:{A+3}], {ring(R,j)}, v[{ACC}:{ACC+3}]")
        if j < 15: build(j+1)
    if refill: refill()

def ml_out(a):
    rowall(a, [vLS]); B32(a, vLS, vT0)
    a(f"s_lshl_b32 s8, s3, 2\nv_mov_b32 v{vT2}, s8\nds_write_b32 v{vT2}, v{vMX} offset:{L_M}\nds_write_b32 v{vT2}, v{vLS} offset:{L_L}")
    a(f"v_lshlrev_b32 v{vT1}, 4, v0\nv_mov_b32 v{vT2}, 0")

XRR = [32, 36, 40, 44, 60]
def xp_load(a):
    a(f"s_lshl_b32 s8, s6, 10\nbuffer_load_dwordx4 v[60:63], v17, {SW}, s8 offen sc1")
def xr_ops(a, op, idx):
    a(f"s_mul_i32 s8, s{idx}, 5120\ns_add_u32 s8, s8, {XR}\ns_add_u32 s9, s8, 4096")
    for g, R in enumerate(XRR):
        a(f"{op} v[{R}:{R+3}], v17, {SW}, s{8 if g < 4 else 9} offen offset:{1024*(g&3)} sc1")
def xr_load(a): xr_ops(a, "buffer_load_dwordx4", sXI)
def x_check(a, tag, tagregs, load):
    a(f"s_mov_b32 s96, {SPIN}")
    a(f"x_chk_{tag}:")
    a(f"v_cmp_ne_u32 vcc, s{sTAG}, v{tagregs[0]}")
    for r in tagregs[1:]: a(f"v_cmp_ne_u32 s[10:11], s{sTAG}, v{r}\ns_or_b64 vcc, vcc, s[10:11]")
    a(f"s_cbranch_vccz x_ok_{tag}")
    a(f"s_sub_u32 s96, s96, 1\ns_cmp_eq_u32 s96, 0\ns_cbranch_scc1 x_ok_{tag}\ns_sleep 4")
    load(a)
    a(f"s_waitcnt vmcnt(0)\ns_branch x_chk_{tag}")
    a(f"x_ok_{tag}:")
def vote_load(a):
    a(f"buffer_load_dwordx4 v[60:63], v17, {SW}, s12 offen sc1")
def gu_load(a):
    a(f"buffer_load_dwordx2 v[42:43], v18, {SW}, s12 offen sc1\nbuffer_load_dwordx2 v[32:33], v18, {SW}, s12 offen offset:512 sc1")

def tally(a, T):
    for r in range(4): a(f"v_xor_b32 v{T+r}, s{sTAG}, v{60+r}")
    for r in range(4): a(f"v_cmp_gt_u32 s[{60+2*r}:{61+2*r}], 64, v{T+r}")
    for r in range(4): a(f"v_and_b32 v{T+r}, 1, v{60+r}\nv_and_b32 v{T+4+r}, 2, v{60+r}")
    for r in range(4): a(f"v_lshlrev_b32 v{T+4+r}, 9, v{T+4+r}")
    for r in range(4): a(f"v_or3_b32 v{T+r}, v{T+r}, v{T+4+r}, s77")
    for r in range(4): a(f"v_cndmask_b32 v{T+r}, 0, v{T+r}, s[{60+2*r}:{61+2*r}]")
    a(f"v_add3_u32 v{T}, v{T}, v{T+1}, v{T+2}\nv_add_u32 v{T}, v{T}, v{T+3}")
    a("s_andn2_b32 s8, s2, 4\ns_lshr_b32 s8, s8, 2")
    for r in range(4): a(f"v_readlane_b32 s{72+r}, v{60+r}, s8")
    waveall(a, T, T+1, "v_add_u32")
    a("s_bitcmp1_b32 s2, 0\ns_cselect_b32 s72, s73, s72\ns_cselect_b32 s74, s75, s74\ns_bitcmp1_b32 s2, 1\ns_cselect_b32 s72, s74, s72")
    a(f"v_readfirstlane_b32 s8, v{T}")
    if STAMP: a("v_writelane_b32 v224, s8, 15")
    a("s_lshr_b32 s73, s8, 20\ns_and_b32 s74, s8, 0x3ff\ns_bfe_u32 s75, s8, 0xa000a")
    a("s_bfe_u32 s9, s72, 0x10004\ns_lshl_b32 s9, s9, 2")
    a("s_cmp_gt_u32 s74, 128\ns_cselect_b32 s8, 1, 0\ns_or_b32 s9, s9, s8\ns_cmp_gt_u32 s75, 128\ns_cselect_b32 s8, 2, 0\ns_or_b32 s9, s9, s8")
    a("s_sub_u32 s8, s73, s74\ns_add_u32 s8, s8, 1\ns_max_u32 s74, s74, s8\ns_sub_u32 s8, s73, s75\ns_add_u32 s8, s8, 1\ns_max_u32 s75, s75, s8\ns_min_u32 s74, s74, s75")
    a(f"s_xor_b32 s72, s72, s{sTAG}\ns_cmp_lt_u32 s72, 64\ns_cselect_b32 s74, s74, 0\ns_cmp_gt_u32 s74, 128")

def tagsel(a):
    for r in range(4): a(f"s_mov_b32 s{72+r}, {hex(0x07060500+r)}")
    a("s_mov_b32 s76, 0x0c0c0400\ns_mov_b32 s77, 0x04000c0c")
def tagbytes(a, R):
    for r in range(4): a(f"v_perm_b32 v{R+r}, v{R+r}, v{vTAG}, s{72+r}")
def tagbad(a, d, R, t):
    a(f"v_perm_b32 v{d}, v{R+1}, v{R}, s76\nv_perm_b32 v{t}, v{R+3}, v{R+2}, s77")
    a(f"v_or_b32 v{d}, v{d}, v{t}\nv_xor_b32 v{d}, v{d}, v{vTAG}")

def kernel():
    a = Asm(); K = NAME + "_kernel"
    a(f".globl {K}\n.p2align 8\n.type {K},@function\n{K}:")
    a("s_cmp_ge_u32 s2, 256\ns_cbranch_scc1 main_done")
    stamp(a, 0)
    a("s_load_dwordx16 s[16:31], s[0:1], 0\ns_load_dwordx8 s[32:39], s[0:1], 64\ns_memtime s[100:101]")
    a("v_lshrrev_b32 v1, 6, v0\nv_readfirstlane_b32 s3, v1\nv_and_b32 v1, 63, v0")
    a("s_getpc_b64 s[98:99]\nipf_pc:\ns_lshr_b32 s5, s2, 3\ns_lshl_b32 s5, s5, 10\ns_min_u32 s5, s5, code_end-ipf_pc-1024\nv_lshl_add_u32 v63, v1, 4, s5")
    a("s_cmp_lg_u32 s3, 3\ns_cbranch_scc1 noipf\nglobal_load_dwordx4 v[28:31], v63, s[98:99]\nnoipf:")
    a("s_lshr_b32 s5, s2, 4\ns_and_b32 s6, s2, 15")
    a("v_lshlrev_b32 v17, 4, v1")
    a("v_lshrrev_b32 v18, 3, v1\nv_and_b32 v14, 7, v1\nv_lshlrev_b32 v14, 4, v14\nv_lshl_add_u32 v19, v18, 13, v14")
    a("v_mul_u32_u24 v47, 3584, v18\nv_add_u32 v47, v47, v14")
    a(f"v_mov_b32 v15, {hex(OOB)}\nv_cmp_gt_u32 vcc, 32, v1\nv_cndmask_b32 v14, v15, v19, vcc")
    a("v_cmp_gt_u32 vcc, 48, v1\nv_cndmask_b32 v16, v15, v47, vcc")
    a("v_lshlrev_b32 v18, 1, v18")
    a(f"v_and_b32 v{vLO}, 31, v1\nv_lshlrev_b32 v{vLO}, 4, v{vLO}\nv_lshrrev_b32 v{vHI}, 5, v1\nv_lshlrev_b32 v{vHI}, 15, v{vHI}\nv_add_u32 v{vLO}, v{vLO}, v{vHI}\nv_add_u32 v{vHI}, 0x10000, v{vLO}")
    a("s_bfe_u32 s7, s2, 0x20002\ns_mul_i32 s8, s7, 112\ns_mul_i32 s9, s3, 28\ns_add_u32 s8, s8, s9\ns_lshl_b32 s9, s8, 1")
    a("s_lshl_b32 s8, s8, 13\ns_lshl_b32 s10, s5, 9\ns_add_u32 s8, s8, s10\ns_and_b32 s10, s2, 3\ns_lshl_b32 s10, s10, 7\ns_add_u32 s8, s8, s10")
    a("s_lshr_b32 s11, s2, 3\ns_and_b32 s13, s2, 7")
    a(f"s_mul_i32 s12, s13, 56\ns_mul_i32 s14, s3, 14\ns_add_u32 s12, s12, s14\ns_mul_i32 s14, s12, 3584\ns_lshl_b32 s12, s12, 1\ns_lshl_b32 s15, s11, 7\ns_add_u32 s14, s14, s15")
    a("s_lshl_b32 s83, s11, 23")
    a("s_lshr_b32 s10, s2, 1\ns_lshr_b32 s15, s2, 7\ns_xor_b32 s10, s10, s15\ns_andn2_b32 s10, 1, s10\ns_lshl_b32 s10, s10, 12\ns_or_b32 s83, s83, s10")
    a("s_lshr_b32 s10, s2, 6\ns_xor_b32 s10, s10, s2\ns_and_b32 s10, s10, 1\ns_lshl_b32 s10, s10, 14\ns_or_b32 s83, s83, s10")
    if opt("XS", 0): a(f"s_xor_b32 s83, s83, {hex((opt('XS', 0) & 1) << 14 | (opt('XS', 0) >> 1) << 12)}")

    a("s_bfe_u32 s4, s2, 0x10002\ns_xor_b32 s10, s4, s11\ns_and_b32 s10, s10, 1")
    a(f"s_lshl_b32 s10, s10, 13\ns_xor_b32 s{sOK}, s83, s10")
    a(f"s_bitcmp1_b32 s3, 0\ns_cselect_b32 s10, {hex(T_of(2))}, 0\ns_xor_b32 s{sOK}, s{sOK}, s10")
    a(f"s_bitcmp1_b32 s3, 1\ns_cselect_b32 s10, {hex(T_of(4))}, 0\ns_xor_b32 s{sOK}, s{sOK}, s10")
    if SYM:
        a("; the first blocks are spread over all stacks: class (b & 3) ^ g")
        for bit, sh in ((SYMB, 14), (SYMB+1, 12))[:SYM]:
            a(f"s_bfe_u32 s10, s11, {hex(0x10000 | bit)}\ns_lshl_b32 s10, s10, {sh}\ns_xor_b32 s{sOK}, s{sOK}, s10")
    a("s_lshl_b32 s74, s11, 23\ns_and_b32 s75, s2, 3\ns_lshl_b32 s75, s75, 21\ns_or_b32 s74, s74, s75")
    a("s_bfe_u32 s75, s2, 0x10002\ns_lshl_b32 s75, s75, 11\ns_or_b32 s74, s74, s75\ns_or_b32 s74, s74, 0x40000")
    a("s_and_b32 s76, s3, 1\ns_lshl_b32 s75, s76, 13\ns_or_b32 s74, s74, s75")
    a("s_getreg_b32 s79, hwreg(HW_REG_XCC_ID)\ns_bfe_u32 s79, s79, 0x10002")
    a("s_xor_b32 s76, s76, s79\ns_xor_b32 s76, s76, s2\ns_and_b32 s76, s76, 1")
    a(f"s_mov_b32 s10, {EPO}")
    a("s_waitcnt lgkmcnt(0)")
    if "orc" in OPT:
        a("s_add_u32 s26, s10, 256\ns_load_dword s26, s[38:39], s26\ns_waitcnt lgkmcnt(0)")
        a(f"s_xor_b32 s27, s79, s26\ns_and_b32 s27, s27, 1\ns_lshl_b32 s27, s27, 13\ns_xor_b32 s{sOK}, s27, s83")
    sb_const(a, sOK, 0)
    a("s_cmp_lt_u32 s3, 2")
    a("s_cselect_b32 s72, s18, s20\ns_cselect_b32 s73, s19, s21")
    a("s_lshr_b32 s100, s100, 3\ns_mul_i32 s100, s100, 0x9e3779b1\ns_lshr_b32 s100, s100, 8\ns_and_b32 s100, s100, 0x1bd780\ns_or_b32 s74, s74, s100\ns_xor_b32 s75, s74, 0x400")
    a(f"s_load_dword s78, s[72:73], s75\ns_load_dword s{sTAG}, s[38:39], s10")
    srd(a, 40, 18, 1 << 28); srd(a, 52, 16, 896); srd(a, 56, 22, 448*8192)
    jitter(a, 11, 5)
    a("buffer_load_dwordx4 v[60:63], v17, s[52:55], 0 offen")
    for n in range(4):
        a(f"buffer_load_ushort v{40+n}, v18, s[52:55], s9 offen offset:{16*n}")
    for n in range(4):
        a(f"buffer_load_dwordx4 v[{160+4*n}:{163+4*n}], v{19 if n<3 else 14}, s[56:59], s8 offen nt")
        if n < 3: a(f"s_add_u32 s8, s8, {8*8192}")
    def kpre(lo, hi):
        for i in range(lo, hi):
            if i == 16: sb_const(a, sOK, 1)
            kvload(a, RA if i < 16 else RB, i % 16, SK)
    a("s_barrier")
    kpre(0, B1)
    srd(a, 60, 28, 448*3584); srd(a, 64, 30, 448*3584); srd(a, 68, 32, 1792*896)
    srd(a, 44, 20, 1 << 28); srd(a, 48, 38, WSSZ)
    stamp(a, 1)
    a(f"s_lshl_b32 s8, s5, 13\ns_add_u32 s8, s8, {QP}\ns_lshl_b32 s9, s3, 9\ns_add_u32 s15, s8, s9")
    a("s_lshl_b32 s9, s7, 11\ns_add_u32 s8, s8, s9\ns_and_b32 s9, s2, 3\ns_lshl_b32 s9, s9, 9\ns_add_u32 s7, s8, s9")
    a(f"v_and_b32 v13, 7, v1\nv_and_b32 v10, 56, v1\nv_lshl_add_u32 v11, v13, 6, v10\nv_lshl_add_u32 v46, v13, 10, v10")
    a(f"v_mul_u32_u24 v{vRP}, {VSTR}, v1\nv_cmp_gt_u32 vcc, 8, v1\nv_cndmask_b32 v{vRP}, v15, v{vRP}, vcc")
    a(f"s_cmp_eq_u32 s3, 0\ns_cselect_b64 vcc, -1, 0\nv_cndmask_b32 v{vSC}, v15, v11, vcc")
    a(f"v_mov_b32 v12, 0\nds_write_b32 v12, v12 offset:{L_V}")
    a(f"s_waitcnt vmcnt({B1+8})\nv_readfirstlane_b32 s77, v60\ns_lshl_b32 s77, s77, 16")
    vM, vS, vR = 20, 21, 22
    ln_stats2(a, 60, 32, vM, vS, vR, 12, 13, 11, 23, 77)
    a(f"s_waitcnt vmcnt({B1+4})")
    center_rows(a, [40, 41, 42, 43], vM)
    scale_rows(a, [40, 41, 42, 43], [24, 25, 26, 27], vS, vR)
    a(f"s_waitcnt vmcnt({B1})")
    stamp(a, 8)
    for n in range(4): gemv8(a, 32, 160+4*n, 24+n, 40+n, n == 0)
    red8(a, 32)
    a(f"v_lshlrev_b32 v12, 2, v0\nds_write_b32 v12, v32 offset:{L_P}\nv_lshlrev_b32 v12, 2, v1")
    a(f"s_waitcnt lgkmcnt(0)\ns_barrier")
    a(f"ds_read2st64_b32 v[32:33], v12 offset0:{L_P//256} offset1:{L_P//256+1}\nds_read2st64_b32 v[34:35], v12 offset0:{L_P//256+2} offset1:{L_P//256+3}")
    a(f"s_add_u32 s{sTAG}, s{sTAG}, 0x9e3779b9\nv_mov_b32 v{vTAG}, s{sTAG}")
    a(f"s_waitcnt lgkmcnt(0)\nv_add_f32 v32, v32, v33\nv_add_f32 v34, v34, v35\nv_add_f32 v{vSD}, v32, v34")
    a(f"buffer_store_dwordx2 v[{vSD}:{vSD+1}], v{vSC}, {SW}, s7 offen sc1")
    stamp(a, 9)
    for n in range(2):
        a(f"buffer_load_ushort v{44+n}, v18, s[52:55], s12 offen offset:{16*n}")
    for n in range(2):
        a(f"buffer_load_dwordx4 v[{176+4*n}:{179+4*n}], v{47 if n==0 else 16}, s[60:63], s14 offen nt")
        a(f"buffer_load_dwordx4 v[{184+4*n}:{187+4*n}], v{47 if n==0 else 16}, s[64:67], s14 offen nt")
        if n == 0: a(f"s_add_u32 s14, s14, {8*3584}")
    kpre(B1, BA)
    jitter(a, 222, 5)
    for i in range(2):
        a("s_memtime s[100:101]\ns_waitcnt lgkmcnt(0)")
        a("s_load_dword s78, s[72:73], s74\ns_waitcnt lgkmcnt(0)\ns_memtime s[96:97]\ns_waitcnt lgkmcnt(0)")
        a(f"s_sub_u32 s{8+i}, s96, s100")
        if i == 0:
            a("s_xor_b32 s74, s74, 0x2000"); kpre(BA, B2)
    a("s_sub_i32 s8, s8, s9\ns_sub_i32 s9, 0, s8\ns_cmp_eq_u32 s76, 0\ns_cselect_b32 s8, s8, s9")
    a("s_max_i32 s8, s8, -2047\ns_min_i32 s8, s8, 2047\ns_add_i32 s8, s8, 2048\ns_lshr_b32 s9, s3, 1\ns_mul_i32 s9, s9, 13\ns_lshl_b32 s8, s8, s9")
    a(f"s_or_b32 s8, s8, 0x20000000\nv_mov_b32 v12, s8\nv_mov_b32 v13, 0\ns_mov_b64 exec, 1\nds_add_rtn_u32 v13, v13, v12 offset:{L_V}\ns_mov_b64 exec, -1")
    a(f"s_lshl_b32 s10, s79, 4\ns_andn2_b32 s9, s{sTAG}, 63\ns_or_b32 s10, s10, s9\ns_lshl_b32 s9, s2, 2\ns_add_u32 s9, s9, {VOTE}")
    a("s_waitcnt lgkmcnt(0)\nv_readfirstlane_b32 s72, v13\ns_add_u32 s72, s72, s8\ns_bitcmp0_b32 s72, 31\ns_cbranch_scc1 novote")
    a("s_and_b32 s73, s72, 0x1fff\ns_cmp_gt_u32 s73, 4096\ns_cselect_b32 s73, 1, 0\ns_or_b32 s10, s10, s73")
    a("s_bfe_u32 s73, s72, 0xd000d\ns_cmp_gt_u32 s73, 4096\ns_cselect_b32 s73, 2, 0\ns_or_b32 s10, s10, s73")
    a(f"v_mov_b32 v12, s10\nbuffer_store_dword v12, v{vRP}, {SW}, s9 offen sc1")
    a("novote:")
    def gather():
        for rb in range(4):
            if rb == 2: a("s_add_u32 s9, s15, 4096")
            a(f"buffer_load_dwordx2 v[{32+2*rb}:{33+2*rb}], v18, {SW}, s{15 if rb<2 else 9} offen offset:{2048*(rb&1)} sc1")
    a("v_lshlrev_b32 v18, 3, v1"); gather(); kpre(B2, B3)
    a(f"v_lshlrev_b32 v{vSB}, 2, v1\nv_add_u32 v{vSB}, {L_S}, v{vSB}")
    a(f"s_lshl_b32 s8, s3, 7\ns_add_u32 s9, s8, {L_S}\nv_and_b32 v{vSW}, 15, v1\nv_lshl_add_u32 v{vSW}, v{vSW}, 2, s9")
    a(f"s_mov_b32 s{sXO}, s2\ns_xor_b32 s{sXI}, s2, 4")
    a(f"v_cmp_gt_u32 vcc, 32, v1\nv_cndmask_b32 v{vSH}, 0, 16, vcc")
    a("s_mov_b32 s84, 0xcccccccc\ns_mov_b32 s85, 0xcccccccc\ns_mov_b32 s86, 0xaaaaaaaa\ns_mov_b32 s87, 0xaaaaaaaa")
    a(f"s_mov_b32 s88, {fl(CEXP)}\ns_mov_b32 s77, 0x100000")
    a(f"v_lshrrev_b32 v{vPO}, 5, v1\nv_lshlrev_b32 v{vPO}, 14, v{vPO}\nv_bfe_u32 v12, v1, 1, 3\nv_lshlrev_b32 v12, 11, v12\nv_add_u32 v{vPO}, v{vPO}, v12")
    a(f"v_and_b32 v12, 1, v1\nv_lshlrev_b32 v12, 5, v12\nv_add_u32 v{vPO}, v{vPO}, v12\nv_and_b32 v12, 16, v1\nv_add_u32 v{vPO}, v{vPO}, v12")
    a(f"v_lshlrev_b32 v12, 11, v1\nv_cmp_gt_u32 vcc, 16, v1\nv_cndmask_b32 v{vPM}, v15, v12, vcc")
    yaddr(a, vY, vY3, 1, 12, 13, YS)
    a(f"s_lshl_b32 s{sPO}, s5, 15\ns_lshl_b32 s10, s6, 7\ns_add_u32 s{sPO}, s{sPO}, s10\ns_add_u32 s{sPO}, s{sPO}, {OIN}\ns_add_u32 s{sPM}, s{sPO}, 64")
    a(f"s_lshl_b32 s{sYA}, s2, 4\ns_add_u32 s{sYA}, s{sYA}, {YA}")
    a(f"s_lshl_b32 s14, s11, 13\ns_lshl_b32 s10, s13, 6\ns_add_u32 s14, s14, s10\ns_lshl_b32 s10, s3, 9\ns_add_u32 s14, s14, s10\ns_add_u32 s14, s14, {GU-512}")
    a(f"s_cmp_lt_u32 s11, 28\ns_cselect_b32 s10, 0, {hex(OOB)}\ns_add_u32 s9, s3, 3\ns_bitcmp1_b32 s9, 1\ns_cselect_b32 s10, {hex(OOB)}, s10\nv_or_b32 v46, s10, v46")
    a(f"s_and_b32 s12, s11, 7\ns_mul_i32 s12, s12, {VSTR}\ns_add_u32 s12, s12, {VOTE}")
    a(f"s_waitcnt vmcnt({B3-B1+8})")
    center_rows(a, [44, 45], vM)
    scale_rows(a, [44, 45], [12, 13], vS, vR)
    a(f"s_waitcnt vmcnt({B3-B1+4})")
    aG, aU = 24, 192
    for n in range(2):
        gemv8(a, aG, 176+4*n, 12+n, 44+n, n == 0)
        gemv8(a, aU, 184+4*n, 12+n, 44+n, n == 0)
    stamp(a, 10)
    red8(a, aG); red8(a, aU)
    a(f"v_lshlrev_b32 v12, 2, v0\nds_write_b32 v12, v{aG} offset:{L_P+1024}\nds_write_b32 v12, v{aU} offset:{L_P+2048}")
    mask1(a, MK, 1, vT0, vT1)
    def check():
        a(f"v_xor_b32 v40, s{sTAG}, v33\nv_xor_b32 v41, s{sTAG}, v35\nv_xor_b32 v42, s{sTAG}, v37\nv_xor_b32 v43, s{sTAG}, v39")
        a("v_or3_b32 v40, v40, v41, v42\nv_or_b32 v40, v40, v43\nv_cmp_ne_u32 vcc, 0, v40\ns_cbranch_vccz g_ok")
    a(f"s_mov_b32 s78, 0\ns_waitcnt vmcnt({B3-B2})")
    check()
    a("s_mov_b32 s78, 1"); gather(); kpre(B3, B4)
    a(f"s_waitcnt vmcnt({B4-B3})")
    check()
    a("s_mov_b32 s78, 2"); gather(); kpre(B4, 32)
    a(f"s_mov_b32 s96, {SPIN}\ns_waitcnt vmcnt({32-B4})")
    a("g_spin:")
    check()
    a("s_sub_u32 s96, s96, 1\ns_cmp_eq_u32 s96, 0\ns_cbranch_scc1 g_ok\ns_sleep 8")
    gather()
    a("s_waitcnt vmcnt(0)\ns_branch g_spin")
    a("g_ok:")
    stamp(a, 11)
    a("v_add_f32 v32, v32, v34\nv_add_f32 v36, v36, v38\nv_add_f32 v32, v32, v36")
    a("v_cvt_pk_bf16_f32 v32, v32, v32\nv_lshlrev_b32 v33, 1, v0\nds_write_b16 v33, v32")
    a("v_and_b32 v34, 31, v1\nv_lshlrev_b32 v34, 4, v34")
    a("s_max_u32 s8, s3, 1\ns_min_u32 s8, s8, 2\ns_lshl_b32 s8, s8, 10\nv_lshl_add_u32 v35, v1, 2, s8")
    a(f"s_waitcnt lgkmcnt(0)\ns_barrier\nds_read_b128 v[{vQ}:{vQ+3}], v34")
    a(f"ds_read2st64_b32 v[40:41], v35 offset0:{L_P//256} offset1:{L_P//256+1}\nds_read2st64_b32 v[42:43], v35 offset0:{L_P//256+2} offset1:{L_P//256+3}")
    a("s_cmp_eq_u32 s78, 2\ns_cbranch_scc1 g_p2\ns_cmp_eq_u32 s78, 1\ns_cbranch_scc1 g_p1")
    kpre(B3, B4)
    a("g_p1:"); kpre(B4, 32)
    a("g_p2:")
    a(f"s_waitcnt lgkmcnt(0)\nv_add_f32 v40, v40, v41\nv_add_f32 v42, v42, v43\nv_add_f32 v{vSD}, v40, v42")
    a(f"buffer_store_dwordx2 v[{vSD}:{vSD+1}], v46, {SW}, s14 offen sc1")
    a(f"v_mov_b32 v{vMX}, 0xff800000\nv_mov_b32 v{vLS}, 0")
    for r in range(4): a(f"v_mov_b32 v{ACC+r}, 0")
    stamp(a, 2)
    a("s_cmp_eq_u32 s3, 0\ns_cbranch_scc1 streamer")
    k_body(a, RA, lambda j: None if j < B2 else 32-j, None)
    k_body(a, RB, lambda j: None if 16+j < B2 else 16-j, None)
    a("s_waitcnt lgkmcnt(0)\ns_barrier\ns_cmp_lg_u32 s3, 1\ns_cbranch_scc1 main_fin")
    a(f"v_mov_b32 v{vT0}, 0\ns_barrier\nds_read_b32 v{vT1}, v{vT0} offset:{L_V+4}")
    a(f"v_add_u32 v{vSW}, {(MS+1-4)*64}, v{vSW}\ns_mov_b32 s{sD}, 2\ns_mov_b32 s{sS}, 128\ns_mov_b32 s{sXF}, 0\ns_mov_b32 s{sK}, {MS+5}")
    a(f"s_waitcnt lgkmcnt(0)\nv_readfirstlane_b32 s{sOV}, v{vT1}")
    sb_const(a, sOV, MS+1); refill_all(a, RA, SV)
    sb_const(a, sOV, MS+3); refill_all(a, RB, SV)
    a("s_branch v_loop" if MS+5 < 64 else "s_branch v_fin")
    a("streamer:")
    sb_const(a, sOK, 8)
    k_body(a, RA, lambda j: None if j < B2 else 32-j, lambda: refill_all(a, RA, SK))
    stamp(a, 13)
    sb_odd(a)
    k_body(a, RB, lambda j: None if 16+j < B2 else 32-j, lambda: refill_all(a, RB, SK))
    stamp(a, 14)
    a(f"v_add_u32 v{vSW}, 384, v{vSW}\ns_barrier")
    sb_const(a, sOK, 10)
    vote_load(a)
    k_body(a, RA, lambda j: 32-j, lambda: refill_all(a, RA, SK))
    sb_odd(a)
    k_body(a, RB, lambda j: 32-j, lambda: refill_all(a, RB, SK))
    a(f"s_mov_b32 s96, {SPIN}\ns_waitcnt vmcnt(32)")
    a("vt_chk:")
    tally(a, 32)
    a("s_cbranch_scc0 vt_spin")
    a("vt_ok:")
    if opt("FLIP", 0): a(f"s_xor_b32 s9, s9, {opt('FLIP', 0)}")
    a("s_lshr_b32 s8, s9, 2\ns_xor_b32 s4, s4, s8")
    a(f"s_lshr_b32 s8, s9, 1\ns_xor_b32 s8, s8, s4\ns_and_b32 s8, s8, 1\ns_lshl_b32 s8, s8, 13\ns_xor_b32 s{sOV}, s83, s8")
    a(f"s_xor_b32 s{sXF}, s{sOK}, s{sOV}")
    a(f"s_bfe_u32 s8, s{sXF}, 0x1000e\ns_xor_b32 s6, s2, s8\ns_bfe_u32 s8, s{sXF}, 0x1000c\ns_lshl_b32 s8, s8, 1\ns_xor_b32 s6, s6, s8")
    a(f"s_bfe_u32 s8, s{sXF}, 0x1000d\ns_lshl_b32 s8, s8, 2\ns_xor_b32 s6, s6, s8\ns_cmp_lg_u32 s6, s2\ns_cselect_b32 s{sXF}, 0x2000, 0")
    a(f"s_xor_b32 s8, s9, s4\ns_and_b32 s8, s8, 1\ns_lshl_b32 s8, s8, 13\ns_xor_b32 s{sOK}, s83, s8")
    a(f"s_xor_b32 s8, s{sOK}, s{sOV}\ns_lshl_b32 s8, s8, 1\ns_or_b32 s{sXF}, s{sXF}, s8")
    a(f"v_mov_b32 v32, 0\nv_mov_b32 v33, s{sOV}\nds_write_b32 v32, v33 offset:{L_V+4}")
    jitter(a, 3333, 7)
    a(f"s_mov_b32 s{sK}, 12")
    a("k_loop:")
    sb_off(a, sOK, sK, 1)
    k_body(a, RA, lambda j: 31-j, lambda: refill_all(a, RA, SK))
    sb_odd(a)
    k_body(a, RB, lambda j: 31-j, lambda: refill_all(a, RB, SK))
    if STAMP:
        a(f"s_cmp_lg_u32 s{sK}, 12\ns_cbranch_scc1 k_st"); stamp(a, 12); a("k_st:")
    a(f"s_cmp_lg_u32 s{sK}, 12\ns_cbranch_scc1 k_next\ns_bitcmp0_b32 s{sXF}, 13\ns_cbranch_scc1 k_next")
    a(f"s_waitcnt lgkmcnt(0)\nds_read2st64_b32 v[24:25], v{vSB} offset0:0 offset1:1\nds_read_b32 v26, v{vSB} offset:512\nv_mov_b32 v27, s{sTAG}\ns_lshl_b32 s8, s2, 10\ns_waitcnt lgkmcnt(0)")
    a(f"buffer_store_dwordx4 v[24:27], v17, {SW}, s8 offen sc1")
    a("k_next:")
    a(f"s_add_u32 s{sK}, s{sK}, 2\ns_cmp_lt_u32 s{sK}, 64\ns_cbranch_scc1 k_loop")
    jitter(a, 44444, 6)
    sb_const(a, sOV, 0)
    a(f"s_bitcmp0_b32 s{sXF}, 13\ns_cbranch_scc1 t_nop1")
    xp_load(a)
    a("t_nop1:")
    k_body(a, RA, lambda j: 31-j, lambda: refill_all(a, RA, SV))
    sb_odd(a)
    k_body(a, RB, lambda j: 31-j, lambda: refill_all(a, RB, SV))
    a(f"v_subrev_u32 v{vSW}, 4096, v{vSW}")
    a(f"s_bitcmp0_b32 s{sXF}, 13\ns_cbranch_scc1 t_nop2")
    a("s_waitcnt vmcnt(32)")
    x_check(a, "p", [63], xp_load)
    a(f"ds_write2st64_b32 v{vSB}, v60, v61 offset0:0 offset1:1\nds_write_b32 v{vSB}, v62 offset:512")
    a("t_nop2:")
    a(f"s_bitcmp0_b32 s{sXF}, 14\ns_cbranch_scc1 t_nor")
    a("s_waitcnt lgkmcnt(0)")
    for g, R in enumerate(XRR):
        r = 3+3*g
        if g < 4: a(f"ds_read2st64_b32 v[{R}:{R+1}], v{vSB} offset0:{r} offset1:{r+1}\nds_read_b32 v{R+2}, v{vSB} offset:{(r+2)*256}")
        else: a(f"ds_read_b32 v{R}, v{vSB} offset:{r*256}")
        a(f"v_mov_b32 v{R+3}, s{sTAG}")
    a("s_waitcnt lgkmcnt(0)")
    xr_ops(a, "buffer_store_dwordx4", sXO)
    a("t_nor:")
    a("; ---- V phase")
    a(f"s_mov_b32 s{sK}, 2\ns_mov_b32 s{sD}, 1\ns_mov_b32 s{sS}, 64")
    stamp(a, 3)
    a("v_loop:")
    a(f"s_cmp_eq_u32 s{sK}, {MS}\ns_cbranch_scc1 v_share\ns_cmp_eq_u32 s{sK}, {MS+4}\ns_cselect_b32 s{sS}, 128, s{sS}")
    a(f"s_bitcmp0_b32 s{sXF}, 14\ns_cbranch_scc1 v_go\ns_cmp_eq_u32 s{sK}, 12\ns_cbranch_scc1 v_xr1\ns_cmp_eq_u32 s{sK}, 14\ns_cbranch_scc1 v_xr2")
    a("v_go:")
    sb_off(a, sOV, sK)
    v_head(a)
    v_body(a, RA, 16, lambda: refill_all(a, RA, SV))
    a(f"s_add_u32 s{sK}, s{sK}, s{sD}")
    sb_off(a, sOV, sK)
    v_head(a)
    v_body(a, RB, 16, lambda: refill_all(a, RB, SV))
    a(f"s_add_u32 s{sK}, s{sK}, s{sD}\ns_cmp_lt_u32 s{sK}, 64\ns_cbranch_scc1 v_loop")
    a(f"v_fin:\ns_mov_b32 s{sS}, 128")
    tagsel(a)
    jitter(a, 555555, 5)
    a("s_cmp_eq_u32 s3, 0\ns_cbranch_scc1 v_last0")
    v_head(a)
    v_body(a, RA, 16, None)
    v_head(a); ml_out(a)
    v_body(a, RB, 0, None)
    a("s_branch v_end")
    a("v_last0:")
    srd(a, 52, 24, 4096*896)
    a("v_lshrrev_b32 v46, 4, v1\nv_mul_u32_u24 v19, 1792, v46\nv_and_b32 v18, 15, v1\nv_lshlrev_b32 v18, 4, v18\nv_lshl_add_u32 v46, v19, 1, v18\nv_add_u32 v19, v19, v18")
    a("v_and_b32 v18, 7, v1\nv_lshlrev_b32 v18, 6, v18\nv_and_b32 v47, 56, v1\nv_add_u32 v18, v18, v47")
    a(f"s_mul_i32 s10, s2, {16*896}\ns_min_u32 s14, s2, 223\ns_mul_i32 s14, s14, {8*896}\ns_lshl_b32 s12, s2, 10\ns_add_u32 s12, s12, {GU}")
    def wdo():
        gu_load(a)
        for i in range(8):
            a(f"buffer_load_dwordx4 {ring(RD,i)}, v19, s[68:71], s14 offen offset:{(i//4)*896+(i%4)*256} nt")
        for j in range(16):
            a(f"buffer_load_dwordx4 {ring(RA,j)}, v46, s[52:55], s10 offen offset:{(j//4)*896+(j%4)*256} nt")
    v_head(a)
    v_body(a, RA, 16, wdo)
    v_head(a); ml_out(a)
    v_body(a, RB, 26, None)
    a("v_end:")
    stamp(a, 4)
    a(f"ds_write_b128 v{vT1}, v[{ACC}:{ACC+3}] offset:{L_O}")
    a("s_waitcnt lgkmcnt(0)\ns_barrier")
    a("s_cmp_eq_u32 s3, 0\ns_cbranch_scc1 tail0")
    a("s_cmp_ge_u32 s2, 112\ns_cbranch_scc1 main_fin")
    reducer(a)
    a("s_branch main_fin")
    a("tail0:")
    tail0(a)
    a("main_fin:")
    stamp(a, 7); stamp_out(a)
    a("main_done:\ns_endpgm")
    a("v_xr1:"); xr_load(a); a("s_branch v_go")
    a(f"v_share:\ns_waitcnt lgkmcnt(0)\ns_barrier\ns_mov_b32 s{sD}, 2\ns_branch v_go")
    a("v_xr2:\ns_waitcnt vmcnt(32)")
    x_check(a, "r", [R+3 for R in XRR], xr_load)
    for g, R in enumerate(XRR):
        r = 3+3*g
        if g < 4: a(f"ds_write2st64_b32 v{vSB}, v{R}, v{R+1} offset0:{r} offset1:{r+1}\nds_write_b32 v{vSB}, v{R+2} offset:{(r+2)*256}")
        else: a(f"ds_write_b32 v{vSB}, v{R} offset:{r*256}")
    a("s_branch v_go")
    a("vt_spin:\ns_sub_u32 s96, s96, 1\ns_cmp_eq_u32 s96, 0\ns_cbranch_scc1 vt_ok\ns_sleep 8")
    vote_load(a)
    a("s_waitcnt vmcnt(0)\ns_branch vt_chk")
    return a.text() + "code_end:\n", kd(K, 232 if STAMP else 224, 102)

def reducer(a):
    a("; ---- wave 1 of workgroups 0..111: out[4b..4b+3] = x + sum of the 256 partials")
    srd(a, 52, 16, 896); srd(a, 56, 34, 896)
    a(f"v_mov_b32 v18, {hex(OOB)}\ns_mul_i32 s11, s2, {YS}\ns_add_u32 s11, s11, {YA}\ns_lshl_b32 s13, s2, 3")
    a("v_lshrrev_b32 v2, 4, v1\nv_lshlrev_b32 v2, 1, v2\nv_and_b32 v3, 15, v1\nv_cmp_eq_u32 vcc, 0, v3\nv_cndmask_b32 v3, v18, v2, vcc")
    a("buffer_load_ushort v4, v2, s[52:55], s13 offen")
    for n in range(4): a(f"v_mov_b32 v{10+n}, v17\ns_mov_b64 s[{60+2*n}:{61+2*n}], -1")
    a(f"s_mov_b32 s96, {SPIN}")
    a("red_spin:")
    for n in range(4):
        a(f"buffer_load_dwordx4 v[{80+4*n}:{83+4*n}], v{10+n}, {SW}, s11 offen offset:{1024*n} sc1")
    a("s_waitcnt vmcnt(0)")
    for n in range(4):
        R = 80+4*n
        a(f"s_mov_b64 exec, s[{60+2*n}:{61+2*n}]\ns_cbranch_execz red_skip{n}")
        tagbad(a, 40, R, 41)
        a(f"v_cmp_eq_u32 vcc, 0, v40\ns_andn2_b64 s[{60+2*n}:{61+2*n}], exec, vcc\ns_and_b64 exec, exec, vcc")
        for r in range(4): a(f"v_and_b32 v{64+4*n+r}, 0xffffff00, v{R+r}")
        a(f"v_mov_b32 v{10+n}, v18")
        a(f"red_skip{n}:")
    a("s_mov_b64 exec, -1")
    a("s_or_b64 s[80:81], s[60:61], s[62:63]\ns_or_b64 s[82:83], s[64:65], s[66:67]\ns_or_b64 s[80:81], s[80:81], s[82:83]\ns_cbranch_scc0 red_ok")
    a("s_sub_u32 s96, s96, 1\ns_cmp_lg_u32 s96, 0\ns_cbranch_scc1 red_spin")
    a("red_ok:")
    stamp(a, 6)
    for r in range(4):
        a(f"v_add_f32 v{64+r}, v{64+r}, v{68+r}\nv_add_f32 v{72+r}, v{72+r}, v{76+r}")
    for r in range(4): a(f"v_add_f32 v{64+r}, v{64+r}, v{72+r}")
    multiT(a, "v_permlane32_swap_b32", [(64, 66), (65, 67)])
    T16(a, 64, 65)
    rowall(a, [64])
    a("v_lshlrev_b32 v4, 16, v4\nv_add_f32 v64, v64, v4\nv_cvt_pk_bf16_f32 v64, v64, v64")
    a("buffer_store_short v64, v3, s[56:59], s13 offen")
    a("s_cmp_lg_u32 s2, 0\ns_cbranch_scc1 main_fin")
    a(f"s_mov_b32 s8, {EPO}\nv_cmp_eq_u32 vcc, 0, v1\nv_cndmask_b32 v3, v18, v1, vcc\nbuffer_store_dword v{vTAG}, v3, {SW}, s8 offen")

def tail0(a):
    a("; ---- wave 0: merge waves 0 and 1, hand 16-column slices of (m, l, o) to the 16 workgroups of the head")
    a(f"ds_read_b64 v[28:29], v{vT2} offset:{L_M}\nds_read_b64 v[36:37], v{vT2} offset:{L_L}")
    a(f"ds_read_b128 v[160:163], v{vT1} offset:{L_O+1024}")
    a("v_and_b32 v44, 15, v1\nv_lshlrev_b32 v45, 7, v44\nv_and_b32 v47, 48, v1\nv_add_u32 v44, v45, v47")
    a(f"s_lshl_b32 s15, s2, 11\ns_add_u32 s15, s15, {OIN}")
    a("s_waitcnt lgkmcnt(1)")
    a(f"v_max_f32 v{vMX}, v28, v29")
    for w in range(2): a(f"v_sub_f32 v{28+w}, v{28+w}, v{vMX}")
    for w in range(2): a(f"v_mul_f32 v{28+w}, s88, v{28+w}")
    for w in range(2): a(f"v_exp_f32 v{28+w}, v{28+w}")
    a(f"v_mul_f32 v{vMX+1}, v28, v36\nv_fmac_f32 v{vMX+1}, v29, v37")
    for r in range(4): a(f"v_mul_f32 v{48+r}, v28, v{48+r}")
    a("s_waitcnt lgkmcnt(0)")
    for r in range(4): a(f"v_fmac_f32 v{48+r}, v29, v{160+r}")
    tagbytes(a, 48)
    a(f"buffer_store_dwordx4 v[48:51], v{vPO}, {SW}, s{sPO} offen sc1")
    a(f"buffer_store_dwordx4 v[{vMX}:{vMX+3}], v{vPM}, {SW}, s{sPM} offen sc1")
    stamp(a, 5)
    def poll():
        a(f"buffer_load_dwordx4 v[24:27], v44, {SW}, s15 offen sc1")
        a(f"buffer_load_dwordx4 v[28:31], v45, {SW}, s15 offen offset:64 sc1")
    poll()
    mask2(a, MK, 1, vT0, vT1)
    a("s_cmp_lt_u32 s2, 224\ns_cselect_b32 s9, -1, 0\ns_waitcnt vmcnt(4)")
    a(f"s_mov_b32 s96, {SPIN}\ngu_chk:")
    a(f"v_xor_b32 v40, s{sTAG}, v43\nv_xor_b32 v41, s{sTAG}, v33\nv_or_b32 v40, v40, v41\nv_and_b32 v40, s9, v40\nv_cmp_ne_u32 vcc, 0, v40\ns_cbranch_vccz gu_ok")
    a("s_sub_u32 s96, s96, 1\ns_cmp_eq_u32 s96, 0\ns_cbranch_scc1 gu_ok\ns_sleep 2")
    gu_load(a)
    a("s_waitcnt vmcnt(0)\ns_branch gu_chk\ngu_ok:")
    a("v_and_b32 v42, s9, v42\nv_and_b32 v32, s9, v32")
    g, u = 176, 177
    T4(a, g, 42, 42); T4(a, u, 32, 32)
    for q in ("[2,3,0,1]", "[1,0,3,2]"):
        for A in (g, u): a(f"v_add_f32_dpp v{A}, v{A}, v{A} quad_perm:{q} {FULL}")
    rnd(a, g, g); rnd(a, u, u)
    a(f"v_mul_f32 v8, v{g}, v{g}\nv_mul_f32 v8, v8, v{g}")
    a(f"v_mul_f32 v8, {fl(0.044715)}, v8\nv_add_f32 v8, v8, v{g}\nv_mul_f32 v8, {fl(0.7978845608028654)}, v8")
    a(f"v_mul_f32 v8, {fl(2*LOG2E)}, v8\nv_exp_f32 v8, v8\nv_add_f32 v8, 1.0, v8\nv_rcp_f32 v8, v8")
    a(f"v_fma_f32 v8, v8, -2.0, 2.0")
    a(f"v_mul_f32 v9, 0.5, v{g}\nv_mul_f32 v8, v8, v9")
    rnd(a, 8, 8)
    a(f"v_mul_f32 v8, v8, v{u}\nv_cvt_pk_bf16_f32 v8, v8, v8")
    for n in range(2):
        for r in range(4):
            a(f"v_and_b32_dpp v{176+4*n+r}, v8, v{MK+r} row_newbcast:{8*n} {FULL}")
    Y = 160
    for n in range(2):
        for blk in range(4):
            D = f"v[{Y+4*blk}:{Y+3+4*blk}]"
            a(f"v_mfma_f32_16x16x32_bf16 {D}, v[{176+4*n}:{179+4*n}], {ring(RD, n*4+blk)}, {'0' if n==0 else D}")
    a(f"s_mov_b32 s96, {SPIN}")
    a("t0_spin:")
    a("s_waitcnt vmcnt(0)")
    tagbad(a, 40, 24, 41)
    a(f"v_xor_b32 v41, v31, v{vTAG}\nv_or_b32 v40, v40, v41")
    a("v_cmp_eq_u32 vcc, 0, v40\ns_andn2_b64 s[78:79], exec, vcc\ns_and_b64 exec, exec, vcc")
    for r in range(4): a(f"v_and_b32 v{32+r}, 0xffffff00, v{24+r}")
    a("v_mov_b32 v36, v28\nv_mov_b32 v37, v29")
    a("s_mov_b64 exec, s[78:79]\ns_cbranch_execz t0_ok")
    poll()
    a("s_sub_u32 s96, s96, 1\ns_cmp_lg_u32 s96, 0\ns_cbranch_scc1 t0_spin")
    a("t0_ok:\ns_mov_b64 exec, -1")
    stamp(a, 6)
    a(f"v_max_f32_dpp v38, v36, v36 row_ror:8 {FULL}")
    for r in (4, 2, 1): a(f"v_max_f32_dpp v38, v38, v38 row_ror:{r} {FULL}")
    a("v_sub_f32 v36, v36, v38\nv_mul_f32 v36, s88, v36\nv_exp_f32 v36, v36")
    for r in range(4): a(f"v_mul_f32 v{32+r}, v{32+r}, v36")
    a("v_mul_f32 v36, v36, v37")
    rowall(a, [36, 32, 33, 34, 35])
    a("v_rcp_f32 v37, v36")
    for r in range(4): a(f"v_mul_f32 v{32+r}, v{32+r}, v37")
    for r in range(4): a(f"v_cvt_pk_bf16_f32 v{32+r}, v{32+r}, v{32+r}")
    def bld(n):
        for r in range(4): a(f"v_and_b32 v{176+4*n+r}, v{32+n}, v{MK+r}")
    def mm(n, blk):
        D = f"v[{Y+4*blk}:{Y+3+4*blk}]"
        a(f"v_mfma_f32_16x16x32_bf16 {D}, v[{176+4*n}:{179+4*n}], {ring(RA, n*4+blk)}, {D}")
    bld(0); bld(1)
    mm(0, 0); mm(0, 1); bld(2); mm(0, 2); mm(0, 3); bld(3)
    a(f"s_mov_b32 s8, s{sYA}")
    for blk in range(4):
        for n in range(1, 4): mm(n, blk)
        if blk:
            tagbytes(a, Y+4*(blk-1))
            a(f"buffer_store_dwordx4 v[{Y+4*(blk-1)}:{Y+4*(blk-1)+3}], v{vY}, {SW}, s8 offen sc1\ns_add_u32 s8, s8, {32*YS}")
    tagbytes(a, Y+12)
    a(f"buffer_store_dwordx4 v[{Y+12}:{Y+15}], v{vY3}, {SW}, s8 offen sc1")

DOC = """; One launch, 256 workgroups, one per CU; HBM-bound (K and V are each read once, nt).
"""
if __name__ == "__main__":
    t, k = kernel()
    s = HEADER + DOC + "; @launch grid=(256,1,1) block=(256,1,1) lds=9216\n"
    s += '.amdgcn_target "amdgcn-amd-amdhsa--gfx950"\n.text\n' + t + k
    open(sys.argv[1], "w").write(s)
```

```python
import sys
from common import *

OPT = set(sys.argv[2:])
STAMP = "stamp" in OPT
def opt(name, d):
    for o in OPT:
        if o.startswith(name+"="): return int(o.split("=")[1])
    return d
SYM, SYMB = opt("SYM", 2), opt("SYMB", 1)
SPIN = 200000
B1, BA, B2, B3, B4 = opt("B1", 6), opt("BA", 10), opt("B2", 14), opt("B3", 24), opt("B4", 28)
XP   = 0x000000
XR   = 0x040000
YA   = 0x180000
OIN  = 0x200000
QP   = 0x2C0000
VOTE = 0x2E0000
EPO  = 0x2F8000
GU   = 0x300000
WSSZ = 0x340000
STB  = 0x390000
VSTR = YS = 4352
RA, RB, RD = 64, 128, 192
P0 = 32
vLO, vHI, vQ, vSW, vSB, vSC = 2, 3, 4, 8, 9, 10
vLS, vP, vT0, vT1, vT2 = 12, 13, 14, 15, 16
vRP = 19
MK, AA, ACC = 20, 24, 48
vMX, vSH, vSD = 52, 53, 54
vTAG = 55
vPO, vPM, vY, vY3 = 56, 57, 58, 59
sTAG, sOK, sOV, sO, sXF, sK = 89, 90, 91, 92, 93, 94
sXO, sXI = 97, 7
sPO, sPM, sYA = 80, 81, 82
SK, SV, SW = "s[40:43]", "s[44:47]", "s[48:51]"
L_M, L_L, L_V, L_O, L_P, L_S = 512, 528, 544, 1024, 1024, 5120

def stamp(a, i):
    if STAMP: a(f"s_memrealtime s[98:99]\ns_waitcnt lgkmcnt(0)\nv_writelane_b32 v224, s98, {i}")
def stamp_out(a):
    if STAMP:
        a(f"s_mov_b32 s50, 0x400000\ns_lshl_b32 s8, s2, 2\ns_add_u32 s8, s8, s3\ns_lshl_b32 s8, s8, 6\ns_add_u32 s8, s8, {STB}")
        a(f"v_lshlrev_b32 v225, 2, v1\nv_mov_b32 v226, {hex(OOB)}\nv_cmp_gt_u32 vcc, 16, v1\nv_cndmask_b32 v225, v226, v225, vcc\nbuffer_store_dword v224, v225, s[48:51], s8 offen")

MASK = {'5': 1 << 17, '6': 1 << 18, '7': 0x84000, '8': 0x101000, '9': 0x202000, 'A': 1 << 22}
ORD = [o.split("=")[1] for o in OPT if o.startswith("ORD=")]
ORD = ORD[0] if ORD else "9B8765"
def T_of(k):
    x = 0
    for q in range(6):
        if k >> q & 1: x ^= MASK[ORD[q]]
    return x
MS = 64 - opt("NB", 8)
sD, sS, sE = 13, 15, 14
def sb_off(a, base, kreg, lo=0):
    a(f"s_mov_b32 s{sO}, s{base}")
    for q in range(lo, 6):
        a(f"s_bitcmp1_b32 s{kreg}, {q}\ns_cselect_b32 s95, {hex(MASK[ORD[q]])}, 0\ns_xor_b32 s{sO}, s{sO}, s95")
def sb_odd(a):
    a(f"s_xor_b32 s{sO}, s{sO}, {hex(MASK[ORD[0]])}")
def sb_const(a, base, k):
    a(f"s_xor_b32 s{sO}, s{base}, {hex(T_of(k))}" if k else f"s_mov_b32 s{sO}, s{base}")
def ring(R, j): return f"v[{R+4*j}:{R+4*j+3}]"
JORD = [o.split("=")[1] for o in OPT if o.startswith("JORD=")]
JORD = JORD[0] if JORD else "4021"
def kvload(a, R, j, srdname):
    off, hi = 0, 0
    for q in range(4):
        if j >> q & 1:
            if JORD[q] == "4": hi = 1
            else: off |= 512 << int(JORD[q])
    a(f"buffer_load_dwordx4 {ring(R,j)}, v{vHI if hi else vLO}, {srdname}, s{sO} offen offset:{off} nt")
jit_n = [0]
def jitter(a, salt, shift):
    if "jit" not in OPT: return
    jit_n[0] += 1; n = jit_n[0]
    a(f"s_lshl_b32 s26, s2, 2\ns_add_u32 s26, s26, s3\ns_add_u32 s26, s26, {salt}\ns_mul_i32 s26, s26, 0x9e3779b1\ns_lshr_b32 s27, s26, 29\ns_cmp_lg_u32 s27, 0\ns_cbranch_scc1 jit_e{n}")
    a(f"s_bfe_u32 s26, s26, {hex(0x10 | (shift << 16))}\ns_add_u32 s26, s26, 1\njit_l{n}:\ns_sleep 16\ns_sub_u32 s26, s26, 1\ns_cmp_lg_u32 s26, 0\ns_cbranch_scc1 jit_l{n}\njit_e{n}:")
def refill_all(a, R, srdname):
    for j in range(16): kvload(a, R, j, srdname)

def lines_of(fn):
    t = Asm(); fn(t); return t.lines
def weave(a, loads, work):
    n = len(loads); per = -(-len(work) // n) if n else 0
    for i, l in enumerate(loads):
        a(l)
        for w in work[i*per:(i+1)*per]: a(w)
    for w in work[n*per:]: a(w)

def k_body(a, R, wait, refill):
    KI = opt("KI", 2)
    for j0 in range(0, 16, KI):
        w = wait(j0+KI-1)
        if w is not None: a(f"s_waitcnt vmcnt({w})")
        for i in range(4):
            for j in range(j0, j0+KI):
                a(f"v_dot2_f32_bf16 v{P0+j}, v{R+4*j+i}, v{vQ+i}, {'0' if i == 0 else 'v%d' % (P0+j)}")
    weave(a, lines_of(refill) if refill else [], lines_of(k_reduce))

def k_reduce(a):
    for j in range(8):
        a(f"v_add_f32_dpp v{P0+j}, v{P0+j}, v{P0+j} row_ror:8 row_mask:0xf bank_mask:0x3")
    for j in range(8):
        a(f"v_add_f32_dpp v{P0+j}, v{P0+8+j}, v{P0+8+j} row_ror:8 row_mask:0xf bank_mask:0xc")
    for j in range(4):
        a(f"v_add_f32_dpp v{P0+j}, v{P0+j}, v{P0+j} row_shl:4 row_mask:0xf bank_mask:0x5")
    for j in range(4):
        a(f"v_add_f32_dpp v{P0+j}, v{P0+4+j}, v{P0+4+j} row_shr:4 row_mask:0xf bank_mask:0xa")
    for j in range(4):
        a(f"v_add_f32_dpp v{P0+j}, v{P0+j}, v{P0+j} quad_perm:[2,3,0,1] {FULL}")
    a(f"v_cndmask_b32 v{P0}, v{P0}, v{P0+2}, s[84:85]\nv_cndmask_b32 v{P0+1}, v{P0+1}, v{P0+3}, s[84:85]")
    for j in range(2):
        a(f"v_add_f32_dpp v{P0+j}, v{P0+j}, v{P0+j} quad_perm:[1,0,3,2] {FULL}")
    a(f"v_cndmask_b32 v{P0}, v{P0}, v{P0+1}, s[86:87]")
    B16(a, P0, P0+1)
    a(f"v_mov_b32 v{P0+1}, v{P0}\nv_permlane32_swap_b32 v{P0}, v{P0+1}\nv_cvt_pk_bf16_f32 v{vSD}, v{P0}, v{P0+1}")
    a(f"ds_write_b32 v{vSW}, v{vSD}\nv_add_u32 v{vSW}, 64, v{vSW}")

def v_fetch(a, step):
    a(f"ds_read_b32 v{vSC}, v{vSW}\nv_add_u32 v{vSW}, s{step}, v{vSW}")
def v_head(a, step=None):
    if step is not None: v_fetch(a, step)
    a("s_waitcnt lgkmcnt(0)")
    a(f"v_lshlrev_b32 v{vT2}, v{vSH}, v{vSC}\nv_and_b32 v{vT2}, 0xffff0000, v{vT2}")
    a(f"v_max_f32_dpp v{vT0}, v{vT2}, v{vT2} row_ror:8 {FULL}")
    for r in (4, 2, 1): a(f"v_max_f32_dpp v{vT0}, v{vT0}, v{vT0} row_ror:{r} {FULL}")
    B32(a, vT0, vT1, "v_max_f32")
    a(f"v_max_f32 v{vT0}, v{vT0}, v{vMX}")
    a(f"v_sub_f32 v{vT1}, v{vMX}, v{vT0}\nv_sub_f32 v{vT2}, v{vT2}, v{vT0}")
    a(f"v_mov_b32 v{vMX}, v{vT0}")
    a(f"v_mul_f32 v{vT1}, s88, v{vT1}\nv_mul_f32 v{vT2}, s88, v{vT2}")
    a(f"v_exp_f32 v{vT1}, v{vT1}\nv_exp_f32 v{vT2}, v{vT2}")
    a(f"v_cvt_pk_bf16_f32 v{vP}, v{vT2}, v{vT2}")
    a(f"v_fma_f32 v{vLS}, v{vLS}, v{vT1}, v{vT2}")
    for r in range(4): a(f"v_mul_f32 v{ACC+r}, v{ACC+r}, v{vT1}")

def v_body(a, R, extra_ops, refill, after, step=None, salu=None):
    def build(j):
        for r in range(4):
            a(f"v_and_b32_dpp v{AA+4*(j&1)+r}, v{vP}, v{MK+r} row_newbcast:{j} {FULL}")
    fill = lines_of(salu) if salu else []
    while len(fill) > 16: a(fill.pop(0))
    build(0)
    for j in range(16):
        a(f"s_waitcnt vmcnt({15 - j + extra_ops})")
        if fill: a(fill.pop(0))
        A = AA+4*(j&1)
        a(f"v_mfma_f32_16x16x32_bf16 v[{ACC}:{ACC+3}], v[{A}:{A+3}], {ring(R,j)}, v[{ACC}:{ACC+3}]")
        if j == 6 and step is not None: v_fetch(a, step)
        if j < 15: build(j+1)
    weave(a, lines_of(refill) if refill else [], lines_of(after) if after else [])

def ml_out(a):
    rowall(a, [vLS]); B32(a, vLS, vT0)
    a(f"s_lshl_b32 s8, s3, 2\nv_mov_b32 v{vT2}, s8\nds_write_b32 v{vT2}, v{vMX} offset:{L_M}\nds_write_b32 v{vT2}, v{vLS} offset:{L_L}")
    a(f"v_lshlrev_b32 v{vT1}, 4, v0\nv_mov_b32 v{vT2}, 0")

XRR = [32, 36, 40, 44, 60]
def xp_load(a):
    a(f"s_lshl_b32 s8, s6, 10\nbuffer_load_dwordx4 v[60:63], v17, {SW}, s8 offen sc1")
def xr_ops(a, op, idx):
    a(f"s_mul_i32 s8, s{idx}, 5120\ns_add_u32 s8, s8, {XR}\ns_add_u32 s9, s8, 4096")
    for g, R in enumerate(XRR):
        a(f"{op} v[{R}:{R+3}], v17, {SW}, s{8 if g < 4 else 9} offen offset:{1024*(g&3)} sc1")
def xr_load(a): xr_ops(a, "buffer_load_dwordx4", sXI)
def x_check(a, tag, tagregs, load):
    a(f"s_mov_b32 s96, {SPIN}")
    a(f"x_chk_{tag}:")
    a(f"v_cmp_ne_u32 vcc, s{sTAG}, v{tagregs[0]}")
    for r in tagregs[1:]: a(f"v_cmp_ne_u32 s[10:11], s{sTAG}, v{r}\ns_or_b64 vcc, vcc, s[10:11]")
    a(f"s_cbranch_vccz x_ok_{tag}")
    a(f"s_sub_u32 s96, s96, 1\ns_cmp_eq_u32 s96, 0\ns_cbranch_scc1 x_ok_{tag}\ns_sleep 4")
    load(a)
    a(f"s_waitcnt vmcnt(0)\ns_branch x_chk_{tag}")
    a(f"x_ok_{tag}:")
def vote_load(a):
    a(f"buffer_load_dwordx4 v[60:63], v17, {SW}, s12 offen sc1")
def gu_load(a):
    a(f"buffer_load_dwordx2 v[42:43], v18, {SW}, s12 offen sc1\nbuffer_load_dwordx2 v[32:33], v18, {SW}, s12 offen offset:512 sc1")

def tally(a, T):
    for r in range(4): a(f"v_xor_b32 v{T+r}, s{sTAG}, v{60+r}")
    for r in range(4): a(f"v_cmp_gt_u32 s[{60+2*r}:{61+2*r}], 64, v{T+r}")
    for r in range(4): a(f"v_and_b32 v{T+r}, 1, v{60+r}\nv_and_b32 v{T+4+r}, 2, v{60+r}")
    for r in range(4): a(f"v_lshlrev_b32 v{T+4+r}, 9, v{T+4+r}")
    for r in range(4): a(f"v_or3_b32 v{T+r}, v{T+r}, v{T+4+r}, s77")
    for r in range(4): a(f"v_cndmask_b32 v{T+r}, 0, v{T+r}, s[{60+2*r}:{61+2*r}]")
    a(f"v_add3_u32 v{T}, v{T}, v{T+1}, v{T+2}\nv_add_u32 v{T}, v{T}, v{T+3}")
    a("s_andn2_b32 s8, s2, 4\ns_lshr_b32 s8, s8, 2")
    for r in range(4): a(f"v_readlane_b32 s{72+r}, v{60+r}, s8")
    waveall(a, T, T+1, "v_add_u32")
    a("s_bitcmp1_b32 s2, 0\ns_cselect_b32 s72, s73, s72\ns_cselect_b32 s74, s75, s74\ns_bitcmp1_b32 s2, 1\ns_cselect_b32 s72, s74, s72")
    a(f"v_readfirstlane_b32 s8, v{T}")
    if STAMP: a("v_writelane_b32 v224, s8, 15")
    a("s_lshr_b32 s73, s8, 20\ns_and_b32 s74, s8, 0x3ff\ns_bfe_u32 s75, s8, 0xa000a")
    a("s_bfe_u32 s9, s72, 0x10004\ns_lshl_b32 s9, s9, 2")
    a("s_cmp_gt_u32 s74, 128\ns_cselect_b32 s8, 1, 0\ns_or_b32 s9, s9, s8\ns_cmp_gt_u32 s75, 128\ns_cselect_b32 s8, 2, 0\ns_or_b32 s9, s9, s8")
    a("s_sub_u32 s8, s73, s74\ns_add_u32 s8, s8, 1\ns_max_u32 s74, s74, s8\ns_sub_u32 s8, s73, s75\ns_add_u32 s8, s8, 1\ns_max_u32 s75, s75, s8\ns_min_u32 s74, s74, s75")
    a(f"s_xor_b32 s72, s72, s{sTAG}\ns_cmp_lt_u32 s72, 64\ns_cselect_b32 s74, s74, 0\ns_cmp_gt_u32 s74, 128")

def tagsel(a):
    for r in range(4): a(f"s_mov_b32 s{72+r}, {hex(0x07060500+r)}")
    a("s_mov_b32 s76, 0x0c0c0400\ns_mov_b32 s77, 0x04000c0c")
def tagbytes(a, R):
    for r in range(4): a(f"v_perm_b32 v{R+r}, v{R+r}, v{vTAG}, s{72+r}")
def tagbad(a, d, R, t):
    a(f"v_perm_b32 v{d}, v{R+1}, v{R}, s76\nv_perm_b32 v{t}, v{R+3}, v{R+2}, s77")
    a(f"v_or_b32 v{d}, v{d}, v{t}\nv_xor_b32 v{d}, v{d}, v{vTAG}")

def kernel():
    a = Asm(); K = NAME + "_kernel"
    a(f".globl {K}\n.p2align 8\n.type {K},@function\n{K}:")
    a("s_cmp_ge_u32 s2, 256\ns_cbranch_scc1 main_done")
    stamp(a, 0)
    a("s_load_dwordx16 s[16:31], s[0:1], 0\ns_load_dwordx8 s[32:39], s[0:1], 64\ns_memtime s[100:101]")
    a("v_lshrrev_b32 v1, 6, v0\nv_readfirstlane_b32 s3, v1\nv_and_b32 v1, 63, v0")
    a("s_getpc_b64 s[98:99]\nipf_pc:\ns_lshr_b32 s5, s2, 3\ns_lshl_b32 s5, s5, 10\ns_min_u32 s5, s5, code_end-ipf_pc-1024\nv_lshl_add_u32 v63, v1, 4, s5")
    a("s_cmp_lg_u32 s3, 3\ns_cbranch_scc1 noipf\nglobal_load_dwordx4 v[28:31], v63, s[98:99]\nnoipf:")
    a("s_lshr_b32 s5, s2, 4\ns_and_b32 s6, s2, 15")
    a("v_lshlrev_b32 v17, 4, v1")
    a("v_lshrrev_b32 v18, 3, v1\nv_and_b32 v14, 7, v1\nv_lshlrev_b32 v14, 4, v14\nv_lshl_add_u32 v19, v18, 13, v14")
    a("v_mul_u32_u24 v47, 3584, v18\nv_add_u32 v47, v47, v14")
    a(f"v_mov_b32 v15, {hex(OOB)}\nv_cmp_gt_u32 vcc, 32, v1\nv_cndmask_b32 v14, v15, v19, vcc")
    a("v_cmp_gt_u32 vcc, 48, v1\nv_cndmask_b32 v16, v15, v47, vcc")
    a("v_lshlrev_b32 v18, 1, v18")
    a(f"v_and_b32 v{vLO}, 31, v1\nv_lshlrev_b32 v{vLO}, 4, v{vLO}\nv_lshrrev_b32 v{vHI}, 5, v1\nv_lshlrev_b32 v{vHI}, 15, v{vHI}\nv_add_u32 v{vLO}, v{vLO}, v{vHI}\nv_add_u32 v{vHI}, 0x10000, v{vLO}")
    a("s_bfe_u32 s7, s2, 0x20002\ns_mul_i32 s8, s7, 112\ns_mul_i32 s9, s3, 28\ns_add_u32 s8, s8, s9\ns_lshl_b32 s9, s8, 1")
    a("s_lshl_b32 s8, s8, 13\ns_lshl_b32 s10, s5, 9\ns_add_u32 s8, s8, s10\ns_and_b32 s10, s2, 3\ns_lshl_b32 s10, s10, 7\ns_add_u32 s8, s8, s10")
    a("s_lshr_b32 s11, s2, 3\ns_and_b32 s13, s2, 7")
    a(f"s_mul_i32 s12, s13, 56\ns_mul_i32 s14, s3, 14\ns_add_u32 s12, s12, s14\ns_mul_i32 s14, s12, 3584\ns_lshl_b32 s12, s12, 1\ns_lshl_b32 s15, s11, 7\ns_add_u32 s14, s14, s15")
    a("s_lshl_b32 s83, s11, 23")
    a("s_lshr_b32 s10, s2, 1\ns_lshr_b32 s15, s2, 7\ns_xor_b32 s10, s10, s15\ns_andn2_b32 s10, 1, s10\ns_lshl_b32 s10, s10, 12\ns_or_b32 s83, s83, s10")
    a("s_lshr_b32 s10, s2, 6\ns_xor_b32 s10, s10, s2\ns_and_b32 s10, s10, 1\ns_lshl_b32 s10, s10, 14\ns_or_b32 s83, s83, s10")
    if opt("XS", 0): a(f"s_xor_b32 s83, s83, {hex((opt('XS', 0) & 1) << 14 | (opt('XS', 0) >> 1) << 12)}")

    a("s_bfe_u32 s4, s2, 0x10002\ns_xor_b32 s10, s4, s11\ns_and_b32 s10, s10, 1")
    a(f"s_lshl_b32 s10, s10, 13\ns_xor_b32 s{sOK}, s83, s10")
    a(f"s_bitcmp1_b32 s3, 0\ns_cselect_b32 s10, {hex(T_of(2))}, 0\ns_xor_b32 s{sOK}, s{sOK}, s10")
    a(f"s_bitcmp1_b32 s3, 1\ns_cselect_b32 s10, {hex(T_of(4))}, 0\ns_xor_b32 s{sOK}, s{sOK}, s10")
    if SYM:
        a("; the first blocks are spread over all stacks: class (b & 3) ^ g")
        for bit, sh in ((SYMB, 14), (SYMB+1, 12))[:SYM]:
            a(f"s_bfe_u32 s10, s11, {hex(0x10000 | bit)}\ns_lshl_b32 s10, s10, {sh}\ns_xor_b32 s{sOK}, s{sOK}, s10")
    a("s_lshl_b32 s74, s11, 23\ns_and_b32 s75, s2, 3\ns_lshl_b32 s75, s75, 21\ns_or_b32 s74, s74, s75")
    a("s_bfe_u32 s75, s2, 0x10002\ns_lshl_b32 s75, s75, 11\ns_or_b32 s74, s74, s75\ns_or_b32 s74, s74, 0x40000")
    a("s_and_b32 s76, s3, 1\ns_lshl_b32 s75, s76, 13\ns_or_b32 s74, s74, s75")
    a("s_getreg_b32 s79, hwreg(HW_REG_XCC_ID)\ns_bfe_u32 s79, s79, 0x10002")
    a("s_xor_b32 s76, s76, s79\ns_xor_b32 s76, s76, s2\ns_and_b32 s76, s76, 1")
    a(f"s_mov_b32 s10, {EPO}")
    a("s_waitcnt lgkmcnt(0)")
    if "orc" in OPT:
        a("s_add_u32 s26, s10, 256\ns_load_dword s26, s[38:39], s26\ns_waitcnt lgkmcnt(0)")
        a(f"s_xor_b32 s27, s79, s26\ns_and_b32 s27, s27, 1\ns_lshl_b32 s27, s27, 13\ns_xor_b32 s{sOK}, s27, s83")
    sb_const(a, sOK, 0)
    a("s_cmp_lt_u32 s3, 2")
    a("s_cselect_b32 s72, s18, s20\ns_cselect_b32 s73, s19, s21")
    a("s_lshr_b32 s100, s100, 3\ns_mul_i32 s100, s100, 0x9e3779b1\ns_lshr_b32 s100, s100, 8\ns_and_b32 s100, s100, 0x1bd780\ns_or_b32 s74, s74, s100\ns_xor_b32 s75, s74, 0x400")
    a(f"s_load_dword s78, s[72:73], s75\ns_load_dword s{sTAG}, s[38:39], s10")
    srd(a, 40, 18, 1 << 28); srd(a, 52, 16, 896); srd(a, 56, 22, 448*8192)
    jitter(a, 11, 5)
    a("buffer_load_dwordx4 v[60:63], v17, s[52:55], 0 offen")
    for n in range(4):
        a(f"buffer_load_ushort v{40+n}, v18, s[52:55], s9 offen offset:{16*n}")
    for n in range(4):
        a(f"buffer_load_dwordx4 v[{160+4*n}:{163+4*n}], v{19 if n<3 else 14}, s[56:59], s8 offen nt")
        if n < 3: a(f"s_add_u32 s8, s8, {8*8192}")
    def kpre(lo, hi):
        for i in range(lo, hi):
            if i == 16: sb_const(a, sOK, 1)
            kvload(a, RA if i < 16 else RB, i % 16, SK)
    a("s_barrier")
    kpre(0, B1)
    srd(a, 60, 28, 448*3584); srd(a, 64, 30, 448*3584); srd(a, 68, 32, 1792*896)
    srd(a, 44, 20, 1 << 28); srd(a, 48, 38, WSSZ)
    stamp(a, 1)
    a(f"s_lshl_b32 s8, s5, 13\ns_add_u32 s8, s8, {QP}\ns_lshl_b32 s9, s3, 9\ns_add_u32 s15, s8, s9")
    a("s_lshl_b32 s9, s7, 11\ns_add_u32 s8, s8, s9\ns_and_b32 s9, s2, 3\ns_lshl_b32 s9, s9, 9\ns_add_u32 s7, s8, s9")
    a(f"v_and_b32 v13, 7, v1\nv_and_b32 v10, 56, v1\nv_lshl_add_u32 v11, v13, 6, v10\nv_lshl_add_u32 v46, v13, 10, v10")
    a(f"v_mul_u32_u24 v{vRP}, {VSTR}, v1\nv_cmp_gt_u32 vcc, 8, v1\nv_cndmask_b32 v{vRP}, v15, v{vRP}, vcc")
    a(f"s_cmp_eq_u32 s3, 0\ns_cselect_b64 vcc, -1, 0\nv_cndmask_b32 v{vSC}, v15, v11, vcc")
    a(f"v_mov_b32 v12, 0\nds_write_b32 v12, v12 offset:{L_V}")
    a(f"s_waitcnt vmcnt({B1+8})\nv_readfirstlane_b32 s77, v60\ns_lshl_b32 s77, s77, 16")
    vM, vS, vR = 20, 21, 22
    ln_stats2(a, 60, 32, vM, vS, vR, 12, 13, 11, 23, 77)
    a(f"s_waitcnt vmcnt({B1+4})")
    center_rows(a, [40, 41, 42, 43], vM)
    scale_rows(a, [40, 41, 42, 43], [24, 25, 26, 27], vS, vR)
    a(f"s_waitcnt vmcnt({B1})")
    stamp(a, 8)
    for n in range(4): gemv8(a, 32, 160+4*n, 24+n, 40+n, n == 0)
    red8(a, 32)
    a(f"v_lshlrev_b32 v12, 2, v0\nds_write_b32 v12, v32 offset:{L_P}\nv_lshlrev_b32 v12, 2, v1")
    a(f"s_waitcnt lgkmcnt(0)\ns_barrier")
    a(f"ds_read2st64_b32 v[32:33], v12 offset0:{L_P//256} offset1:{L_P//256+1}\nds_read2st64_b32 v[34:35], v12 offset0:{L_P//256+2} offset1:{L_P//256+3}")
    a(f"s_add_u32 s{sTAG}, s{sTAG}, 0x9e3779b9\nv_mov_b32 v{vTAG}, s{sTAG}")
    a(f"s_waitcnt lgkmcnt(0)\nv_add_f32 v32, v32, v33\nv_add_f32 v34, v34, v35\nv_add_f32 v{vSD}, v32, v34")
    a(f"buffer_store_dwordx2 v[{vSD}:{vSD+1}], v{vSC}, {SW}, s7 offen sc1")
    stamp(a, 9)
    for n in range(2):
        a(f"buffer_load_ushort v{44+n}, v18, s[52:55], s12 offen offset:{16*n}")
    for n in range(2):
        a(f"buffer_load_dwordx4 v[{176+4*n}:{179+4*n}], v{47 if n==0 else 16}, s[60:63], s14 offen nt")
        a(f"buffer_load_dwordx4 v[{184+4*n}:{187+4*n}], v{47 if n==0 else 16}, s[64:67], s14 offen nt")
        if n == 0: a(f"s_add_u32 s14, s14, {8*3584}")
    kpre(B1, BA)
    jitter(a, 222, 5)
    for i in range(2):
        a("s_memtime s[100:101]\ns_waitcnt lgkmcnt(0)")
        a("s_load_dword s78, s[72:73], s74\ns_waitcnt lgkmcnt(0)\ns_memtime s[96:97]\ns_waitcnt lgkmcnt(0)")
        a(f"s_sub_u32 s{8+i}, s96, s100")
        if i == 0:
            a("s_xor_b32 s74, s74, 0x2000"); kpre(BA, B2)
    a("s_sub_i32 s8, s8, s9\ns_sub_i32 s9, 0, s8\ns_cmp_eq_u32 s76, 0\ns_cselect_b32 s8, s8, s9")
    a("s_max_i32 s8, s8, -2047\ns_min_i32 s8, s8, 2047\ns_add_i32 s8, s8, 2048\ns_lshr_b32 s9, s3, 1\ns_mul_i32 s9, s9, 13\ns_lshl_b32 s8, s8, s9")
    a(f"s_or_b32 s8, s8, 0x20000000\nv_mov_b32 v12, s8\nv_mov_b32 v13, 0\ns_mov_b64 exec, 1\nds_add_rtn_u32 v13, v13, v12 offset:{L_V}\ns_mov_b64 exec, -1")
    a(f"s_lshl_b32 s10, s79, 4\ns_andn2_b32 s9, s{sTAG}, 63\ns_or_b32 s10, s10, s9\ns_lshl_b32 s9, s2, 2\ns_add_u32 s9, s9, {VOTE}")
    a("s_waitcnt lgkmcnt(0)\nv_readfirstlane_b32 s72, v13\ns_add_u32 s72, s72, s8\ns_bitcmp0_b32 s72, 31\ns_cbranch_scc1 novote")
    a("s_and_b32 s73, s72, 0x1fff\ns_cmp_gt_u32 s73, 4096\ns_cselect_b32 s73, 1, 0\ns_or_b32 s10, s10, s73")
    a("s_bfe_u32 s73, s72, 0xd000d\ns_cmp_gt_u32 s73, 4096\ns_cselect_b32 s73, 2, 0\ns_or_b32 s10, s10, s73")
    a(f"v_mov_b32 v12, s10\nbuffer_store_dword v12, v{vRP}, {SW}, s9 offen sc1")
    a("novote:")
    def gather():
        for rb in range(4):
            if rb == 2: a("s_add_u32 s9, s15, 4096")
            a(f"buffer_load_dwordx2 v[{32+2*rb}:{33+2*rb}], v18, {SW}, s{15 if rb<2 else 9} offen offset:{2048*(rb&1)} sc1")
    a("v_lshlrev_b32 v18, 3, v1"); gather(); kpre(B2, B3)
    a(f"v_lshlrev_b32 v{vSB}, 2, v1\nv_add_u32 v{vSB}, {L_S}, v{vSB}")
    a(f"s_lshl_b32 s8, s3, 7\ns_add_u32 s9, s8, {L_S}\nv_and_b32 v{vSW}, 15, v1\nv_lshl_add_u32 v{vSW}, v{vSW}, 2, s9")
    a(f"s_mov_b32 s{sXO}, s2\ns_xor_b32 s{sXI}, s2, 4")
    a(f"v_cmp_gt_u32 vcc, 32, v1\nv_cndmask_b32 v{vSH}, 0, 16, vcc")
    a("s_mov_b32 s84, 0xcccccccc\ns_mov_b32 s85, 0xcccccccc\ns_mov_b32 s86, 0xaaaaaaaa\ns_mov_b32 s87, 0xaaaaaaaa")
    a(f"s_mov_b32 s88, {fl(CEXP)}\ns_mov_b32 s77, 0x100000")
    a(f"v_lshrrev_b32 v{vPO}, 5, v1\nv_lshlrev_b32 v{vPO}, 14, v{vPO}\nv_bfe_u32 v12, v1, 1, 3\nv_lshlrev_b32 v12, 11, v12\nv_add_u32 v{vPO}, v{vPO}, v12")
    a(f"v_and_b32 v12, 1, v1\nv_lshlrev_b32 v12, 5, v12\nv_add_u32 v{vPO}, v{vPO}, v12\nv_and_b32 v12, 16, v1\nv_add_u32 v{vPO}, v{vPO}, v12")
    a(f"v_lshlrev_b32 v12, 11, v1\nv_cmp_gt_u32 vcc, 16, v1\nv_cndmask_b32 v{vPM}, v15, v12, vcc")
    yaddr(a, vY, vY3, 1, 12, 13, YS)
    a(f"s_lshl_b32 s{sPO}, s5, 15\ns_lshl_b32 s10, s6, 7\ns_add_u32 s{sPO}, s{sPO}, s10\ns_add_u32 s{sPO}, s{sPO}, {OIN}\ns_add_u32 s{sPM}, s{sPO}, 64")
    a(f"s_lshl_b32 s{sYA}, s2, 4\ns_add_u32 s{sYA}, s{sYA}, {YA}")
    a(f"s_lshl_b32 s14, s11, 13\ns_lshl_b32 s10, s13, 6\ns_add_u32 s14, s14, s10\ns_lshl_b32 s10, s3, 9\ns_add_u32 s14, s14, s10\ns_add_u32 s14, s14, {GU-512}")
    a(f"s_cmp_lt_u32 s11, 28\ns_cselect_b32 s10, 0, {hex(OOB)}\ns_add_u32 s9, s3, 3\ns_bitcmp1_b32 s9, 1\ns_cselect_b32 s10, {hex(OOB)}, s10\nv_or_b32 v46, s10, v46")
    a(f"s_and_b32 s12, s11, 7\ns_mul_i32 s12, s12, {VSTR}\ns_add_u32 s12, s12, {VOTE}")
    a(f"s_waitcnt vmcnt({B3-B1+8})")
    center_rows(a, [44, 45], vM)
    scale_rows(a, [44, 45], [12, 13], vS, vR)
    a(f"s_waitcnt vmcnt({B3-B1+4})")
    aG, aU = 24, 192
    for n in range(2):
        gemv8(a, aG, 176+4*n, 12+n, 44+n, n == 0)
        gemv8(a, aU, 184+4*n, 12+n, 44+n, n == 0)
    stamp(a, 10)
    red8(a, aG); red8(a, aU)
    a(f"v_lshlrev_b32 v12, 2, v0\nds_write_b32 v12, v{aG} offset:{L_P+1024}\nds_write_b32 v12, v{aU} offset:{L_P+2048}")
    mask1(a, MK, 1, vT0, vT1)
    def check():
        a(f"v_xor_b32 v40, s{sTAG}, v33\nv_xor_b32 v41, s{sTAG}, v35\nv_xor_b32 v42, s{sTAG}, v37\nv_xor_b32 v43, s{sTAG}, v39")
        a("v_or3_b32 v40, v40, v41, v42\nv_or_b32 v40, v40, v43\nv_cmp_ne_u32 vcc, 0, v40\ns_cbranch_vccz g_ok")
    a(f"s_mov_b32 s78, 0\ns_waitcnt vmcnt({B3-B2})")
    check()
    a("s_mov_b32 s78, 1"); gather(); kpre(B3, B4)
    a(f"s_waitcnt vmcnt({B4-B3})")
    check()
    a("s_mov_b32 s78, 2"); gather(); kpre(B4, 32)
    a(f"s_mov_b32 s96, {SPIN}\ns_waitcnt vmcnt({32-B4})")
    a("g_spin:")
    check()
    a("s_sub_u32 s96, s96, 1\ns_cmp_eq_u32 s96, 0\ns_cbranch_scc1 g_ok\ns_sleep 8")
    gather()
    a("s_waitcnt vmcnt(0)\ns_branch g_spin")
    a("g_ok:")
    stamp(a, 11)
    a("v_add_f32 v32, v32, v34\nv_add_f32 v36, v36, v38\nv_add_f32 v32, v32, v36")
    a("v_cvt_pk_bf16_f32 v32, v32, v32\nv_lshlrev_b32 v33, 1, v0\nds_write_b16 v33, v32")
    a("v_and_b32 v34, 31, v1\nv_lshlrev_b32 v34, 4, v34")
    a("s_max_u32 s8, s3, 1\ns_min_u32 s8, s8, 2\ns_lshl_b32 s8, s8, 10\nv_lshl_add_u32 v35, v1, 2, s8")
    a(f"s_waitcnt lgkmcnt(0)\ns_barrier\nds_read_b128 v[{vQ}:{vQ+3}], v34")
    a(f"ds_read2st64_b32 v[40:41], v35 offset0:{L_P//256} offset1:{L_P//256+1}\nds_read2st64_b32 v[42:43], v35 offset0:{L_P//256+2} offset1:{L_P//256+3}")
    a("s_cmp_eq_u32 s78, 2\ns_cbranch_scc1 g_p2\ns_cmp_eq_u32 s78, 1\ns_cbranch_scc1 g_p1")
    kpre(B3, B4)
    a("g_p1:"); kpre(B4, 32)
    a("g_p2:")
    a(f"s_waitcnt lgkmcnt(0)\nv_add_f32 v40, v40, v41\nv_add_f32 v42, v42, v43\nv_add_f32 v{vSD}, v40, v42")
    a(f"buffer_store_dwordx2 v[{vSD}:{vSD+1}], v46, {SW}, s14 offen sc1")
    a(f"v_mov_b32 v{vMX}, 0xff800000\nv_mov_b32 v{vLS}, 0")
    for r in range(4): a(f"v_mov_b32 v{ACC+r}, 0")
    stamp(a, 2)
    a("s_cmp_eq_u32 s3, 0\ns_cbranch_scc1 streamer")
    k_body(a, RA, lambda j: None if j < B2 else 32-j, None)
    k_body(a, RB, lambda j: None if 16+j < B2 else 16-j, None)
    a("s_waitcnt lgkmcnt(0)\ns_barrier\ns_cmp_lg_u32 s3, 1\ns_cbranch_scc1 main_fin")
    a(f"v_mov_b32 v{vT0}, 0\ns_barrier\nds_read_b32 v{vT1}, v{vT0} offset:{L_V+4}")
    a(f"v_add_u32 v{vSW}, {(MS+1-4)*64}, v{vSW}\ns_mov_b32 s{sD}, 2\ns_mov_b32 s{sS}, 128\ns_mov_b32 s{sE}, 128\ns_mov_b32 s{sXF}, 0\ns_mov_b32 s{sK}, {MS+5}")
    a(f"s_waitcnt lgkmcnt(0)\nv_readfirstlane_b32 s{sOV}, v{vT1}")
    sb_const(a, sOV, MS+1); refill_all(a, RA, SV)
    sb_const(a, sOV, MS+3); refill_all(a, RB, SV)
    v_head(a, sE)
    a("s_branch v_loop" if MS+5 < 64 else "s_branch v_fin")
    a("streamer:")
    sb_const(a, sOK, 8)
    k_body(a, RA, lambda j: None if j < B2 else 32-j, lambda t: refill_all(t, RA, SK))
    stamp(a, 13)
    sb_odd(a)
    k_body(a, RB, lambda j: None if 16+j < B2 else 32-j, lambda t: refill_all(t, RB, SK))
    stamp(a, 14)
    a(f"v_add_u32 v{vSW}, 384, v{vSW}\ns_barrier")
    sb_const(a, sOK, 10)
    vote_load(a)
    k_body(a, RA, lambda j: 32-j, lambda t: refill_all(t, RA, SK))
    sb_odd(a)
    k_body(a, RB, lambda j: 32-j, lambda t: refill_all(t, RB, SK))
    a(f"s_mov_b32 s96, {SPIN}\ns_waitcnt vmcnt(32)")
    a("vt_chk:")
    tally(a, 32)
    a("s_cbranch_scc0 vt_spin")
    a("vt_ok:")
    if opt("FLIP", 0): a(f"s_xor_b32 s9, s9, {opt('FLIP', 0)}")
    a("s_lshr_b32 s8, s9, 2\ns_xor_b32 s4, s4, s8")
    a(f"s_lshr_b32 s8, s9, 1\ns_xor_b32 s8, s8, s4\ns_and_b32 s8, s8, 1\ns_lshl_b32 s8, s8, 13\ns_xor_b32 s{sOV}, s83, s8")
    a(f"s_xor_b32 s{sXF}, s{sOK}, s{sOV}")
    a(f"s_bfe_u32 s8, s{sXF}, 0x1000e\ns_xor_b32 s6, s2, s8\ns_bfe_u32 s8, s{sXF}, 0x1000c\ns_lshl_b32 s8, s8, 1\ns_xor_b32 s6, s6, s8")
    a(f"s_bfe_u32 s8, s{sXF}, 0x1000d\ns_lshl_b32 s8, s8, 2\ns_xor_b32 s6, s6, s8\ns_cmp_lg_u32 s6, s2\ns_cselect_b32 s{sXF}, 0x2000, 0")
    a(f"s_xor_b32 s8, s9, s4\ns_and_b32 s8, s8, 1\ns_lshl_b32 s8, s8, 13\ns_xor_b32 s{sOK}, s83, s8")
    a(f"s_xor_b32 s8, s{sOK}, s{sOV}\ns_lshl_b32 s8, s8, 1\ns_or_b32 s{sXF}, s{sXF}, s8")
    a(f"v_mov_b32 v32, 0\nv_mov_b32 v33, s{sOV}\nds_write_b32 v32, v33 offset:{L_V+4}")
    jitter(a, 3333, 7)
    a(f"s_mov_b32 s{sK}, 12")
    a("k_loop:")
    sb_off(a, sOK, sK, 1)
    k_body(a, RA, lambda j: 31-j, lambda t: refill_all(t, RA, SK))
    sb_odd(a)
    k_body(a, RB, lambda j: 31-j, lambda t: refill_all(t, RB, SK))
    if STAMP:
        a(f"s_cmp_lg_u32 s{sK}, 12\ns_cbranch_scc1 k_st"); stamp(a, 12); a("k_st:")
    a(f"s_cmp_lg_u32 s{sK}, 12\ns_cbranch_scc1 k_next\ns_bitcmp0_b32 s{sXF}, 13\ns_cbranch_scc1 k_next")
    a(f"s_waitcnt lgkmcnt(0)\nds_read2st64_b32 v[24:25], v{vSB} offset0:0 offset1:1\nds_read_b32 v26, v{vSB} offset:512\nv_mov_b32 v27, s{sTAG}\ns_lshl_b32 s8, s2, 10\ns_waitcnt lgkmcnt(0)")
    a(f"buffer_store_dwordx4 v[24:27], v17, {SW}, s8 offen sc1")
    a("k_next:")
    a(f"s_add_u32 s{sK}, s{sK}, 2\ns_cmp_lt_u32 s{sK}, 64\ns_cbranch_scc1 k_loop")
    jitter(a, 44444, 6)
    sb_const(a, sOV, 0)
    a(f"s_bitcmp0_b32 s{sXF}, 13\ns_cbranch_scc1 t_nop1")
    xp_load(a)
    a("t_nop1:")
    k_body(a, RA, lambda j: 31-j, lambda t: refill_all(t, RA, SV))
    sb_odd(a)
    k_body(a, RB, lambda j: 31-j, lambda t: refill_all(t, RB, SV))
    a(f"v_subrev_u32 v{vSW}, 4096, v{vSW}")
    a(f"s_bitcmp0_b32 s{sXF}, 13\ns_cbranch_scc1 t_nop2")
    a("s_waitcnt vmcnt(32)")
    x_check(a, "p", [63], xp_load)
    a(f"ds_write2st64_b32 v{vSB}, v60, v61 offset0:0 offset1:1\nds_write_b32 v{vSB}, v62 offset:512")
    a("t_nop2:")
    a(f"s_bitcmp0_b32 s{sXF}, 14\ns_cbranch_scc1 t_nor")
    a("s_waitcnt lgkmcnt(0)")
    for g, R in enumerate(XRR):
        r = 3+3*g
        if g < 4: a(f"ds_read2st64_b32 v[{R}:{R+1}], v{vSB} offset0:{r} offset1:{r+1}\nds_read_b32 v{R+2}, v{vSB} offset:{(r+2)*256}")
        else: a(f"ds_read_b32 v{R}, v{vSB} offset:{r*256}")
        a(f"v_mov_b32 v{R+3}, s{sTAG}")
    a("s_waitcnt lgkmcnt(0)")
    xr_ops(a, "buffer_store_dwordx4", sXO)
    a("t_nor:")
    a("; ---- V phase")
    a(f"s_mov_b32 s{sK}, 2\ns_mov_b32 s{sD}, 1\ns_mov_b32 s{sS}, 64\ns_mov_b32 s{sE}, 64")
    stamp(a, 3)
    v_head(a, sE)
    a("v_loop:")
    a(f"s_cmp_eq_u32 s{sK}, {MS}\ns_cbranch_scc1 v_share\ns_cmp_eq_u32 s{sK}, {MS+4}\ns_cselect_b32 s{sS}, 128, s{sS}")
    a(f"s_bitcmp0_b32 s{sXF}, 14\ns_cbranch_scc1 v_go\ns_cmp_eq_u32 s{sK}, 10\ns_cbranch_scc1 v_xr1\ns_cmp_eq_u32 s{sK}, 12\ns_cbranch_scc1 v_xr2")
    a("v_go:")
    v_body(a, RA, 16, lambda t: refill_all(t, RA, SV), v_head, sS, lambda t: sb_off(t, sOV, sK))
    a(f"s_add_u32 s{sK}, s{sK}, s{sD}")
    v_body(a, RB, 16, lambda t: refill_all(t, RB, SV), v_head, sE, lambda t: sb_off(t, sOV, sK))
    a(f"s_add_u32 s{sK}, s{sK}, s{sD}\ns_cmp_lt_u32 s{sK}, 64\ns_cbranch_scc1 v_loop")
    a("v_fin:")
    tagsel(a)
    jitter(a, 555555, 5)
    a("s_cmp_eq_u32 s3, 0\ns_cbranch_scc1 v_last0")
    def last_head(t): v_head(t); ml_out(t)
    v_body(a, RA, 16, None, last_head, sE)
    v_body(a, RB, 0, None, None)
    a("s_branch v_end")
    a("v_last0:")
    srd(a, 52, 24, 4096*896)
    a("v_lshrrev_b32 v46, 4, v1\nv_mul_u32_u24 v19, 1792, v46\nv_and_b32 v18, 15, v1\nv_lshlrev_b32 v18, 4, v18\nv_lshl_add_u32 v46, v19, 1, v18\nv_add_u32 v19, v19, v18")
    a("v_and_b32 v18, 7, v1\nv_lshlrev_b32 v18, 6, v18\nv_and_b32 v47, 56, v1\nv_add_u32 v18, v18, v47")
    a(f"s_mul_i32 s10, s2, {16*896}\ns_min_u32 s9, s2, 223\ns_mul_i32 s9, s9, {8*896}\ns_lshl_b32 s12, s2, 10\ns_add_u32 s12, s12, {GU}")
    def wdo(t):
        gu_load(t)
        for i in range(8):
            t(f"buffer_load_dwordx4 {ring(RD,i)}, v19, s[68:71], s9 offen offset:{(i//4)*896+(i%4)*256} nt")
        for j in range(16):
            t(f"buffer_load_dwordx4 {ring(RA,j)}, v46, s[52:55], s10 offen offset:{(j//4)*896+(j%4)*256} nt")
    v_body(a, RA, 16, wdo, last_head, sE)
    v_body(a, RB, 26, None, None)
    a("v_end:")
    stamp(a, 4)
    a(f"ds_write_b128 v{vT1}, v[{ACC}:{ACC+3}] offset:{L_O}")
    a("s_waitcnt lgkmcnt(0)\ns_barrier")
    a("s_cmp_eq_u32 s3, 0\ns_cbranch_scc1 tail0")
    a("s_cmp_ge_u32 s2, 112\ns_cbranch_scc1 main_fin")
    reducer(a)
    a("s_branch main_fin")
    a("tail0:")
    tail0(a)
    a("main_fin:")
    stamp(a, 7); stamp_out(a)
    a("main_done:\ns_endpgm")
    a("v_xr1:"); xr_load(a); a("s_branch v_go")
    a(f"v_share:\ns_waitcnt lgkmcnt(0)\ns_barrier\ns_mov_b32 s{sD}, 2\ns_mov_b32 s{sE}, 128\ns_branch v_go")
    a("v_xr2:\ns_waitcnt vmcnt(32)")
    x_check(a, "r", [R+3 for R in XRR], xr_load)
    for g, R in enumerate(XRR):
        r = 3+3*g
        if g < 4: a(f"ds_write2st64_b32 v{vSB}, v{R}, v{R+1} offset0:{r} offset1:{r+1}\nds_write_b32 v{vSB}, v{R+2} offset:{(r+2)*256}")
        else: a(f"ds_write_b32 v{vSB}, v{R} offset:{r*256}")
    a("s_branch v_go")
    a("vt_spin:\ns_sub_u32 s96, s96, 1\ns_cmp_eq_u32 s96, 0\ns_cbranch_scc1 vt_ok\ns_sleep 8")
    vote_load(a)
    a("s_waitcnt vmcnt(0)\ns_branch vt_chk")
    return a.text() + "code_end:\n", kd(K, 232 if STAMP else 224, 102)

def reducer(a):
    a("; ---- wave 1 of workgroups 0..111: out[4b..4b+3] = x + sum of the 256 partials")
    srd(a, 52, 16, 896); srd(a, 56, 34, 896)
    a(f"v_mov_b32 v18, {hex(OOB)}\ns_mul_i32 s11, s2, {YS}\ns_add_u32 s11, s11, {YA}\ns_lshl_b32 s13, s2, 3")
    a("v_lshrrev_b32 v2, 4, v1\nv_lshlrev_b32 v2, 1, v2\nv_and_b32 v3, 15, v1\nv_cmp_eq_u32 vcc, 0, v3\nv_cndmask_b32 v3, v18, v2, vcc")
    a("buffer_load_ushort v4, v2, s[52:55], s13 offen")
    for n in range(4): a(f"v_mov_b32 v{10+n}, v17\ns_mov_b64 s[{60+2*n}:{61+2*n}], -1")
    a(f"s_mov_b32 s96, {SPIN}")
    a("red_spin:")
    for n in range(4):
        a(f"buffer_load_dwordx4 v[{80+4*n}:{83+4*n}], v{10+n}, {SW}, s11 offen offset:{1024*n} sc1")
    a("s_waitcnt vmcnt(0)")
    for n in range(4):
        R = 80+4*n
        a(f"s_mov_b64 exec, s[{60+2*n}:{61+2*n}]\ns_cbranch_execz red_skip{n}")
        tagbad(a, 40, R, 41)
        a(f"v_cmp_eq_u32 vcc, 0, v40\ns_andn2_b64 s[{60+2*n}:{61+2*n}], exec, vcc\ns_and_b64 exec, exec, vcc")
        for r in range(4): a(f"v_and_b32 v{64+4*n+r}, 0xffffff00, v{R+r}")
        a(f"v_mov_b32 v{10+n}, v18")
        a(f"red_skip{n}:")
    a("s_mov_b64 exec, -1")
    a("s_or_b64 s[80:81], s[60:61], s[62:63]\ns_or_b64 s[82:83], s[64:65], s[66:67]\ns_or_b64 s[80:81], s[80:81], s[82:83]\ns_cbranch_scc0 red_ok")
    a("s_sub_u32 s96, s96, 1\ns_cmp_lg_u32 s96, 0\ns_cbranch_scc1 red_spin")
    a("red_ok:")
    stamp(a, 6)
    for r in range(4):
        a(f"v_add_f32 v{64+r}, v{64+r}, v{68+r}\nv_add_f32 v{72+r}, v{72+r}, v{76+r}")
    for r in range(4): a(f"v_add_f32 v{64+r}, v{64+r}, v{72+r}")
    multiT(a, "v_permlane32_swap_b32", [(64, 66), (65, 67)])
    T16(a, 64, 65)
    rowall(a, [64])
    a("v_lshlrev_b32 v4, 16, v4\nv_add_f32 v64, v64, v4\nv_cvt_pk_bf16_f32 v64, v64, v64")
    a("buffer_store_short v64, v3, s[56:59], s13 offen")
    a("s_cmp_lg_u32 s2, 0\ns_cbranch_scc1 main_fin")
    a(f"s_mov_b32 s8, {EPO}\nv_cmp_eq_u32 vcc, 0, v1\nv_cndmask_b32 v3, v18, v1, vcc\nbuffer_store_dword v{vTAG}, v3, {SW}, s8 offen")

def tail0(a):
    a("; ---- wave 0: merge waves 0 and 1, hand 16-column slices of (m, l, o) to the 16 workgroups of the head")
    a(f"ds_read_b64 v[28:29], v{vT2} offset:{L_M}\nds_read_b64 v[36:37], v{vT2} offset:{L_L}")
    a(f"ds_read_b128 v[160:163], v{vT1} offset:{L_O+1024}")
    a("v_and_b32 v44, 15, v1\nv_lshlrev_b32 v45, 7, v44\nv_and_b32 v47, 48, v1\nv_add_u32 v44, v45, v47")
    a(f"s_lshl_b32 s15, s2, 11\ns_add_u32 s15, s15, {OIN}")
    a("s_waitcnt lgkmcnt(1)")
    a(f"v_max_f32 v{vMX}, v28, v29")
    for w in range(2): a(f"v_sub_f32 v{28+w}, v{28+w}, v{vMX}")
    for w in range(2): a(f"v_mul_f32 v{28+w}, s88, v{28+w}")
    for w in range(2): a(f"v_exp_f32 v{28+w}, v{28+w}")
    a(f"v_mul_f32 v{vMX+1}, v28, v36\nv_fmac_f32 v{vMX+1}, v29, v37")
    for r in range(4): a(f"v_mul_f32 v{48+r}, v28, v{48+r}")
    a("s_waitcnt lgkmcnt(0)")
    for r in range(4): a(f"v_fmac_f32 v{48+r}, v29, v{160+r}")
    tagbytes(a, 48)
    a(f"buffer_store_dwordx4 v[48:51], v{vPO}, {SW}, s{sPO} offen sc1")
    a(f"buffer_store_dwordx4 v[{vMX}:{vMX+3}], v{vPM}, {SW}, s{sPM} offen sc1")
    stamp(a, 5)
    def poll():
        a(f"buffer_load_dwordx4 v[24:27], v44, {SW}, s15 offen sc1")
        a(f"buffer_load_dwordx4 v[28:31], v45, {SW}, s15 offen offset:64 sc1")
    poll()
    mask2(a, MK, 1, vT0, vT1)
    a("s_cmp_lt_u32 s2, 224\ns_cselect_b32 s9, -1, 0\ns_waitcnt vmcnt(4)")
    a(f"s_mov_b32 s96, {SPIN}\ngu_chk:")
    a(f"v_xor_b32 v40, s{sTAG}, v43\nv_xor_b32 v41, s{sTAG}, v33\nv_or_b32 v40, v40, v41\nv_and_b32 v40, s9, v40\nv_cmp_ne_u32 vcc, 0, v40\ns_cbranch_vccz gu_ok")
    a("s_sub_u32 s96, s96, 1\ns_cmp_eq_u32 s96, 0\ns_cbranch_scc1 gu_ok\ns_sleep 2")
    gu_load(a)
    a("s_waitcnt vmcnt(0)\ns_branch gu_chk\ngu_ok:")
    a("v_and_b32 v42, s9, v42\nv_and_b32 v32, s9, v32")
    g, u = 176, 177
    T4(a, g, 42, 42); T4(a, u, 32, 32)
    for q in ("[2,3,0,1]", "[1,0,3,2]"):
        for A in (g, u): a(f"v_add_f32_dpp v{A}, v{A}, v{A} quad_perm:{q} {FULL}")
    rnd(a, g, g); rnd(a, u, u)
    a(f"v_mul_f32 v8, v{g}, v{g}\nv_mul_f32 v8, v8, v{g}")
    a(f"v_mul_f32 v8, {fl(0.044715)}, v8\nv_add_f32 v8, v8, v{g}\nv_mul_f32 v8, {fl(0.7978845608028654)}, v8")
    a(f"v_mul_f32 v8, {fl(2*LOG2E)}, v8\nv_exp_f32 v8, v8\nv_add_f32 v8, 1.0, v8\nv_rcp_f32 v8, v8")
    a(f"v_fma_f32 v8, v8, -2.0, 2.0")
    a(f"v_mul_f32 v9, 0.5, v{g}\nv_mul_f32 v8, v8, v9")
    rnd(a, 8, 8)
    a(f"v_mul_f32 v8, v8, v{u}\nv_cvt_pk_bf16_f32 v8, v8, v8")
    for n in range(2):
        for r in range(4):
            a(f"v_and_b32_dpp v{176+4*n+r}, v8, v{MK+r} row_newbcast:{8*n} {FULL}")
    Y = 160
    for n in range(2):
        for blk in range(4):
            D = f"v[{Y+4*blk}:{Y+3+4*blk}]"
            a(f"v_mfma_f32_16x16x32_bf16 {D}, v[{176+4*n}:{179+4*n}], {ring(RD, n*4+blk)}, {'0' if n==0 else D}")
    a(f"s_mov_b32 s96, {SPIN}")
    a("t0_spin:")
    a("s_waitcnt vmcnt(0)")
    tagbad(a, 40, 24, 41)
    a(f"v_xor_b32 v41, v31, v{vTAG}\nv_or_b32 v40, v40, v41")
    a("v_cmp_eq_u32 vcc, 0, v40\ns_andn2_b64 s[78:79], exec, vcc\ns_and_b64 exec, exec, vcc")
    for r in range(4): a(f"v_and_b32 v{32+r}, 0xffffff00, v{24+r}")
    a("v_mov_b32 v36, v28\nv_mov_b32 v37, v29")
    a("s_mov_b64 exec, s[78:79]\ns_cbranch_execz t0_ok")
    poll()
    a("s_sub_u32 s96, s96, 1\ns_cmp_lg_u32 s96, 0\ns_cbranch_scc1 t0_spin")
    a("t0_ok:\ns_mov_b64 exec, -1")
    stamp(a, 6)
    a(f"v_max_f32_dpp v38, v36, v36 row_ror:8 {FULL}")
    for r in (4, 2, 1): a(f"v_max_f32_dpp v38, v38, v38 row_ror:{r} {FULL}")
    a("v_sub_f32 v36, v36, v38\nv_mul_f32 v36, s88, v36\nv_exp_f32 v36, v36")
    for r in range(4): a(f"v_mul_f32 v{32+r}, v{32+r}, v36")
    a("v_mul_f32 v36, v36, v37")
    rowall(a, [36, 32, 33, 34, 35])
    a("v_rcp_f32 v37, v36")
    for r in range(4): a(f"v_mul_f32 v{32+r}, v{32+r}, v37")
    for r in range(4): a(f"v_cvt_pk_bf16_f32 v{32+r}, v{32+r}, v{32+r}")
    def bld(n):
        for r in range(4): a(f"v_and_b32 v{176+4*n+r}, v{32+n}, v{MK+r}")
    def mm(n, blk):
        D = f"v[{Y+4*blk}:{Y+3+4*blk}]"
        a(f"v_mfma_f32_16x16x32_bf16 {D}, v[{176+4*n}:{179+4*n}], {ring(RA, n*4+blk)}, {D}")
    bld(0); bld(1)
    mm(0, 0); mm(0, 1); bld(2); mm(0, 2); mm(0, 3); bld(3)
    a(f"s_mov_b32 s8, s{sYA}")
    for blk in range(4):
        for n in range(1, 4): mm(n, blk)
        if blk:
            tagbytes(a, Y+4*(blk-1))
            a(f"buffer_store_dwordx4 v[{Y+4*(blk-1)}:{Y+4*(blk-1)+3}], v{vY}, {SW}, s8 offen sc1\ns_add_u32 s8, s8, {32*YS}")
    tagbytes(a, Y+12)
    a(f"buffer_store_dwordx4 v[{Y+12}:{Y+15}], v{vY3}, {SW}, s8 offen sc1")

DOC = """; One launch, 256 workgroups, one per CU; HBM-bound (K and V are each read once, nt).
"""
if __name__ == "__main__":
    t, k = kernel()
    s = HEADER + DOC + "; @launch grid=(256,1,1) block=(256,1,1) lds=9216\n"
    s += '.amdgcn_target "amdgcn-amd-amdhsa--gfx950"\n.text\n' + t + k
    open(sys.argv[1], "w").write(s)
```

```python
import sys
from common import *

OPT = set(sys.argv[2:])
STAMP = "stamp" in OPT
def opt(name, d):
    for o in OPT:
        if o.startswith(name+"="): return int(o.split("=")[1])
    return d
SYM, SYMB = opt("SYM", 2), opt("SYMB", 1)
SPIN = 200000
B1, BA, B2, B3, B4 = opt("B1", 6), opt("BA", 10), opt("B2", 14), opt("B3", 24), opt("B4", 28)
XP   = 0x000000
XR   = 0x040000
YA   = 0x180000
OIN  = 0x200000
QP   = 0x2C0000
VOTE = 0x2E0000
EPO  = 0x2F8000
GU   = 0x300000
WSSZ = 0x340000
STB  = 0x390000
VSTR = YS = 4352
RA, RB, RD = 64, 128, 192
P0 = 32
vLO, vHI, vQ, vSW, vSB, vSC = 2, 3, 4, 8, 9, 10
vLS, vP, vT0, vT1, vT2 = 12, 13, 14, 15, 16
vRP = 19
MK, AA, ACC = 20, 24, 48
vMX, vSH, vSD = 52, 53, 54
vTAG = 55
vPO, vPM, vY, vY3 = 56, 57, 58, 59
sTAG, sOK, sOV, sO, sXF, sK = 89, 90, 91, 92, 93, 94
sXO, sXI = 97, 7
sPO, sPM, sYA = 80, 81, 82
SK, SV, SW = "s[40:43]", "s[44:47]", "s[48:51]"
L_M, L_L, L_V, L_O, L_P, L_S = 512, 528, 544, 1024, 1024, 5120

def stamp(a, i):
    if STAMP: a(f"s_memrealtime s[98:99]\ns_waitcnt lgkmcnt(0)\nv_writelane_b32 v224, s98, {i}")
def stamp_out(a):
    if STAMP:
        a(f"s_mov_b32 s50, 0x400000\ns_lshl_b32 s8, s2, 2\ns_add_u32 s8, s8, s3\ns_lshl_b32 s8, s8, 6\ns_add_u32 s8, s8, {STB}")
        a(f"v_lshlrev_b32 v225, 2, v1\nv_mov_b32 v226, {hex(OOB)}\nv_cmp_gt_u32 vcc, 16, v1\nv_cndmask_b32 v225, v226, v225, vcc\nbuffer_store_dword v224, v225, s[48:51], s8 offen")

MASK = {'5': 1 << 17, '6': 1 << 18, '7': 0x84000, '8': 0x101000, '9': 0x202000, 'A': 1 << 22}
ORD = [o.split("=")[1] for o in OPT if o.startswith("ORD=")]
ORD = ORD[0] if ORD else "9B8765"
for o in OPT:
    if o.startswith("ORDX="):
        h = o.split("=")[1]; bm = [1 << 17, 1 << 18, 0x84000, 0x101000, 0x202000, 1 << 22]
        ORD = "uvwxyz"
        for q in range(6):
            c = int(h[2*q:2*q+2], 16); m = 0
            for z in range(6):
                if c >> z & 1: m ^= bm[z]
            MASK[ORD[q]] = m
if not any(o.startswith("ORD") for o in OPT): OPT.add("ORDZ=04102448080201")
MJ = 1 << 23
for o in OPT:
    if o.startswith("ORDZ="):
        h = o.split("=")[1]; bm = [1 << 17, 1 << 18, 0x84000, 0x101000, 0x202000, 1 << 22, 1 << 23]
        def dec(c):
            m = 0
            for z in range(7):
                if c >> z & 1: m ^= bm[z]
            return m
        MJ = dec(int(h[:2], 16)); ORD = "uvwxyz"
        for q in range(6): MASK[ORD[q]] = dec(int(h[2+2*q:4+2*q], 16))
def T_of(k):
    x = 0
    for q in range(6):
        if k >> q & 1: x ^= MASK[ORD[q]]
    return x
MS = 64 - opt("NB", 8)
sD, sS, sE = 13, 15, 14
def sb_off(a, base, kreg, lo=0):
    a(f"s_mov_b32 s{sO}, s{base}")
    for q in range(lo, 6):
        a(f"s_bitcmp1_b32 s{kreg}, {q}\ns_cselect_b32 s95, {hex(MASK[ORD[q]])}, 0\ns_xor_b32 s{sO}, s{sO}, s95")
def sb_odd(a):
    a(f"s_xor_b32 s{sO}, s{sO}, {hex(MASK[ORD[0]])}")
def sb_const(a, base, k):
    a(f"s_xor_b32 s{sO}, s{base}, {hex(T_of(k))}" if k else f"s_mov_b32 s{sO}, s{base}")
def ring(R, j): return f"v[{R+4*j}:{R+4*j+3}]"
JORD = [o.split("=")[1] for o in OPT if o.startswith("JORD=")]
JORD = JORD[0] if JORD else "4021"
def kvload(a, R, j, srdname):
    off, hi = 0, 0
    for q in range(4):
        if j >> q & 1:
            if JORD[q] == "4": hi = 1
            else: off |= 512 << int(JORD[q])
    a(f"buffer_load_dwordx4 {ring(R,j)}, v{vHI if hi else vLO}, {srdname}, s{sO} offen offset:{off} nt")
jit_n = [0]
def jitter(a, salt, shift):
    if "jit" not in OPT: return
    jit_n[0] += 1; n = jit_n[0]
    a(f"s_lshl_b32 s26, s2, 2\ns_add_u32 s26, s26, s3\ns_add_u32 s26, s26, {salt}\ns_mul_i32 s26, s26, 0x9e3779b1\ns_lshr_b32 s27, s26, 29\ns_cmp_lg_u32 s27, 0\ns_cbranch_scc1 jit_e{n}")
    a(f"s_bfe_u32 s26, s26, {hex(0x10 | (shift << 16))}\ns_add_u32 s26, s26, 1\njit_l{n}:\ns_sleep 16\ns_sub_u32 s26, s26, 1\ns_cmp_lg_u32 s26, 0\ns_cbranch_scc1 jit_l{n}\njit_e{n}:")
def refill_all(a, R, srdname):
    for j in range(16): kvload(a, R, j, srdname)

def lines_of(fn):
    t = Asm(); fn(t); return t.lines
def weave(a, loads, work):
    n = len(loads); per = -(-len(work) // n) if n else 0
    for i, l in enumerate(loads):
        a(l)
        for w in work[i*per:(i+1)*per]: a(w)
    for w in work[n*per:]: a(w)

def k_body(a, R, wait, refill):
    KI = opt("KI", 2)
    for j0 in range(0, 16, KI):
        w = wait(j0+KI-1)
        if w is not None: a(f"s_waitcnt vmcnt({w})")
        for i in range(4):
            for j in range(j0, j0+KI):
                a(f"v_dot2_f32_bf16 v{P0+j}, v{R+4*j+i}, v{vQ+i}, {'0' if i == 0 else 'v%d' % (P0+j)}")
    weave(a, lines_of(refill) if refill else [], lines_of(k_reduce))

def k_reduce(a):
    for j in range(8):
        a(f"v_add_f32_dpp v{P0+j}, v{P0+j}, v{P0+j} row_ror:8 row_mask:0xf bank_mask:0x3")
    for j in range(8):
        a(f"v_add_f32_dpp v{P0+j}, v{P0+8+j}, v{P0+8+j} row_ror:8 row_mask:0xf bank_mask:0xc")
    for j in range(4):
        a(f"v_add_f32_dpp v{P0+j}, v{P0+j}, v{P0+j} row_shl:4 row_mask:0xf bank_mask:0x5")
    for j in range(4):
        a(f"v_add_f32_dpp v{P0+j}, v{P0+4+j}, v{P0+4+j} row_shr:4 row_mask:0xf bank_mask:0xa")
    for j in range(4):
        a(f"v_add_f32_dpp v{P0+j}, v{P0+j}, v{P0+j} quad_perm:[2,3,0,1] {FULL}")
    a(f"v_cndmask_b32 v{P0}, v{P0}, v{P0+2}, s[84:85]\nv_cndmask_b32 v{P0+1}, v{P0+1}, v{P0+3}, s[84:85]")
    for j in range(2):
        a(f"v_add_f32_dpp v{P0+j}, v{P0+j}, v{P0+j} quad_perm:[1,0,3,2] {FULL}")
    a(f"v_cndmask_b32 v{P0}, v{P0}, v{P0+1}, s[86:87]")
    B16(a, P0, P0+1)
    a(f"v_mov_b32 v{P0+1}, v{P0}\nv_permlane32_swap_b32 v{P0}, v{P0+1}\nv_cvt_pk_bf16_f32 v{vSD}, v{P0}, v{P0+1}")
    a(f"ds_write_b32 v{vSW}, v{vSD}\nv_add_u32 v{vSW}, 64, v{vSW}")

def v_fetch(a, step):
    a(f"ds_read_b32 v{vSC}, v{vSW}\nv_add_u32 v{vSW}, s{step}, v{vSW}")
def v_head(a, step=None):
    if step is not None: v_fetch(a, step)
    a("s_waitcnt lgkmcnt(0)")
    a(f"v_lshlrev_b32 v{vT2}, v{vSH}, v{vSC}\nv_and_b32 v{vT2}, 0xffff0000, v{vT2}")
    a(f"v_max_f32_dpp v{vT0}, v{vT2}, v{vT2} row_ror:8 {FULL}")
    for r in (4, 2, 1): a(f"v_max_f32_dpp v{vT0}, v{vT0}, v{vT0} row_ror:{r} {FULL}")
    B32(a, vT0, vT1, "v_max_f32")
    a(f"v_max_f32 v{vT0}, v{vT0}, v{vMX}")
    a(f"v_sub_f32 v{vT1}, v{vMX}, v{vT0}\nv_sub_f32 v{vT2}, v{vT2}, v{vT0}")
    a(f"v_mov_b32 v{vMX}, v{vT0}")
    a(f"v_mul_f32 v{vT1}, s88, v{vT1}\nv_mul_f32 v{vT2}, s88, v{vT2}")
    a(f"v_exp_f32 v{vT1}, v{vT1}\nv_exp_f32 v{vT2}, v{vT2}")
    a(f"v_cvt_pk_bf16_f32 v{vP}, v{vT2}, v{vT2}")
    a(f"v_fma_f32 v{vLS}, v{vLS}, v{vT1}, v{vT2}")
    for r in range(4): a(f"v_mul_f32 v{ACC+r}, v{ACC+r}, v{vT1}")

def v_body(a, R, extra_ops, refill, after, step=None, salu=None):
    def build(j):
        for r in range(4):
            a(f"v_and_b32_dpp v{AA+4*(j&1)+r}, v{vP}, v{MK+r} row_newbcast:{j} {FULL}")
    fill = lines_of(salu) if salu else []
    while len(fill) > 16: a(fill.pop(0))
    build(0)
    for j in range(16):
        a(f"s_waitcnt vmcnt({15 - j + extra_ops})")
        if fill: a(fill.pop(0))
        A = AA+4*(j&1)
        a(f"v_mfma_f32_16x16x32_bf16 v[{ACC}:{ACC+3}], v[{A}:{A+3}], {ring(R,j)}, v[{ACC}:{ACC+3}]")
        if j == 6 and step is not None: v_fetch(a, step)
        if j < 15: build(j+1)
    weave(a, lines_of(refill) if refill else [], lines_of(after) if after else [])

def ml_out(a):
    rowall(a, [vLS]); B32(a, vLS, vT0)
    a(f"s_lshl_b32 s8, s3, 2\nv_mov_b32 v{vT2}, s8\nds_write_b32 v{vT2}, v{vMX} offset:{L_M}\nds_write_b32 v{vT2}, v{vLS} offset:{L_L}")
    a(f"v_lshlrev_b32 v{vT1}, 4, v0\nv_mov_b32 v{vT2}, 0")

XRR = [32, 36, 40, 44, 60]
NT = " nt" if "xnt" in OPT else ""
NG = NT
NO = " nt" if "ont" in OPT else ""
NY = " nt" if "ynt" in OPT else ""
NQ = " nt" if "qnt" in OPT else ""
def xp_load(a):
    a(f"s_lshl_b32 s8, s6, 10\nbuffer_load_dwordx4 v[60:63], v17, {SW}, s8 offen sc1{NT}")
def xr_ops(a, op, idx):
    a(f"s_mul_i32 s8, s{idx}, 4608\ns_add_u32 s8, s8, {XR}\ns_add_u32 s9, s8, 4096")
    for g, R in enumerate(XRR[:4]):
        a(f"{op}x4 v[{R}:{R+3}], v17, {SW}, s8 offen offset:{1024*g} sc1{NT}")
    a(f"{op}x2 v[60:61], v11, {SW}, s9 offen sc1{NT}")
def xr_load(a): xr_ops(a, "buffer_load_dword", sXI)
def x_check(a, tag, tagregs, load, nap=4):
    a(f"s_mov_b32 s96, {SPIN}")
    a(f"x_chk_{tag}:")
    a(f"v_cmp_ne_u32 vcc, s{sTAG}, v{tagregs[0]}")
    for r in tagregs[1:]: a(f"v_cmp_ne_u32 s[10:11], s{sTAG}, v{r}\ns_or_b64 vcc, vcc, s[10:11]")
    a(f"s_cbranch_vccz x_ok_{tag}")
    a(f"s_sub_u32 s96, s96, 1\ns_cmp_eq_u32 s96, 0\ns_cbranch_scc1 x_ok_{tag}\ns_sleep {nap}")
    load(a)
    a(f"s_waitcnt vmcnt(0)\ns_branch x_chk_{tag}")
    a(f"x_ok_{tag}:")
def vote_load(a):
    a(f"buffer_load_dwordx4 v[60:63], v17, {SW}, s12 offen sc1")
def gu_load(a):
    a(f"buffer_load_dwordx2 v[42:43], v18, {SW}, s12 offen sc1{NG}\nbuffer_load_dwordx2 v[32:33], v18, {SW}, s12 offen offset:512 sc1{NG}")

def tally(a, T):
    for r in range(4): a(f"v_xor_b32 v{T+r}, s{sTAG}, v{60+r}")
    for r in range(4): a(f"v_cmp_gt_u32 s[{60+2*r}:{61+2*r}], 64, v{T+r}")
    for r in range(4): a(f"v_and_b32 v{T+r}, 1, v{60+r}\nv_and_b32 v{T+4+r}, 2, v{60+r}")
    for r in range(4): a(f"v_lshlrev_b32 v{T+4+r}, 9, v{T+4+r}")
    for r in range(4): a(f"v_or3_b32 v{T+r}, v{T+r}, v{T+4+r}, s77")
    for r in range(4): a(f"v_cndmask_b32 v{T+r}, 0, v{T+r}, s[{60+2*r}:{61+2*r}]")
    a(f"v_add3_u32 v{T}, v{T}, v{T+1}, v{T+2}\nv_add_u32 v{T}, v{T}, v{T+3}")
    a("s_andn2_b32 s8, s2, 4\ns_lshr_b32 s8, s8, 2")
    for r in range(4): a(f"v_readlane_b32 s{72+r}, v{60+r}, s8")
    waveall(a, T, T+1, "v_add_u32")
    a("s_bitcmp1_b32 s2, 0\ns_cselect_b32 s72, s73, s72\ns_cselect_b32 s74, s75, s74\ns_bitcmp1_b32 s2, 1\ns_cselect_b32 s72, s74, s72")
    a(f"v_readfirstlane_b32 s8, v{T}")
    if STAMP: a("v_writelane_b32 v224, s8, 15")
    a("s_lshr_b32 s73, s8, 20\ns_and_b32 s74, s8, 0x3ff\ns_bfe_u32 s75, s8, 0xa000a")
    a("s_bfe_u32 s9, s72, 0x10004\ns_lshl_b32 s9, s9, 2")
    a("s_cmp_gt_u32 s74, 128\ns_cselect_b32 s8, 1, 0\ns_or_b32 s9, s9, s8\ns_cmp_gt_u32 s75, 128\ns_cselect_b32 s8, 2, 0\ns_or_b32 s9, s9, s8")
    a("s_sub_u32 s8, s73, s74\ns_add_u32 s8, s8, 1\ns_max_u32 s74, s74, s8\ns_sub_u32 s8, s73, s75\ns_add_u32 s8, s8, 1\ns_max_u32 s75, s75, s8\ns_min_u32 s74, s74, s75")
    a(f"s_xor_b32 s72, s72, s{sTAG}\ns_cmp_lt_u32 s72, 64\ns_cselect_b32 s74, s74, 0\ns_cmp_gt_u32 s74, 128")

def tagsel(a):
    for r in range(4): a(f"s_mov_b32 s{72+r}, {hex(0x07060500+r)}")
    a("s_mov_b32 s76, 0x0c0c0400\ns_mov_b32 s77, 0x04000c0c")
def tagbytes(a, R):
    for r in range(4): a(f"v_perm_b32 v{R+r}, v{R+r}, v{vTAG}, s{72+r}")
def tagbad(a, d, R, t):
    a(f"v_perm_b32 v{d}, v{R+1}, v{R}, s76\nv_perm_b32 v{t}, v{R+3}, v{R+2}, s77")
    a(f"v_or_b32 v{d}, v{d}, v{t}\nv_xor_b32 v{d}, v{d}, v{vTAG}")

def kernel():
    a = Asm(); K = NAME + "_kernel"
    a(f".globl {K}\n.p2align 8\n.type {K},@function\n{K}:")
    a("s_cmp_ge_u32 s2, 256\ns_cbranch_scc1 main_done")
    stamp(a, 0)
    a("s_load_dwordx16 s[16:31], s[0:1], 0\ns_load_dwordx8 s[32:39], s[0:1], 64\ns_memtime s[100:101]")
    a("v_lshrrev_b32 v1, 6, v0\nv_readfirstlane_b32 s3, v1\nv_and_b32 v1, 63, v0")
    a("s_getpc_b64 s[98:99]\nipf_pc:\ns_lshr_b32 s5, s2, 3\ns_lshl_b32 s5, s5, 10\ns_min_u32 s5, s5, code_end-ipf_pc-1024\nv_lshl_add_u32 v63, v1, 4, s5")
    a("s_cmp_lg_u32 s3, 3\ns_cbranch_scc1 noipf\nglobal_load_dwordx4 v[28:31], v63, s[98:99]\nnoipf:")
    a("s_lshr_b32 s5, s2, 4\ns_and_b32 s6, s2, 15")
    a("v_lshlrev_b32 v17, 4, v1")
    a("v_lshrrev_b32 v18, 3, v1\nv_and_b32 v14, 7, v1\nv_lshlrev_b32 v14, 4, v14\nv_lshl_add_u32 v19, v18, 13, v14")
    a("v_mul_u32_u24 v47, 3584, v18\nv_add_u32 v47, v47, v14")
    a(f"v_mov_b32 v15, {hex(OOB)}\nv_cmp_gt_u32 vcc, 32, v1\nv_cndmask_b32 v14, v15, v19, vcc")
    a("v_cmp_gt_u32 vcc, 48, v1\nv_cndmask_b32 v16, v15, v47, vcc")
    a("v_lshlrev_b32 v18, 1, v18")
    a(f"v_and_b32 v{vLO}, 31, v1\nv_lshlrev_b32 v{vLO}, 4, v{vLO}\nv_lshrrev_b32 v{vHI}, 5, v1\nv_lshlrev_b32 v{vHI}, 15, v{vHI}\nv_add_u32 v{vLO}, v{vLO}, v{vHI}\nv_add_u32 v{vHI}, 0x10000, v{vLO}")
    a("s_bfe_u32 s7, s2, 0x20002\ns_mul_i32 s8, s7, 112\ns_mul_i32 s9, s3, 28\ns_add_u32 s8, s8, s9\ns_lshl_b32 s9, s8, 1")
    a("s_lshl_b32 s8, s8, 13\ns_lshl_b32 s10, s5, 9\ns_add_u32 s8, s8, s10\ns_and_b32 s10, s2, 3\ns_lshl_b32 s10, s10, 7\ns_add_u32 s8, s8, s10")
    a("s_lshr_b32 s11, s2, 3\ns_and_b32 s13, s2, 7")
    a(f"s_mul_i32 s12, s13, 56\ns_mul_i32 s14, s3, 14\ns_add_u32 s12, s12, s14\ns_mul_i32 s14, s12, 3584\ns_lshl_b32 s12, s12, 1\ns_lshl_b32 s15, s11, 7\ns_add_u32 s14, s14, s15")
    a(f"s_lshl_b32 s83, s5, 24\ns_bitcmp1_b32 s2, 3\ns_cselect_b32 s15, {hex(MJ)}, 0\ns_xor_b32 s83, s83, s15")
    a("s_lshr_b32 s10, s2, 1\ns_lshr_b32 s15, s2, 7\ns_xor_b32 s10, s10, s15\ns_andn2_b32 s10, 1, s10\ns_lshl_b32 s10, s10, 12\ns_xor_b32 s83, s83, s10")
    a("s_lshr_b32 s10, s2, 6\ns_xor_b32 s10, s10, s2\ns_and_b32 s10, s10, 1\ns_lshl_b32 s10, s10, 14\ns_xor_b32 s83, s83, s10")
    if opt("XS", 0): a(f"s_xor_b32 s83, s83, {hex((opt('XS', 0) & 1) << 14 | (opt('XS', 0) >> 1) << 12)}")

    a("s_bfe_u32 s4, s2, 0x10002\ns_xor_b32 s10, s4, s11\ns_and_b32 s10, s10, 1")
    a(f"s_lshl_b32 s10, s10, 13\ns_xor_b32 s{sOK}, s83, s10")
    a(f"s_bitcmp1_b32 s3, 0\ns_cselect_b32 s10, {hex(T_of(2))}, 0\ns_xor_b32 s{sOK}, s{sOK}, s10")
    a(f"s_bitcmp1_b32 s3, 1\ns_cselect_b32 s10, {hex(T_of(4))}, 0\ns_xor_b32 s{sOK}, s{sOK}, s10")
    if SYM:
        a("; the first blocks are spread over all stacks: class (b & 3) ^ g")
        for bit, sh in ((SYMB, 14), (SYMB+1, 12))[:SYM]:
            a(f"s_bfe_u32 s10, s11, {hex(0x10000 | bit)}\ns_lshl_b32 s10, s10, {sh}\ns_xor_b32 s{sOK}, s{sOK}, s10")
    a("s_lshl_b32 s74, s11, 23\ns_and_b32 s75, s2, 3\ns_lshl_b32 s75, s75, 21\ns_or_b32 s74, s74, s75")
    a("s_bfe_u32 s75, s2, 0x10002\ns_lshl_b32 s75, s75, 11\ns_or_b32 s74, s74, s75\ns_or_b32 s74, s74, 0x40000")
    a("s_and_b32 s76, s3, 1\ns_lshl_b32 s75, s76, 13\ns_or_b32 s74, s74, s75")
    a("s_getreg_b32 s79, hwreg(HW_REG_XCC_ID)\ns_bfe_u32 s79, s79, 0x10002")
    a("s_xor_b32 s76, s76, s79\ns_xor_b32 s76, s76, s2\ns_and_b32 s76, s76, 1")
    a(f"s_mov_b32 s10, {EPO}")
    a("s_waitcnt lgkmcnt(0)")
    if "orc" in OPT:
        a("s_add_u32 s26, s10, 256\ns_load_dword s26, s[38:39], s26\ns_waitcnt lgkmcnt(0)")
        a(f"s_xor_b32 s27, s79, s26\ns_and_b32 s27, s27, 1\ns_lshl_b32 s27, s27, 13\ns_xor_b32 s{sOK}, s27, s83")
    sb_const(a, sOK, 0)
    a("s_cmp_lt_u32 s3, 2")
    a("s_cselect_b32 s72, s18, s20\ns_cselect_b32 s73, s19, s21")
    a("s_lshr_b32 s100, s100, 3\ns_mul_i32 s100, s100, 0x9e3779b1\ns_lshr_b32 s100, s100, 8\ns_and_b32 s100, s100, 0x1bd780\ns_or_b32 s74, s74, s100\ns_xor_b32 s75, s74, 0x400")
    if "nowarm" not in OPT: a("s_load_dword s78, s[72:73], s75")
    a(f"s_load_dword s{sTAG}, s[38:39], s10")
    srd(a, 40, 18, 1 << 28); srd(a, 52, 16, 896); srd(a, 56, 22, 448*8192)
    jitter(a, 11, 5)
    a("buffer_load_dwordx4 v[60:63], v17, s[52:55], 0 offen")
    for n in range(4):
        a(f"buffer_load_ushort v{40+n}, v18, s[52:55], s9 offen offset:{16*n}")
    for n in range(4):
        a(f"buffer_load_dwordx4 v[{160+4*n}:{163+4*n}], v{19 if n<3 else 14}, s[56:59], s8 offen nt")
        if n < 3: a(f"s_add_u32 s8, s8, {8*8192}")
    def kpre(lo, hi):
        for i in range(lo, hi):
            if i == 16: sb_const(a, sOK, 1)
            kvload(a, RA if i < 16 else RB, i % 16, SK)
    a("s_barrier")
    kpre(0, B1)
    srd(a, 60, 28, 448*3584); srd(a, 64, 30, 448*3584); srd(a, 68, 32, 1792*896)
    srd(a, 44, 20, 1 << 28); srd(a, 48, 38, WSSZ)
    stamp(a, 1)
    a(f"s_lshl_b32 s8, s5, 13\ns_add_u32 s8, s8, {QP}\ns_lshl_b32 s9, s3, 9\ns_add_u32 s15, s8, s9")
    a("s_lshl_b32 s9, s7, 11\ns_add_u32 s8, s8, s9\ns_and_b32 s9, s2, 3\ns_lshl_b32 s9, s9, 9\ns_add_u32 s7, s8, s9")
    a(f"v_and_b32 v13, 7, v1\nv_and_b32 v10, 56, v1\nv_lshl_add_u32 v11, v13, 6, v10\nv_lshl_add_u32 v46, v13, 10, v10")
    a(f"v_mul_u32_u24 v{vRP}, {VSTR}, v1\nv_cmp_gt_u32 vcc, 8, v1\nv_cndmask_b32 v{vRP}, v15, v{vRP}, vcc")
    a(f"s_cmp_eq_u32 s3, 0\ns_cselect_b64 vcc, -1, 0\nv_cndmask_b32 v{vSC}, v15, v11, vcc")
    a(f"v_mov_b32 v12, 0\nds_write_b32 v12, v12 offset:{L_V}")
    a(f"s_waitcnt vmcnt({B1+8})\nv_readfirstlane_b32 s77, v60\ns_lshl_b32 s77, s77, 16")
    vM, vS, vR = 20, 21, 22
    ln_stats2(a, 60, 32, vM, vS, vR, 12, 13, 11, 23, 77)
    a(f"s_waitcnt vmcnt({B1+4})")
    center_rows(a, [40, 41, 42, 43], vM)
    scale_rows(a, [40, 41, 42, 43], [24, 25, 26, 27], vS, vR)
    a(f"s_waitcnt vmcnt({B1})")
    stamp(a, 8)
    for n in range(4): gemv8(a, 32, 160+4*n, 24+n, 40+n, n == 0)
    red8(a, 32)
    a(f"v_lshlrev_b32 v12, 2, v0\nds_write_b32 v12, v32 offset:{L_P}\nv_lshlrev_b32 v12, 2, v1")
    a(f"s_waitcnt lgkmcnt(0)\ns_barrier")
    a(f"ds_read2st64_b32 v[32:33], v12 offset0:{L_P//256} offset1:{L_P//256+1}\nds_read2st64_b32 v[34:35], v12 offset0:{L_P//256+2} offset1:{L_P//256+3}")
    a(f"s_add_u32 s{sTAG}, s{sTAG}, 0x9e3779b9\nv_mov_b32 v{vTAG}, s{sTAG}")
    a(f"s_waitcnt lgkmcnt(0)\nv_add_f32 v32, v32, v33\nv_add_f32 v34, v34, v35\nv_add_f32 v{vSD}, v32, v34")
    a(f"buffer_store_dwordx2 v[{vSD}:{vSD+1}], v{vSC}, {SW}, s7 offen sc1{NQ}")
    stamp(a, 9)
    for n in range(2):
        a(f"buffer_load_ushort v{44+n}, v18, s[52:55], s12 offen offset:{16*n}")
    for n in range(2):
        a(f"buffer_load_dwordx4 v[{176+4*n}:{179+4*n}], v{47 if n==0 else 16}, s[60:63], s14 offen nt")
        a(f"buffer_load_dwordx4 v[{184+4*n}:{187+4*n}], v{47 if n==0 else 16}, s[64:67], s14 offen nt")
        if n == 0: a(f"s_add_u32 s14, s14, {8*3584}")
    kpre(B1, BA)
    jitter(a, 222, 5)
    for i in range(2):
        a("s_memtime s[100:101]\ns_waitcnt lgkmcnt(0)")
        a("s_load_dword s78, s[72:73], s74\ns_waitcnt lgkmcnt(0)\ns_memtime s[96:97]\ns_waitcnt lgkmcnt(0)")
        a(f"s_sub_u32 s{8+i}, s96, s100")
        if i == 0:
            a("s_xor_b32 s74, s74, 0x2000"); kpre(BA, B2)
    a("s_sub_i32 s8, s8, s9\ns_sub_i32 s9, 0, s8\ns_cmp_eq_u32 s76, 0\ns_cselect_b32 s8, s8, s9")
    a("s_max_i32 s8, s8, -2047\ns_min_i32 s8, s8, 2047\ns_add_i32 s8, s8, 2048\ns_lshr_b32 s9, s3, 1\ns_mul_i32 s9, s9, 13\ns_lshl_b32 s8, s8, s9")
    a(f"s_or_b32 s8, s8, 0x20000000\nv_mov_b32 v12, s8\nv_mov_b32 v13, 0\ns_mov_b64 exec, 1\nds_add_rtn_u32 v13, v13, v12 offset:{L_V}\ns_mov_b64 exec, -1")
    a(f"s_lshl_b32 s10, s79, 4\ns_andn2_b32 s9, s{sTAG}, 63\ns_or_b32 s10, s10, s9\ns_lshl_b32 s9, s2, 2\ns_add_u32 s9, s9, {VOTE}")
    a("s_waitcnt lgkmcnt(0)\nv_readfirstlane_b32 s72, v13\ns_add_u32 s72, s72, s8\ns_bitcmp0_b32 s72, 31\ns_cbranch_scc1 novote")
    a("s_and_b32 s73, s72, 0x1fff\ns_cmp_gt_u32 s73, 4096\ns_cselect_b32 s73, 1, 0\ns_or_b32 s10, s10, s73")
    a("s_bfe_u32 s73, s72, 0xd000d\ns_cmp_gt_u32 s73, 4096\ns_cselect_b32 s73, 2, 0\ns_or_b32 s10, s10, s73")
    a(f"v_mov_b32 v12, s10\nbuffer_store_dword v12, v{vRP}, {SW}, s9 offen sc1")
    a("novote:")
    def gather():
        for rb in range(4):
            if rb == 2: a("s_add_u32 s9, s15, 4096")
            a(f"buffer_load_dwordx2 v[{32+2*rb}:{33+2*rb}], v18, {SW}, s{15 if rb<2 else 9} offen offset:{2048*(rb&1)} sc1{NQ}")
    a("v_lshlrev_b32 v18, 3, v1"); gather(); kpre(B2, B3)
    a(f"v_lshlrev_b32 v{vSB}, 2, v1\nv_add_u32 v{vSB}, {L_S}, v{vSB}")
    a(f"s_lshl_b32 s8, s3, 7\ns_add_u32 s9, s8, {L_S}\nv_and_b32 v{vSW}, 15, v1\nv_lshl_add_u32 v{vSW}, v{vSW}, 2, s9")
    a(f"s_mov_b32 s{sXO}, s2\ns_xor_b32 s{sXI}, s2, 4")
    a(f"v_cmp_gt_u32 vcc, 32, v1\nv_cndmask_b32 v{vSH}, 0, 16, vcc")
    a("s_mov_b32 s84, 0xcccccccc\ns_mov_b32 s85, 0xcccccccc\ns_mov_b32 s86, 0xaaaaaaaa\ns_mov_b32 s87, 0xaaaaaaaa")
    a(f"s_mov_b32 s88, {fl(CEXP)}\ns_mov_b32 s77, 0x100000")
    a(f"v_lshrrev_b32 v{vPO}, 5, v1\nv_lshlrev_b32 v{vPO}, 14, v{vPO}\nv_bfe_u32 v12, v1, 1, 3\nv_lshlrev_b32 v12, 11, v12\nv_add_u32 v{vPO}, v{vPO}, v12")
    a(f"v_and_b32 v12, 1, v1\nv_lshlrev_b32 v12, 5, v12\nv_add_u32 v{vPO}, v{vPO}, v12\nv_and_b32 v12, 16, v1\nv_add_u32 v{vPO}, v{vPO}, v12")
    a(f"v_lshlrev_b32 v12, 11, v1\nv_cmp_gt_u32 vcc, 16, v1\nv_cndmask_b32 v{vPM}, v15, v12, vcc")
    yaddr(a, vY, vY3, 1, 12, 13, YS)
    a(f"s_lshl_b32 s{sPO}, s5, 15\ns_lshl_b32 s10, s6, 7\ns_add_u32 s{sPO}, s{sPO}, s10\ns_add_u32 s{sPO}, s{sPO}, {OIN}\ns_add_u32 s{sPM}, s{sPO}, 64")
    a(f"s_lshl_b32 s{sYA}, s2, 4\ns_add_u32 s{sYA}, s{sYA}, {YA}")
    a(f"s_lshl_b32 s14, s11, 13\ns_lshl_b32 s10, s13, 6\ns_add_u32 s14, s14, s10\ns_lshl_b32 s10, s3, 9\ns_add_u32 s14, s14, s10\ns_add_u32 s14, s14, {GU-512}")
    a(f"s_cmp_lt_u32 s11, 28\ns_cselect_b32 s10, 0, {hex(OOB)}\ns_add_u32 s9, s3, 3\ns_bitcmp1_b32 s9, 1\ns_cselect_b32 s10, {hex(OOB)}, s10\nv_or_b32 v46, s10, v46")
    a(f"s_and_b32 s12, s11, 7\ns_mul_i32 s12, s12, {VSTR}\ns_add_u32 s12, s12, {VOTE}")
    a(f"s_waitcnt vmcnt({B3-B1+8})")
    center_rows(a, [44, 45], vM)
    scale_rows(a, [44, 45], [12, 13], vS, vR)
    a(f"s_waitcnt vmcnt({B3-B1+4})")
    aG, aU = 24, 192
    for n in range(2):
        gemv8(a, aG, 176+4*n, 12+n, 44+n, n == 0)
        gemv8(a, aU, 184+4*n, 12+n, 44+n, n == 0)
    stamp(a, 10)
    red8(a, aG); red8(a, aU)
    a(f"v_lshlrev_b32 v12, 2, v0\nds_write_b32 v12, v{aG} offset:{L_P+1024}\nds_write_b32 v12, v{aU} offset:{L_P+2048}")
    mask1(a, MK, 1, vT0, vT1)
    def check():
        a(f"v_xor_b32 v40, s{sTAG}, v33\nv_xor_b32 v41, s{sTAG}, v35\nv_xor_b32 v42, s{sTAG}, v37\nv_xor_b32 v43, s{sTAG}, v39")
        a("v_or3_b32 v40, v40, v41, v42\nv_or_b32 v40, v40, v43\nv_cmp_ne_u32 vcc, 0, v40\ns_cbranch_vccz g_ok")
    a(f"s_mov_b32 s78, 0\ns_waitcnt vmcnt({B3-B2})")
    check()
    a("s_mov_b32 s78, 1"); gather(); kpre(B3, B4)
    a(f"s_waitcnt vmcnt({B4-B3})")
    check()
    a("s_mov_b32 s78, 2"); gather(); kpre(B4, 32)
    a(f"s_mov_b32 s96, {SPIN}\ns_waitcnt vmcnt({32-B4})")
    a("g_spin:")
    check()
    a("s_sub_u32 s96, s96, 1\ns_cmp_eq_u32 s96, 0\ns_cbranch_scc1 g_ok\ns_sleep 8")
    gather()
    a("s_waitcnt vmcnt(0)\ns_branch g_spin")
    a("g_ok:")
    stamp(a, 11)
    a("v_add_f32 v32, v32, v34\nv_add_f32 v36, v36, v38\nv_add_f32 v32, v32, v36")
    a("v_cvt_pk_bf16_f32 v32, v32, v32\nv_lshlrev_b32 v33, 1, v0\nds_write_b16 v33, v32")
    a("v_and_b32 v34, 31, v1\nv_lshlrev_b32 v34, 4, v34")
    a("s_max_u32 s8, s3, 1\ns_min_u32 s8, s8, 2\ns_lshl_b32 s8, s8, 10\nv_lshl_add_u32 v35, v1, 2, s8")
    a(f"s_waitcnt lgkmcnt(0)\ns_barrier\nds_read_b128 v[{vQ}:{vQ+3}], v34")
    a(f"ds_read2st64_b32 v[40:41], v35 offset0:{L_P//256} offset1:{L_P//256+1}\nds_read2st64_b32 v[42:43], v35 offset0:{L_P//256+2} offset1:{L_P//256+3}")
    a("s_cmp_eq_u32 s78, 2\ns_cbranch_scc1 g_p2\ns_cmp_eq_u32 s78, 1\ns_cbranch_scc1 g_p1")
    kpre(B3, B4)
    a("g_p1:"); kpre(B4, 32)
    a("g_p2:")
    a(f"s_waitcnt lgkmcnt(0)\nv_add_f32 v40, v40, v41\nv_add_f32 v42, v42, v43\nv_add_f32 v{vSD}, v40, v42")
    a(f"buffer_store_dwordx2 v[{vSD}:{vSD+1}], v46, {SW}, s14 offen sc1{NG}")
    a(f"v_mov_b32 v{vMX}, 0xff800000\nv_mov_b32 v{vLS}, 0")
    for r in range(4): a(f"v_mov_b32 v{ACC+r}, 0")
    stamp(a, 2)
    a("s_cmp_eq_u32 s3, 0\ns_cbranch_scc1 streamer")
    k_body(a, RA, lambda j: None if j < B2 else 32-j, None)
    k_body(a, RB, lambda j: None if 16+j < B2 else 16-j, None)
    a("s_waitcnt lgkmcnt(0)\ns_barrier\ns_cmp_lg_u32 s3, 1\ns_cbranch_scc1 main_fin")
    a(f"v_mov_b32 v{vT0}, 0\ns_barrier\nds_read_b96 v[32:34], v{vT0} offset:{L_V+16}")
    a(f"s_waitcnt lgkmcnt(0)\nv_readfirstlane_b32 s{sOV}, v32\nv_readfirstlane_b32 s{sXF}, v33\nv_readfirstlane_b32 s6, v34")
    a(f"s_bitcmp0_b32 s{sXF}, 13\ns_cbranch_scc1 x_nop")
    a(f"ds_read2st64_b32 v[24:25], v{vSB} offset0:0 offset1:1\nds_read_b32 v26, v{vSB} offset:512\nv_mov_b32 v27, s{sTAG}\ns_lshl_b32 s8, s2, 10\ns_waitcnt lgkmcnt(0)")
    a(f"buffer_store_dwordx4 v[24:27], v17, {SW}, s8 offen sc1{NT}")
    xp_load(a); a("s_waitcnt vmcnt(0)")
    x_check(a, "p", [63], xp_load, 32)
    a(f"ds_write2st64_b32 v{vSB}, v60, v61 offset0:0 offset1:1\nds_write_b32 v{vSB}, v62 offset:512\ns_waitcnt lgkmcnt(0)")
    a("x_nop:\ns_barrier")
    a(f"s_bitcmp0_b32 s{sXF}, 14\ns_cbranch_scc1 x_nor")
    for g, R in enumerate(XRR):
        r = 3+3*g
        if g < 4: a(f"ds_read2st64_b32 v[{R}:{R+1}], v{vSB} offset0:{r} offset1:{r+1}\nds_read_b32 v{R+2}, v{vSB} offset:{(r+2)*256}")
        else: a(f"ds_read_b32 v{R}, v{vSB} offset:{r*256}")
        a(f"v_mov_b32 v{R+3 if g < 4 else R+1}, s{sTAG}")
    a("v_lshlrev_b32 v11, 3, v1\ns_waitcnt lgkmcnt(0)")
    xr_ops(a, "buffer_store_dword", sXO)
    a(f"s_mul_i32 s12, s{sXI}, 4608\ns_add_u32 s12, s12, {XR+4096+4}\nv_mov_b32 v18, 0\ns_mov_b64 exec, 1")
    def tagpoll(t): t(f"buffer_load_dword v19, v18, {SW}, s12 offen sc1{NT}")
    tagpoll(a); a("s_waitcnt vmcnt(0)")
    x_check(a, "t", [19], tagpoll, opt("XSL", 12))
    a("s_mov_b64 exec, -1")
    xr_load(a); a("s_waitcnt vmcnt(0)")
    x_check(a, "r", [R+3 for R in XRR[:4]] + [61], xr_load, 4)
    for g, R in enumerate(XRR):
        r = 3+3*g
        if g < 4: a(f"ds_write2st64_b32 v{vSB}, v{R}, v{R+1} offset0:{r} offset1:{r+1}\nds_write_b32 v{vSB}, v{R+2} offset:{(r+2)*256}")
        else: a(f"ds_write_b32 v{vSB}, v{R} offset:{r*256}")
    a("s_waitcnt lgkmcnt(0)")
    a("x_nor:\ns_barrier\ns_barrier")
    a(f"v_add_u32 v{vSW}, {(MS+1-4)*64}, v{vSW}\ns_mov_b32 s{sD}, 2\ns_mov_b32 s{sS}, 128\ns_mov_b32 s{sE}, 128\ns_mov_b32 s{sK}, {MS+5}")
    sb_const(a, sOV, MS+1); refill_all(a, RA, SV)
    sb_const(a, sOV, MS+3); refill_all(a, RB, SV)
    v_head(a, sE)
    a("s_branch v_loop" if MS+5 < 64 else "s_branch v_fin")
    a("streamer:")
    sb_const(a, sOK, 8)
    k_body(a, RA, lambda j: None if j < B2 else 32-j, lambda t: refill_all(t, RA, SK))
    stamp(a, 13)
    sb_odd(a)
    k_body(a, RB, lambda j: None if 16+j < B2 else 32-j, lambda t: refill_all(t, RB, SK))
    stamp(a, 14)
    a(f"v_add_u32 v{vSW}, 384, v{vSW}\ns_barrier")
    sb_const(a, sOK, 10)
    vote_load(a)
    k_body(a, RA, lambda j: 32-j, lambda t: refill_all(t, RA, SK))
    sb_odd(a)
    k_body(a, RB, lambda j: 32-j, lambda t: refill_all(t, RB, SK))
    a(f"s_mov_b32 s96, {SPIN}\ns_waitcnt vmcnt(32)")
    a("vt_chk:")
    tally(a, 32)
    a("s_cbranch_scc0 vt_spin")
    a("vt_ok:")
    if opt("FLIP", 0): a(f"s_xor_b32 s9, s9, {opt('FLIP', 0)}")
    a("s_lshr_b32 s8, s9, 2\ns_xor_b32 s4, s4, s8")
    a(f"s_lshr_b32 s8, s9, 1\ns_xor_b32 s8, s8, s4\ns_and_b32 s8, s8, 1\ns_lshl_b32 s8, s8, 13\ns_xor_b32 s{sOV}, s83, s8")
    a(f"s_xor_b32 s{sXF}, s{sOK}, s{sOV}")
    a(f"s_bfe_u32 s8, s{sXF}, 0x1000e\ns_xor_b32 s6, s2, s8\ns_bfe_u32 s8, s{sXF}, 0x1000c\ns_lshl_b32 s8, s8, 1\ns_xor_b32 s6, s6, s8")
    a(f"s_bfe_u32 s8, s{sXF}, 0x1000d\ns_lshl_b32 s8, s8, 2\ns_xor_b32 s6, s6, s8\ns_cmp_lg_u32 s6, s2\ns_cselect_b32 s{sXF}, 0x2000, 0")
    a(f"s_xor_b32 s8, s9, s4\ns_and_b32 s8, s8, 1\ns_lshl_b32 s8, s8, 13\ns_xor_b32 s{sOK}, s83, s8")
    a(f"s_xor_b32 s8, s{sOK}, s{sOV}\ns_lshl_b32 s8, s8, 1\ns_or_b32 s{sXF}, s{sXF}, s8")
    if opt("XV", 0): a(f"s_xor_b32 s{sOV}, s{sOV}, {hex((opt('XV', 0) & 1) << 14 | (opt('XV', 0) >> 1) << 12)}")
    a(f"v_mov_b32 v32, 0\nv_mov_b32 v36, s{sOV}\nv_mov_b32 v37, s{sXF}\nv_mov_b32 v38, s6\nds_write_b96 v32, v[36:38] offset:{L_V+16}")
    jitter(a, 3333, 7)
    a(f"s_mov_b32 s{sK}, 12")
    a("k_loop:")
    sb_off(a, sOK, sK, 1)
    k_body(a, RA, lambda j: 31-j, lambda t: refill_all(t, RA, SK))
    sb_odd(a)
    k_body(a, RB, lambda j: 31-j, lambda t: refill_all(t, RB, SK))
    if STAMP:
        a(f"s_cmp_lg_u32 s{sK}, 12\ns_cbranch_scc1 k_st"); stamp(a, 12); a("k_st:")
        if "kst" in OPT:
            for kk, sl in ((24, 8), (36, 9), (48, 10), (58, 11)):
                a(f"s_cmp_lg_u32 s{sK}, {kk}\ns_cbranch_scc1 k_st{kk}"); stamp(a, sl); a(f"k_st{kk}:")
    a(f"s_cmp_lg_u32 s{sK}, 12\ns_cbranch_scc1 k_next\ns_waitcnt lgkmcnt(0)\ns_barrier")
    a("k_next:")
    a(f"s_add_u32 s{sK}, s{sK}, 2\ns_cmp_lt_u32 s{sK}, 64\ns_cbranch_scc1 k_loop")
    jitter(a, 44444, 6)
    sb_const(a, sOV, 0)
    k_body(a, RA, lambda j: 31-j, lambda t: refill_all(t, RA, SV))
    sb_odd(a)
    k_body(a, RB, lambda j: 31-j, lambda t: refill_all(t, RB, SV))
    a(f"v_subrev_u32 v{vSW}, 4096, v{vSW}\ns_waitcnt lgkmcnt(0)\ns_barrier")
    a("; ---- V phase")
    a(f"s_mov_b32 s{sK}, 2\ns_mov_b32 s{sD}, 1\ns_mov_b32 s{sS}, 64\ns_mov_b32 s{sE}, 64")
    stamp(a, 3)
    v_head(a, sE)
    a("v_loop:")
    a(f"s_cmp_eq_u32 s{sK}, {MS}\ns_cbranch_scc1 v_share\ns_cmp_eq_u32 s{sK}, {MS+4}\ns_cselect_b32 s{sS}, 128, s{sS}")
    a(f"s_cmp_lg_u32 s{sK}, 12\ns_cbranch_scc1 v_go\ns_barrier")
    a("v_go:")
    v_body(a, RA, 16, lambda t: refill_all(t, RA, SV), v_head, sS, lambda t: sb_off(t, sOV, sK))
    a(f"s_add_u32 s{sK}, s{sK}, s{sD}")
    v_body(a, RB, 16, lambda t: refill_all(t, RB, SV), v_head, sE, lambda t: sb_off(t, sOV, sK))
    a(f"s_add_u32 s{sK}, s{sK}, s{sD}\ns_cmp_lt_u32 s{sK}, 64\ns_cbranch_scc1 v_loop")
    a("v_fin:")
    tagsel(a)
    jitter(a, 555555, 5)
    a("s_cmp_eq_u32 s3, 0\ns_cbranch_scc1 v_last0")
    def last_head(t): v_head(t); ml_out(t)
    v_body(a, RA, 16, None, last_head, sE)
    v_body(a, RB, 0, None, None)
    a("s_branch v_end")
    a("v_last0:")
    srd(a, 52, 24, 4096*896)
    a("v_lshrrev_b32 v46, 4, v1\nv_mul_u32_u24 v19, 1792, v46\nv_and_b32 v18, 15, v1\nv_lshlrev_b32 v18, 4, v18\nv_lshl_add_u32 v46, v19, 1, v18\nv_add_u32 v19, v19, v18")
    a("v_and_b32 v18, 7, v1\nv_lshlrev_b32 v18, 6, v18\nv_and_b32 v47, 56, v1\nv_add_u32 v18, v18, v47")
    a(f"s_mul_i32 s10, s2, {16*896}\ns_min_u32 s9, s2, 223\ns_mul_i32 s9, s9, {8*896}\ns_lshl_b32 s12, s2, 10\ns_add_u32 s12, s12, {GU}")
    def wdo(t):
        gu_load(t)
        for i in range(8):
            t(f"buffer_load_dwordx4 {ring(RD,i)}, v19, s[68:71], s9 offen offset:{(i//4)*896+(i%4)*256} nt")
        for j in range(16):
            t(f"buffer_load_dwordx4 {ring(RA,j)}, v46, s[52:55], s10 offen offset:{(j//4)*896+(j%4)*256} nt")
    v_body(a, RA, 16, wdo, last_head, sE)
    v_body(a, RB, 26, None, None)
    a("v_end:")
    stamp(a, 4)
    a(f"ds_write_b128 v{vT1}, v[{ACC}:{ACC+3}] offset:{L_O}")
    a("s_waitcnt lgkmcnt(0)\ns_barrier")
    a("s_cmp_eq_u32 s3, 0\ns_cbranch_scc1 tail0")
    a("s_cmp_ge_u32 s2, 112\ns_cbranch_scc1 main_fin")
    reducer(a)
    a("s_branch main_fin")
    a("tail0:")
    tail0(a)
    a("main_fin:")
    stamp(a, 7); stamp_out(a)
    a("main_done:\ns_endpgm")
    a(f"v_share:\ns_waitcnt lgkmcnt(0)\ns_barrier\ns_mov_b32 s{sD}, 2\ns_mov_b32 s{sE}, 128\ns_branch v_go")
    a("vt_spin:\ns_sub_u32 s96, s96, 1\ns_cmp_eq_u32 s96, 0\ns_cbranch_scc1 vt_ok\ns_sleep 8")
    vote_load(a)
    a("s_waitcnt vmcnt(0)\ns_branch vt_chk")
    return a.text() + "code_end:\n", kd(K, 232 if STAMP else 224, 102)

def reducer(a):
    a("; ---- wave 1 of workgroups 0..111: out[4b..4b+3] = x + sum of the 256 partials")
    srd(a, 52, 16, 896); srd(a, 56, 34, 896)
    a(f"v_mov_b32 v18, {hex(OOB)}\ns_mul_i32 s11, s2, {YS}\ns_add_u32 s11, s11, {YA}\ns_lshl_b32 s13, s2, 3")
    a("v_lshrrev_b32 v2, 4, v1\nv_lshlrev_b32 v2, 1, v2\nv_and_b32 v3, 15, v1\nv_cmp_eq_u32 vcc, 0, v3\nv_cndmask_b32 v3, v18, v2, vcc")
    a("buffer_load_ushort v4, v2, s[52:55], s13 offen")
    for n in range(4): a(f"v_mov_b32 v{10+n}, v17\ns_mov_b64 s[{60+2*n}:{61+2*n}], -1")
    a(f"s_mov_b32 s96, {SPIN}")
    if "nogate" not in OPT: a("s_barrier")
    a("red_spin:")
    for n in range(4):
        a(f"buffer_load_dwordx4 v[{80+4*n}:{83+4*n}], v{10+n}, {SW}, s11 offen offset:{1024*n} sc1{NY}")
    a("s_waitcnt vmcnt(0)")
    for n in range(4):
        R = 80+4*n
        a(f"s_mov_b64 exec, s[{60+2*n}:{61+2*n}]\ns_cbranch_execz red_skip{n}")
        tagbad(a, 40, R, 41)
        a(f"v_cmp_eq_u32 vcc, 0, v40\ns_andn2_b64 s[{60+2*n}:{61+2*n}], exec, vcc\ns_and_b64 exec, exec, vcc")
        for r in range(4): a(f"v_and_b32 v{64+4*n+r}, 0xffffff00, v{R+r}")
        a(f"v_mov_b32 v{10+n}, v18")
        a(f"red_skip{n}:")
    a("s_mov_b64 exec, -1")
    a("s_or_b64 s[80:81], s[60:61], s[62:63]\ns_or_b64 s[82:83], s[64:65], s[66:67]\ns_or_b64 s[80:81], s[80:81], s[82:83]\ns_cbranch_scc0 red_ok")
    a("s_sub_u32 s96, s96, 1\ns_cmp_lg_u32 s96, 0\ns_cbranch_scc1 red_spin")
    a("red_ok:")
    stamp(a, 6)
    for r in range(4):
        a(f"v_add_f32 v{64+r}, v{64+r}, v{68+r}\nv_add_f32 v{72+r}, v{72+r}, v{76+r}")
    for r in range(4): a(f"v_add_f32 v{64+r}, v{64+r}, v{72+r}")
    multiT(a, "v_permlane32_swap_b32", [(64, 66), (65, 67)])
    T16(a, 64, 65)
    rowall(a, [64])
    a("v_lshlrev_b32 v4, 16, v4\nv_add_f32 v64, v64, v4\nv_cvt_pk_bf16_f32 v64, v64, v64")
    a("buffer_store_short v64, v3, s[56:59], s13 offen")
    a("s_cmp_lg_u32 s2, 0\ns_cbranch_scc1 main_fin")
    a(f"s_mov_b32 s8, {EPO}\nv_cmp_eq_u32 vcc, 0, v1\nv_cndmask_b32 v3, v18, v1, vcc\nbuffer_store_dword v{vTAG}, v3, {SW}, s8 offen")

def tail0(a):
    a("; ---- wave 0: merge waves 0 and 1, hand 16-column slices of (m, l, o) to the 16 workgroups of the head")
    a(f"ds_read_b64 v[28:29], v{vT2} offset:{L_M}\nds_read_b64 v[36:37], v{vT2} offset:{L_L}")
    a(f"ds_read_b128 v[160:163], v{vT1} offset:{L_O+1024}")
    a("v_and_b32 v44, 15, v1\nv_lshlrev_b32 v45, 7, v44\nv_and_b32 v47, 48, v1\nv_add_u32 v44, v45, v47")
    a(f"s_lshl_b32 s15, s2, 11\ns_add_u32 s15, s15, {OIN}")
    a("s_waitcnt lgkmcnt(1)")
    a(f"v_max_f32 v{vMX}, v28, v29")
    for w in range(2): a(f"v_sub_f32 v{28+w}, v{28+w}, v{vMX}")
    for w in range(2): a(f"v_mul_f32 v{28+w}, s88, v{28+w}")
    for w in range(2): a(f"v_exp_f32 v{28+w}, v{28+w}")
    a(f"v_mul_f32 v{vMX+1}, v28, v36\nv_fmac_f32 v{vMX+1}, v29, v37")
    for r in range(4): a(f"v_mul_f32 v{48+r}, v28, v{48+r}")
    a("s_waitcnt lgkmcnt(0)")
    for r in range(4): a(f"v_fmac_f32 v{48+r}, v29, v{160+r}")
    tagbytes(a, 48)
    a(f"buffer_store_dwordx4 v[48:51], v{vPO}, {SW}, s{sPO} offen sc1{NO}")
    a(f"buffer_store_dwordx4 v[{vMX}:{vMX+3}], v{vPM}, {SW}, s{sPM} offen sc1{NO}")
    stamp(a, 5)
    def poll():
        a(f"buffer_load_dwordx4 v[24:27], v44, {SW}, s15 offen sc1{NO}")
        a(f"buffer_load_dwordx4 v[28:31], v45, {SW}, s15 offen offset:64 sc1{NO}")
    poll()
    mask2(a, MK, 1, vT0, vT1)
    a("s_cmp_lt_u32 s2, 224\ns_cselect_b32 s9, -1, 0\ns_waitcnt vmcnt(4)")
    a(f"s_mov_b32 s96, {SPIN}\ngu_chk:")
    a(f"v_xor_b32 v40, s{sTAG}, v43\nv_xor_b32 v41, s{sTAG}, v33\nv_or_b32 v40, v40, v41\nv_and_b32 v40, s9, v40\nv_cmp_ne_u32 vcc, 0, v40\ns_cbranch_vccz gu_ok")
    a("s_sub_u32 s96, s96, 1\ns_cmp_eq_u32 s96, 0\ns_cbranch_scc1 gu_ok\ns_sleep 2")
    gu_load(a)
    a("s_waitcnt vmcnt(0)\ns_branch gu_chk\ngu_ok:")
    a("v_and_b32 v42, s9, v42\nv_and_b32 v32, s9, v32")
    g, u = 176, 177
    T4(a, g, 42, 42); T4(a, u, 32, 32)
    for q in ("[2,3,0,1]", "[1,0,3,2]"):
        for A in (g, u): a(f"v_add_f32_dpp v{A}, v{A}, v{A} quad_perm:{q} {FULL}")
    rnd(a, g, g); rnd(a, u, u)
    a(f"v_mul_f32 v8, v{g}, v{g}\nv_mul_f32 v8, v8, v{g}")
    a(f"v_mul_f32 v8, {fl(0.044715)}, v8\nv_add_f32 v8, v8, v{g}\nv_mul_f32 v8, {fl(0.7978845608028654)}, v8")
    a(f"v_mul_f32 v8, {fl(2*LOG2E)}, v8\nv_exp_f32 v8, v8\nv_add_f32 v8, 1.0, v8\nv_rcp_f32 v8, v8")
    a(f"v_fma_f32 v8, v8, -2.0, 2.0")
    a(f"v_mul_f32 v9, 0.5, v{g}\nv_mul_f32 v8, v8, v9")
    rnd(a, 8, 8)
    a(f"v_mul_f32 v8, v8, v{u}\nv_cvt_pk_bf16_f32 v8, v8, v8")
    for n in range(2):
        for r in range(4):
            a(f"v_and_b32_dpp v{176+4*n+r}, v8, v{MK+r} row_newbcast:{8*n} {FULL}")
    Y = 160
    for n in range(2):
        for blk in range(4):
            D = f"v[{Y+4*blk}:{Y+3+4*blk}]"
            a(f"v_mfma_f32_16x16x32_bf16 {D}, v[{176+4*n}:{179+4*n}], {ring(RD, n*4+blk)}, {'0' if n==0 else D}")
    a(f"s_mov_b32 s96, {SPIN}")
    a("t0_spin:")
    a("s_waitcnt vmcnt(0)")
    tagbad(a, 40, 24, 41)
    a(f"v_xor_b32 v41, v31, v{vTAG}\nv_or_b32 v40, v40, v41")
    a("v_cmp_eq_u32 vcc, 0, v40\ns_andn2_b64 s[78:79], exec, vcc\ns_and_b64 exec, exec, vcc")
    for r in range(4): a(f"v_and_b32 v{32+r}, 0xffffff00, v{24+r}")
    a("v_mov_b32 v36, v28\nv_mov_b32 v37, v29")
    a("s_mov_b64 exec, s[78:79]\ns_cbranch_execz t0_ok")
    poll()
    a("s_sub_u32 s96, s96, 1\ns_cmp_lg_u32 s96, 0\ns_cbranch_scc1 t0_spin")
    a("t0_ok:\ns_mov_b64 exec, -1")
    if "nogate" not in OPT: a("s_barrier")
    stamp(a, 6)
    a(f"v_max_f32_dpp v38, v36, v36 row_ror:8 {FULL}")
    for r in (4, 2, 1): a(f"v_max_f32_dpp v38, v38, v38 row_ror:{r} {FULL}")
    a("v_sub_f32 v36, v36, v38\nv_mul_f32 v36, s88, v36\nv_exp_f32 v36, v36")
    for r in range(4): a(f"v_mul_f32 v{32+r}, v{32+r}, v36")
    a("v_mul_f32 v36, v36, v37")
    rowall(a, [36, 32, 33, 34, 35])
    a("v_rcp_f32 v37, v36")
    for r in range(4): a(f"v_mul_f32 v{32+r}, v{32+r}, v37")
    for r in range(4): a(f"v_cvt_pk_bf16_f32 v{32+r}, v{32+r}, v{32+r}")
    def bld(n):
        for r in range(4): a(f"v_and_b32 v{176+4*n+r}, v{32+n}, v{MK+r}")
    def mm(n, blk):
        D = f"v[{Y+4*blk}:{Y+3+4*blk}]"
        a(f"v_mfma_f32_16x16x32_bf16 {D}, v[{176+4*n}:{179+4*n}], {ring(RA, n*4+blk)}, {D}")
    bld(0); bld(1)
    mm(0, 0); mm(0, 1); bld(2); mm(0, 2); mm(0, 3); bld(3)
    a(f"s_mov_b32 s8, s{sYA}")
    for blk in range(4):
        for n in range(1, 4): mm(n, blk)
        if blk:
            tagbytes(a, Y+4*(blk-1))
            a(f"buffer_store_dwordx4 v[{Y+4*(blk-1)}:{Y+4*(blk-1)+3}], v{vY}, {SW}, s8 offen sc1{NY}\ns_add_u32 s8, s8, {32*YS}")
    tagbytes(a, Y+12)
    a(f"buffer_store_dwordx4 v[{Y+12}:{Y+15}], v{vY3}, {SW}, s8 offen sc1{NY}")

DOC = """; One launch, 256 workgroups, one per CU; HBM-bound (K and V are each read once, nt).
"""
if __name__ == "__main__":
    t, k = kernel()
    s = HEADER + DOC + "; @launch grid=(256,1,1) block=(256,1,1) lds=9216\n"
    s += '.amdgcn_target "amdgcn-amd-amdhsa--gfx950"\n.text\n' + t + k
    open(sys.argv[1], "w").write(s)
```
